```python
import torch

def _softmax(x, axis=-1):
    return torch.softmax(x, dim=axis)
def _gelu(x):
    return torch.nn.functional.gelu(x, approximate="tanh")
def _silu(x):
    return torch.nn.functional.silu(x)
def _sigmoid(x):
    return torch.sigmoid(x)
def _layernorm(x, axis=-1, eps=1e-5):
    m = x.mean(dim=axis, keepdim=True)
    v = x.var(dim=axis, keepdim=True, unbiased=False)
    return (x - m) / torch.sqrt(v + eps)
def _scatter_add(tgt, idx, src, axis=0):
    return tgt.clone().index_add_(axis, idx, src)
def _segment_sum(src, seg, n):
    out = torch.zeros((n,) + src.shape[1:], dtype=src.dtype)
    return out.index_add_(0, seg, src)
def _pad(x, pw):
    flat = tuple(v for pair in reversed(pw) for v in pair)
    return torch.nn.functional.pad(x, flat)

kernel_name = 'standalone__sliding_block__prompt'

def setup_inputs():

    _w = (lambda a: (lambda t: t.to(torch.bfloat16) if t.is_floating_point() else t)(torch.as_tensor(a)))
    B, S, D = 1, 2048, 640
    return {
        "x": _w((lambda *s: torch.randn(*s, dtype=torch.bfloat16) * 0.2)(B, S, D)),
        "wqkv": _w((lambda *s: torch.randn(*s, dtype=torch.bfloat16) * 0.2)(D, 3 * D)),
        "wo": _w((lambda *s: torch.randn(*s, dtype=torch.bfloat16) * 0.05)(D, D)),
    }

def reference(x, wqkv, wo):
    B, S, D = x.shape
    H = 32; Dh = D // H; W = 256
    qkv = (lambda x, *d: x.permute(*d))((x @ wqkv).reshape(B, S, 3, H, Dh), 2, 0, 3, 1, 4)
    q, k, v = qkv[0], qkv[1], qkv[2]
    scores = torch.einsum("bhqd,bhkd->bhqk", q, k) * (Dh ** -0.5)
    idx = torch.arange(S)
    mask = (idx[:, None] - idx[None, :] >= 0) & (idx[:, None] - idx[None, :] < W)
    scores = torch.where(mask[None, None], scores, -1e9)
    p = _softmax(scores, axis=-1)
    o = torch.einsum("bhqk,bhkd->bhqd", p, v)
    return (lambda x, *d: x.permute(*d))(o, 0, 2, 1, 3).reshape(B, S, D) @ wo
```

```python
HEADER = """; Kernarg layout for this problem (48 bytes, ptrs only, base s[0:1]):
"""
class K:
    def __init__(self, name, grid, block, lds, vgpr=256, sgpr=102, accum=None):
        self.name = name; self.grid = grid; self.block = block; self.lds = lds
        self.vgpr = vgpr; self.sgpr = sgpr; self.accum = accum
        self.lines = []; self._lab = 0
    def __call__(self, s):
        for l in s.split("\n"):
            l = l.strip()
            if l: self.lines.append(("" if l.endswith(":") else "    ") + l)
    def label(self, base="L"):
        self._lab += 1
        return f"{base}_{self.name[:12]}_{self._lab}"
    def text(self):
        n = self.name
        return (f".text\n.globl {n}\n.p2align 8\n.type {n},@function\n{n}:\n" + "\n".join(self.lines) + "\n")
    def desc(self):
        acc = self.accum if self.accum is not None else ((self.vgpr + 3) // 4) * 4
        extra = ""
        if self.grid[1] > 1: extra = "  .amdhsa_system_sgpr_workgroup_id_y 1\n"
        return (f".amdhsa_kernel {self.name}\n  .amdhsa_next_free_vgpr {self.vgpr}\n  .amdhsa_next_free_sgpr {self.sgpr}\n"
                f"  .amdhsa_accum_offset {acc}\n  .amdhsa_group_segment_fixed_size 0\n  .amdhsa_kernarg_size 48\n"
                f"  .amdhsa_user_sgpr_count 2\n  .amdhsa_user_sgpr_kernarg_segment_ptr 1\n  .amdhsa_system_sgpr_workgroup_id_x 1\n"
                f"{extra}.end_amdhsa_kernel\n")

def emit(kernels, launches=None, single=False):
    if launches is None: launches = kernels
    out = HEADER
    if single:
        k = kernels[0]
        out += f"; @launch grid=({k.grid[0]},{k.grid[1]},{k.grid[2]}) block=({k.block[0]},{k.block[1]},{k.block[2]}) lds={k.lds}\n"
    else:
        for k in launches:
            out += f"; @launch kernel={k.name} grid=({k.grid[0]},{k.grid[1]},{k.grid[2]}) block=({k.block[0]},{k.block[1]},{k.block[2]}) lds={k.lds}\n"
    out += '.amdgcn_target "amdgcn-amd-amdhsa--gfx950"\n'
    for k in kernels: out += k.text()
    out += '.section .rodata,"a"\n'
    for k in kernels: out += ".p2align 6\n" + k.desc()
    return out
```

```python
import sys, math, struct
from asmlib import *

def f2u(x): return struct.unpack("<I", struct.pack("<f", x))[0]

QKV_OFF = 0
O_OFF   = 8 << 20
FL1_OFF = 12 << 20
FL2_OFF = FL1_OFF + 256 * 128
TAG_OFF = FL2_OFF + 256 * 128
STAMP_OFF = 13 << 20
WS_SIZE = 14 << 20
SLOT = 32768
LDS_WO = 0
LDS_K = 102400
LDS_V = LDS_K + 24576
LDS_Q = LDS_V + 24576
LDS_TOTAL = 163840
QSCALE = (20 ** -0.5) * math.log2(math.e)
SPIN_MAX = 400000

def gen(opts):
    NSLOT = opts.get("nslot", 5)
    stamps = opts.get("stamps", False)
    stop = opts.get("stop", 99)
    k = K("standalone__sliding_block__prompt_kernel", (256, 1, 1), (512, 1, 1), LDS_TOTAL, vgpr=256, sgpr=102)

    sX, sW, sWO, sOUT, sWS = 16, 20, 24, 28, 32
    sWAVE, sXCD, sJ, sR1, sCT = 36, 37, 38, 39, 40
    sH, sRB, sODD, sTAG = 41, 42, 43, 44
    sT0, sT1, sT2, sT3, sT4, sT5 = 46, 47, 48, 49, 50, 51
    sCNT, sSLOT = 52, 53
    sUP = 54
    sEX = 56
    sNT = 58
    sB0 = 59
    sST = 64
    nstamp = [0]
    def stamp(idx):
        if stamps:
            k(f"s_memrealtime s[{sST+2*idx}:{sST+2*idx+1}]")
    def srd(d, lo, size):
        k(f"s_mov_b32 s{d}, s{lo}\ns_mov_b32 s{d+1}, s{lo+1}\ns_mov_b32 s{d+2}, {size}\ns_mov_b32 s{d+3}, 0x20000")

    if stamps:
        for i in range(16): k(f"s_mov_b64 s[{sST+2*i}:{sST+2*i+1}], 0")
    stamp(0)
    k(f"""
    s_cmp_ge_u32 s2, 256
    s_cbranch_scc1 L_end
    s_load_dwordx8 s[4:11], s[0:1], 0
    s_load_dwordx4 s[12:15], s[0:1], 32
    v_lshrrev_b32 v1, 6, v0
    v_and_b32 v0, 63, v0
    v_readfirstlane_b32 s{sWAVE}, v1
    s_and_b32 s{sXCD}, s2, 7
    s_lshr_b32 s{sJ}, s2, 3
    s_and_b32 s{sT0}, s{sXCD}, 3
    s_lshl_b32 s{sT0}, s{sT0}, 2
    s_and_b32 s{sT1}, s{sJ}, 3
    s_add_u32 s{sR1}, s{sT0}, s{sT1}
    s_lshr_b32 s{sT0}, s{sXCD}, 2
    s_lshl_b32 s{sT0}, s{sT0}, 3
    s_lshr_b32 s{sRB}, s{sJ}, 2
    s_add_u32 s{sCT}, s{sT0}, s{sRB}
    s_lshl_b32 s{sH}, s{sXCD}, 2
    s_add_u32 s{sH}, s{sH}, s{sT1}
    s_and_b32 s{sODD}, s{sH}, 1
    s_mov_b32 s{sUP}, 0
    s_mov_b32 s{sUP+1}, -1
    s_cmp_ge_u32 s{sWAVE}, 4
    s_cbranch_scc1 L_loader
    """)
    ACC = 0 + 64
    AF = [[128, 132], [144, 148]]
    BF = [[136, 140], [152, 156]]
    vXB = [2, 3, 4, 5]
    vWB = [6, 7]
    vXA = [8, 9, 10, 11]
    vWA = [12, 13]
    k(f"""
    s_waitcnt lgkmcnt(0)
    """)
    srd(sWS, 14, WS_SIZE)
    k(f"""
    s_cmp_ge_u32 s{sCT}, 15
    s_cbranch_scc1 L_p1_done_c
    s_and_b32 s{sT0}, s{sWAVE}, 1
    s_lshr_b32 s{sT1}, s{sWAVE}, 1
    v_and_b32 v14, 31, v0
    v_lshrrev_b32 v15, 5, v0          ; h
    v_bfe_u32 v16, v0, 1, 3
    v_xor_b32 v16, v16, v15           ; y
    s_lshl_b32 s{sT2}, s{sT1}, 13     ; wm*64*128
    v_lshlrev_b32 v14, 7, v14
    v_add_u32 v14, s{sT2}, v14        ; row*128
    """)
    for s in range(4):
        k(f"v_xor_b32 v17, {2*s}, v16\nv_lshl_add_u32 v{vXB[s]}, v17, 4, v14")
    k(f"""
    v_bfe_u32 v14, v0, 2, 2           ; r
    v_lshl_add_u32 v17, v15, 3, v14   ; 8h + r
    v_lshlrev_b32 v17, 8, v17         ; *256
    v_add_u32 v17, 16384, v17
    v_bfe_u32 v18, v0, 4, 1           ; g&1
    v_bfe_u32 v19, v0, 1, 1           ; c>>1
    v_lshl_add_u32 v18, v18, 1, v19
    v_and_b32 v19, 1, v0
    v_lshl_add_u32 v17, v19, 3, v17   ; + (c&1)*8
    v_lshl_add_u32 v17, v18, 4, v17   ; + low*16
    s_lshl_b32 s{sT2}, s{sT0}, 1      ; 2wn
    """)
    for tn in range(2):
        k(f"""
        s_add_u32 s{sT3}, s{sT2}, {tn}
        v_xor_b32 v18, s{sT3}, v14
        v_lshl_add_u32 v{vWB[tn]}, v18, 6, v17
        """)
    for i in range(64): k(f"v_mov_b32 v{ACC+i}, 0")
    for s in range(4): k(f"v_mov_b32 v{vXA[s]}, v{vXB[s]}")
    for t in range(2): k(f"v_mov_b32 v{vWA[t]}, v{vWB[t]}")

    def reads(step, buf):
        for tn in range(2):
            for t in range(2):
                a = AF[buf][tn] + 2 * t
                k(f"ds_read_b64_tr_b16 v[{a}:{a+1}], v{vWA[tn]} offset:{(step*16+4*t)*256}")
        for tm in range(2):
            b = BF[buf][tm]
            k(f"ds_read_b128 v[{b}:{b+3}], v{vXA[step]} offset:{tm*4096}")
    def mfmas(buf):
        for tn in range(2):
            for tm in range(2):
                c = ACC + (tn * 2 + tm) * 16
                a = AF[buf][tn]; b = BF[buf][tm]
                k(f"v_mfma_f32_32x32x16_bf16 v[{c}:{c+15}], v[{a}:{a+3}], v[{b}:{b+3}], v[{c}:{c+15}]")
    k(f"""
    s_mov_b32 s{sCNT}, 0
    s_mov_b32 s{sSLOT}, 0
    s_barrier
    """)
    stamp(1)
    reads(0, 0)
    k("L_p1_loop:")
    reads(1, 1); k("s_waitcnt lgkmcnt(6)"); mfmas(0)
    reads(2, 0); k("s_waitcnt lgkmcnt(6)"); mfmas(1)
    reads(3, 1); k("s_waitcnt lgkmcnt(6)"); mfmas(0)
    k(f"""
    s_add_u32 s{sCNT}, s{sCNT}, 1
    s_add_u32 s{sSLOT}, s{sSLOT}, {SLOT}
    s_cmp_ge_u32 s{sSLOT}, {NSLOT*SLOT}
    s_cselect_b32 s{sSLOT}, 0, s{sSLOT}
    s_cmp_ge_u32 s{sCNT}, 10
    s_waitcnt lgkmcnt(0)
    s_cbranch_scc1 L_p1_last
    """)
    for s in range(4): k(f"v_add_u32 v{vXA[s]}, s{sSLOT}, v{vXB[s]}")
    for t in range(2): k(f"v_add_u32 v{vWA[t]}, s{sSLOT}, v{vWB[t]}")
    k("s_barrier")
    reads(0, 0)
    mfmas(1)
    k("s_branch L_p1_loop")
    k("L_p1_last:")
    mfmas(1)
    stamp(2)
    k(f"""
    s_and_b32 s{sT0}, s{sWAVE}, 1
    s_lshr_b32 s{sT1}, s{sWAVE}, 1
    s_lshl_b32 s{sT2}, s{sCT}, 4
    s_lshl_b32 s{sT0}, s{sT0}, 3
    s_add_u32 s{sT2}, s{sT2}, s{sT0}
    s_lshl_b32 s{sT2}, s{sT2}, 15           ; *32768
    s_lshl_b32 s{sT3}, s{sR1}, 11           ; r*128*16
    s_lshl_b32 s{sT1}, s{sT1}, 10           ; wm*64*16
    s_add_u32 s{sT2}, s{sT2}, s{sT3}
    s_add_u32 s{sT2}, s{sT2}, s{sT1}
    v_lshlrev_b32 v14, 4, v0
    s_mov_b32 s{sT4}, {hex(f2u(QSCALE))}
    s_mov_b32 s{sT5}, s{sT4}
    s_nop 7
    s_cmp_ge_u32 s{sCT}, 5
    s_cbranch_scc1 L_p1_noscale
    """)
    for i in range(32):
        k(f"v_pk_mul_f32 v[{ACC+2*i}:{ACC+2*i+1}], v[{ACC+2*i}:{ACC+2*i+1}], s[{sT4}:{sT5}]")
    k("L_p1_noscale:")
    for b in range(8):
        tn, bi = b >> 2, b & 3
        q = 128 + 4 * b
        c0 = ACC + (tn * 2 + 0) * 16 + 4 * bi
        c1 = ACC + (tn * 2 + 1) * 16 + 4 * bi
        k(f"""
        v_cvt_pk_bf16_f32 v{q}, v{c0}, v{c0+1}
        v_cvt_pk_bf16_f32 v{q+1}, v{c0+2}, v{c0+3}
        v_cvt_pk_bf16_f32 v{q+2}, v{c1}, v{c1+1}
        v_cvt_pk_bf16_f32 v{q+3}, v{c1+2}, v{c1+3}
        s_nop 1
        v_permlane32_swap_b32 v{q}, v{q+2}
        v_permlane32_swap_b32 v{q+1}, v{q+3}
        buffer_store_dwordx4 v[{q}:{q+3}], v14, s[{sWS}:{sWS+3}], s{sT2} offen sc1
        s_add_u32 s{sT2}, s{sT2}, 32768
        """)
    k("s_barrier")
    k("s_waitcnt vmcnt(0)")
    stamp(3)
    k("s_barrier")
    k("L_p1_done_c:")
    k("s_branch L_p2_prep")

    k("L_loader:")
    k(f"""
    s_sub_u32 s{sT0}, s{sWAVE}, 4
    v_lshrrev_b32 v2, 3, v0
    v_mul_u32_u24 v2, 1280, v2
    s_and_b32 s{sT1}, s{sT0}, 1
    s_lshl_b32 s{sT1}, s{sT1}, 2
    v_lshrrev_b32 v3, 4, v0
    v_add_u32 v4, s{sT1}, v3
    v_and_b32 v5, 7, v0
    v_xor_b32 v4, v4, v5
    v_lshl_add_u32 v2, v4, 4, v2
    s_mul_i32 s{sT2}, s{sR1}, {128*1280}
    s_mul_i32 s{sT3}, s{sT0}, {8*1280}
    s_add_u32 s{sT2}, s{sT2}, s{sT3}
    v_add_u32 v2, s{sT2}, v2             ; v2 = x voffset
    v_mul_u32_u24 v4, 3840, v3
    v_lshlrev_b32 v5, 2, v3
    v_and_b32 v6, 15, v0
    v_xor_b32 v5, v5, v6
    v_lshl_add_u32 v3, v5, 4, v4
    s_lshl_b32 s{sT2}, s{sCT}, 8
    s_mul_i32 s{sT3}, s{sT0}, {4*3840}
    s_add_u32 s{sT2}, s{sT2}, s{sT3}
    v_add_u32 v3, s{sT2}, v3             ; v3 = W voffset
    s_lshl_b32 s{sT4}, s{sT0}, 10        ; lw*1024
    s_waitcnt lgkmcnt(0)
    """)
    srd(sX, 4, 2621440); srd(sW, 6, 2457600); srd(sWS, 14, WS_SIZE); srd(sWO, 8, 819200)
    k(f"""
    s_cmp_ge_u32 s{sCT}, 15
    s_cbranch_scc1 L_p1_done_l
    """)
    def issue(c):
        slot = (c % NSLOT) * SLOT
        for t in range(4):
            k(f"s_add_u32 m0, s{sT4}, {slot + t*4096}")
            k(f"s_mov_b32 s{sT5}, {c*128 + t*32*1280}")
            k(f"buffer_load_dwordx4 v2, s[{sX}:{sX+3}], s{sT5} offen lds")
        for t in range(4):
            k(f"s_add_u32 m0, s{sT4}, {slot + 16384 + t*4096}")
            k(f"s_mov_b32 s{sT5}, {c*64*3840 + t*16*3840}")
            k(f"buffer_load_dwordx4 v3, s[{sW}:{sW+3}], s{sT5} offen lds")
    issued = 0
    for c in range(min(NSLOT, 10)): issue(c); issued += 1
    for c in range(10):
        k(f"s_waitcnt vmcnt({(issued - c - 1) * 8})")
        k(f"s_barrier      ; B_{c}")
        if c >= 1 and issued < 10:
            issue(issued); issued += 1
    k("s_barrier          ; BA")
    k("L_p1_done_l:")
    k(f"""
    s_cmp_eq_u32 s{sWAVE}, 4
    s_cbranch_scc1 L_sync1
    """)
    for i in range(5):
        k(f"""
        v_add_u32 v10, {64*i}, v0
        v_mul_u32_u24 v11, 6554, v10
        v_lshrrev_b32 v11, 16, v11        ; rho
        v_mul_u32_u24 v12, 10, v11
        v_sub_u32 v12, v10, v12           ; piece
        v_and_b32 v13, 3, v11             ; r
        v_bfe_u32 v14, v11, 2, 2          ; g
        v_lshl_add_u32 v13, v14, 3, v13
        v_lshrrev_b32 v14, 4, v11         ; t
        v_lshl_add_u32 v13, v14, 2, v13   ; k
        v_mul_u32_u24 v13, 1280, v13
        v_lshl_add_u32 v{4+i}, v12, 4, v13
        """)
    k(f"""
    s_sub_u32 s{sT0}, s{sWAVE}, 5
    s_mul_i32 s{sT1}, s{sT0}, 7
    s_add_u32 s{sT2}, s{sT1}, 7
    s_min_u32 s{sT2}, s{sT2}, 20
    s_mul_i32 s{sT3}, s{sRB}, 160
    s_mul_i32 s{sT5}, s{sT1}, {32*1280}
    s_add_u32 s{sT3}, s{sT3}, s{sT5}        ; soffset
    s_mul_i32 s{sT4}, s{sT1}, 5120
    L_wo_loop:
    """)
    for i in range(5):
        k(f"s_add_u32 m0, s{sT4}, {LDS_WO + i*1024}")
        k("s_nop 0")
        k(f"buffer_load_dwordx4 v{4+i}, s[{sWO}:{sWO+3}], s{sT3} offen lds")
    k(f"""
    s_add_u32 s{sT4}, s{sT4}, 5120
    s_add_u32 s{sT3}, s{sT3}, {32*1280}
    s_add_u32 s{sT1}, s{sT1}, 1
    s_cmp_lt_u32 s{sT1}, s{sT2}
    s_cbranch_scc1 L_wo_loop
    s_cmp_ge_u32 s{sCT}, 15
    s_cbranch_scc1 L_p2_prep
    s_barrier          ; BB
    s_branch L_p2_prep
    """)
    def poll(lab, vaddr, cond_ne_reg, srdreg, is_tag=False):
        k(f"""
        s_mov_b32 s{sCNT}, 0
        {lab}:
        """)
        if is_tag:
            k(f"global_load_dword v10, v{vaddr}, s[12:13] sc1")
        else:
            k(f"buffer_load_dword v10, v{vaddr}, s[{srdreg}:{srdreg+3}], 0 offen sc1")
        k(f"""
        s_add_u32 s{sCNT}, s{sCNT}, 1
        s_cmp_ge_u32 s{sCNT}, {SPIN_MAX}
        s_waitcnt vmcnt(0)
        s_cbranch_scc1 {lab}_out
        """)
        if is_tag:
            k(f"v_cmp_eq_u32 vcc, 0, v10")
        else:
            k(f"v_cmp_ne_u32 vcc, s{sTAG}, v10")
        k(f"""
        s_cbranch_vccnz {lab}
        {lab}_out:
        """)
    k("L_sync1:")
    k(f"""
    v_mov_b32 v9, 0
    s_cmp_lg_u32 s2, 255
    s_cbranch_scc1 L_notleader
    s_mov_b64 exec, 1
    v_mov_b32 v11, {TAG_OFF}
    buffer_load_dword v10, v11, s[{sWS}:{sWS+3}], 0 offen sc1
    s_waitcnt vmcnt(0)
    v_add_u32 v10, 1, v10
    v_max_u32 v10, 1, v10
    buffer_store_dword v10, v11, s[{sWS}:{sWS+3}], 0 offen sc1
    global_store_dword v9, v10, s[12:13] sc1
    s_mov_b64 exec, -1
    L_notleader:
    """)
    poll("L_polltag", 9, None, None, is_tag=True)
    k(f"""
    v_readfirstlane_b32 s{sTAG}, v10
    v_lshrrev_b32 v2, 3, v0            ; ty
    v_bfe_u32 v3, v0, 1, 2             ; ro
    v_and_b32 v4, 1, v0                ; hi
    s_lshr_b32 s{sT0}, s{sH}, 1
    s_mul_i32 s{sT0}, s{sT0}, 5
    s_lshl_b32 s{sT1}, s{sODD}, 1
    s_add_u32 s{sT0}, s{sT0}, s{sT1}     ; 5m + 2*odd
    v_mul_u32_u24 v5, 80, v2
    v_lshl_add_u32 v5, v4, 1, v5
    v_add_u32 v5, s{sT0}, v5
    v_lshrrev_b32 v5, 4, v5            ; ct
    s_lshl_b32 s{sT1}, s{sRB}, 1
    s_sub_u32 s{sT1}, s{sT1}, 2
    v_add_u32 v6, s{sT1}, v3
    v_mul_i32_i24 v7, 15, v6
    v_add_u32 v7, v7, v5
    v_lshlrev_b32 v7, 7, v7
    v_add_u32 v7, {FL1_OFF}, v7
    v_cmp_gt_u32 vcc, 24, v0
    v_cmp_le_i32 s[{sT2}:{sT2+1}], 0, v6
    s_and_b64 vcc, vcc, s[{sT2}:{sT2+1}]
    v_lshl_add_u32 v8, v2, 2, v3
    v_cmp_le_u32 s[{sT2}:{sT2+1}], 2, v8
    s_and_b64 s[{sEX}:{sEX+1}], vcc, s[{sT2}:{sT2+1}]
    s_cmp_ge_u32 s{sCT}, 15
    s_cbranch_scc1 L_sync1_noflag
    s_barrier          ; BB
    s_mul_i32 s{sT0}, s{sR1}, 15
    s_add_u32 s{sT0}, s{sT0}, s{sCT}
    s_lshl_b32 s{sT0}, s{sT0}, 7
    s_add_u32 s{sT0}, s{sT0}, {FL1_OFF}
    s_mov_b64 exec, 1
    v_mov_b32 v11, s{sTAG}
    buffer_store_dword v11, v9, s[{sWS}:{sWS+3}], s{sT0} offen sc1
    L_sync1_noflag:
    s_mov_b64 exec, s[{sEX}:{sEX+1}]
    """)
    stamp(4)
    poll("L_poll1", 7, None, sWS)
    k("s_mov_b64 exec, -1")
    stamp(5)

    vQ1, vQ2 = 16, 20
    vKA1, vKA2 = 2, 3
    vVA = [4, 5]
    vOA, vOH = 6, 7
    CD, CF = 32, 48
    S = [64, 80]
    P = 96
    KF = [104, 112]
    VF = [120, 128]
    OA = 136
    k("L_p2_prep:")
    BIG = 2.0 ** 100
    k(f"""
    v_and_b32 v10, 31, v0              ; q
    v_lshrrev_b32 v11, 5, v0           ; h
    v_lshlrev_b32 v12, 2, v11
    v_sub_u32 v12, v10, v12            ; t = q - 4h
    v_cvt_f32_i32 v12, v12
    v_mul_f32 v12, {hex(f2u(BIG))}, v12
    """)
    for i in range(16):
        key = 8 * (i >> 2) + (i & 3)
        k(f"v_add_f32 v{CD+i}, {hex(f2u(-key*BIG)) if key else 0}, v12")
        k(f"v_min_f32 v{CD+i}, 0, v{CD+i}")
        k(f"v_sub_f32 v{CF+i}, {hex(f2u((key-1)*BIG)) if key != 1 else 0}, v12")
        k(f"v_min_f32 v{CF+i}, 0, v{CF+i}")
    k(f"""
    s_lshl_b32 s{sT0}, s{sWAVE}, 9        ; w*512
    v_lshlrev_b32 v13, 4, v10
    v_add_u32 v13, s{sT0}, v13            ; (32w+q)*16
    v_lshl_add_u32 v{vKA1}, v11, 13, v13
    v_add_u32 v{vKA1}, {LDS_K}, v{vKA1}
    v_xor_b32 v14, s{sODD}, v11
    v_lshl_add_u32 v{vKA2}, v14, 3, v13
    v_add_u32 v{vKA2}, {LDS_K+16384}, v{vKA2}
    v_lshl_add_u32 v22, v11, 12, v13
    v_add_u32 v22, {LDS_Q}, v22
    s_lshl_b32 s{sT1}, s{sODD}, 3
    s_add_u32 s{sT1}, s{sT1}, {LDS_Q+8192}
    v_add_u32 v23, s{sT1}, v13
    v_bfe_u32 v14, v0, 4, 1              ; g1
    v_bfe_u32 v15, v0, 1, 1              ; c>>1
    v_cmp_eq_u32 vcc, 1, v14
    v_mov_b32 v24, 2
    v_and_b32 v25, 1, v0                 ; c&1
    v_cndmask_b32 v15, v15, v24, vcc     ; p
    v_and_b32 v24, s{sODD}, v14
    v_xor_b32 v25, v25, v24              ; half
    v_bfe_u32 v24, v0, 2, 2              ; r
    v_lshl_add_u32 v24, v11, 2, v24      ; 4h + r
    v_lshlrev_b32 v26, 2, v15            ; p<<2
    v_lshlrev_b32 v27, 13, v15           ; p*8192
    v_lshl_add_u32 v27, v25, 3, v27
    v_add_u32 v27, s{sT0}, v27
    v_add_u32 v27, {LDS_V}, v27
    v_xor_b32 v25, v24, v26
    v_lshl_add_u32 v{vVA[0]}, v25, 4, v27
    v_or_b32 v24, 8, v24
    v_xor_b32 v25, v24, v26
    v_lshl_add_u32 v{vVA[1]}, v25, 4, v27
    s_lshr_b32 s{sT1}, s{sH}, 1
    s_mul_i32 s{sB0}, s{sT1}, 5            ; 5m
    s_mul_i32 s{sT2}, s{sODD}, 3
    s_add_u32 s{sT2}, s{sT2}, s{sB0}       ; blockA
    s_lshl_b32 s{sT3}, s{sRB}, 12          ; 256*RB*16
    s_lshl_b32 s{sT4}, s{sT2}, 15
    s_add_u32 s{sT4}, s{sT4}, s{sT3}
    s_add_u32 s{sT4}, s{sT4}, {O_OFF}
    v_lshl_add_u32 v{vOA}, v11, 15, v13
    v_add_u32 v{vOA}, s{sT4}, v{vOA}
    s_add_u32 s{sT4}, s{sB0}, 2
    s_lshl_b32 s{sT4}, s{sT4}, 15
    s_add_u32 s{sT4}, s{sT4}, s{sT3}
    s_lshl_b32 s{sT5}, s{sODD}, 3
    s_add_u32 s{sT4}, s{sT4}, s{sT5}
    s_add_u32 s{sT4}, s{sT4}, {O_OFF}
    v_add_u32 v{vOH}, s{sT4}, v13
    ; ntiles
    s_add_u32 s{sNT}, s{sWAVE}, 1
    s_cmp_lg_u32 s{sRB}, 0
    s_cselect_b32 s{sNT}, 9, s{sNT}
    """)
    for i in range(16): k(f"v_mov_b32 v{OA+i}, 0")
    k(f"""
    v_lshlrev_b32 v28, 4, v0
    v_xor_b32 v29, 64, v28
    v_xor_b32 v30, 128, v28
    s_barrier
    """)
    stamp(6)
    if stop <= 1:
        k("s_branch L_fin")
    k(f"""
    s_cmp_ge_u32 s{sWAVE}, 4
    s_cbranch_scc1 L_p2_nodma
    s_mul_i32 s{sT0}, s{sODD}, 3
    s_add_u32 s{sT0}, s{sT0}, s{sB0}
    s_lshl_b32 s{sT0}, s{sT0}, 15
    s_add_u32 s{sT1}, s{sB0}, 2
    s_lshl_b32 s{sT1}, s{sT1}, 15
    s_lshl_b32 s{sT2}, s{sRB}, 12          ; 256RB*16
    s_lshl_b32 s{sT3}, s{sWAVE}, 10
    s_add_u32 s{sT2}, s{sT2}, s{sT3}
    s_add_u32 s{sT0}, s{sT0}, s{sT2}
    s_add_u32 s{sT1}, s{sT1}, s{sT2}
    """)
    def dma(ldsbase, vreg, sbase, add):
        k(f"s_add_u32 m0, s{sT3}, {ldsbase}")
        k(f"s_add_u32 s{sT5}, s{sbase}, {add}")
        k(f"buffer_load_dwordx4 v{vreg}, s[{sWS}:{sWS+3}], s{sT5} offen sc1 lds")
    TY = 80 * 32768
    vl = [28, 29, 30]
    for p in range(3):
        sb, add = (sT0, p * 32768) if p < 2 else (sT1, 0)
        dma(LDS_Q + p * 4096, 28, sb, add)
    for p in range(3):
        sb, add = (sT0, p * 32768) if p < 2 else (sT1, 0)
        dma(LDS_K + p * 8192 + 4096, 28, sb, add + TY)
    for p in range(3):
        sb, add = (sT0, p * 32768) if p < 2 else (sT1, 0)
        dma(LDS_V + p * 8192 + 4096, vl[p], sb, add + 2 * TY)
    k(f"""
    s_cmp_eq_u32 s{sRB}, 0
    s_cbranch_scc1 L_p2_nolow
    """)
    for p in range(3):
        sb, add = (sT0, p * 32768) if p < 2 else (sT1, 0)
        dma(LDS_K + p * 8192, 28, sb, add + TY - 4096)
    for p in range(3):
        sb, add = (sT0, p * 32768) if p < 2 else (sT1, 0)
        dma(LDS_V + p * 8192, vl[p], sb, add + 2 * TY - 4096)
    k("L_p2_nolow:")
    k(f"""
    v_mov_b32 v24, 0x3f80
    v_mov_b32 v25, 0
    s_xor_b32 s{sT5}, s{sODD}, 1
    s_lshl_b32 s{sT5}, s{sT5}, 3
    s_add_u32 s{sT5}, s{sT5}, s{sT3}
    v_add_u32 v26, s{sT5}, v28
    v_add_u32 v26, {LDS_K+16384}, v26
    s_waitcnt vmcnt(0)
    ds_write_b64 v26, v[24:25]
    ds_write_b64 v26, v[24:25] offset:4096
    ds_write_b64 v26, v[24:25] offset:24576
    ds_write_b64 v26, v[24:25] offset:{24576+4096}
    s_waitcnt lgkmcnt(0)
    L_p2_nodma:
    s_barrier
    """)
    stamp(7)

    def LK(kk, buf):
        off = (8 - kk) * 512
        f = KF[buf]
        k(f"ds_read_b128 v[{f}:{f+3}], v{vKA1} offset:{off}")
        k(f"ds_read_b64 v[{f+4}:{f+5}], v{vKA2} offset:{off}")
    def LV(kk, buf):
        off = (8 - kk) * 512
        f = VF[buf]
        for u in range(2):
            for t in range(2):
                k(f"ds_read_b64_tr_b16 v[{f+4*u+2*t}:{f+4*u+2*t+1}], v{vVA[t]} offset:{off + u*256}")
    def QK(buf, sbuf, c):
        f = KF[buf]; s = S[sbuf]
        cs = "0" if c is None else f"v[{c}:{c+15}]"
        k(f"v_mfma_f32_32x32x16_bf16 v[{s}:{s+15}], v[{f}:{f+3}], v[{vQ1}:{vQ1+3}], {cs}")
        k(f"v_mfma_f32_32x32x8_bf16 v[{s}:{s+15}], v[{f+4}:{f+5}], v[{vQ2}:{vQ2+1}], v[{s}:{s+15}]")
    def EXP(sbuf, lo, hi):
        s = S[sbuf]
        for i in range(lo, hi): k(f"v_exp_f32 v{s+i}, v{s+i}")
    def CVT(sbuf, lo, hi):
        s = S[sbuf]
        for i in range(lo, hi): k(f"v_cvt_pk_bf16_f32 v{P+i}, v{s+2*i}, v{s+2*i+1}")
    def PV(buf, u):
        f = VF[buf] + 4 * u
        k(f"v_mfma_f32_32x32x16_bf16 v[{OA}:{OA+15}], v[{f}:{f+3}], v[{P+4*u}:{P+4*u+3}], v[{OA}:{OA+15}]")

    k(f"ds_read_b128 v[{vQ1}:{vQ1+3}], v22")
    k(f"ds_read_b64 v[{vQ2}:{vQ2+1}], v23")
    LK(0, 0); LK(1, 1); LV(0, 0)
    k(f"""
    s_waitcnt lgkmcnt(8)
    v_cndmask_b32 v{vQ2}, v{vQ2}, 0, s[{sUP}:{sUP+1}]
    v_cndmask_b32 v{vQ2+1}, v{vQ2+1}, 0, s[{sUP}:{sUP+1}]
    s_waitcnt lgkmcnt(6)
    s_nop 0
    """)
    QK(0, 0, CD)
    LK(2, 0)
    s = S[0]
    k("s_nop 9")
    k(f"v_max3_f32 v24, v{s}, v{s+1}, v{s+2}")
    k(f"v_max3_f32 v25, v{s+3}, v{s+4}, v{s+5}")
    k(f"v_max3_f32 v24, v24, v{s+6}, v{s+7}")
    k(f"v_max3_f32 v25, v25, v{s+8}, v{s+9}")
    k(f"v_max3_f32 v24, v24, v{s+10}, v{s+11}")
    k(f"v_max3_f32 v25, v25, v{s+12}, v{s+13}")
    k(f"v_max3_f32 v24, v24, v{s+14}, v{s+15}")
    k(f"""
    v_max_f32 v24, v24, v25
    v_mov_b32 v25, v24
    s_nop 1
    v_permlane32_swap_b32 v24, v25
    v_max_f32 v24, v24, v25
    v_and_b32 v24, 0xffff0000, v24
    v_lshrrev_b32 v25, 16, v24
    v_xor_b32 v25, 0x8000, v25
    v_cndmask_b32 v{vQ2}, v{vQ2}, v25, s[{sUP}:{sUP+1}]
    """)
    for i in range(16): k(f"v_sub_f32 v{s+i}, v{s+i}, v24")
    for kk in range(9):
        cur = kk & 1; nxt = cur ^ 1
        if kk < 8:
            after = 4 + (2 if kk + 2 <= 8 else 0)
            if kk == 0: after = 4 + 2
            k(f"s_waitcnt lgkmcnt({after})")
            QK(nxt, nxt, CF if kk + 1 == 8 else None)
        EXP(cur, 0, 8)
        CVT(cur, 0, 4)
        EXP(cur, 8, 12)
        k(f"s_waitcnt lgkmcnt({2 if kk + 2 <= 8 else 0})")
        PV(cur, 0)
        EXP(cur, 12, 16)
        k("s_nop 0")
        CVT(cur, 4, 8)
        if kk < 8: LV(kk + 1, nxt)
        else: k("s_nop 1")
        PV(cur, 1)
        if kk + 3 <= 8: LK(kk + 3, nxt)
        if kk < 8:
            k(f"s_cmp_eq_u32 s{sNT}, {kk+1}")
            k("s_cbranch_scc1 L_p2_done")
    k("L_p2_done:")
    k(f"""
    s_nop 11
    v_mov_b32 v24, v{OA+8}
    v_mov_b32 v25, v{OA+8}
    s_nop 1
    v_permlane32_swap_b32 v24, v25
    v_mov_b32 v26, {hex(f2u(2.0**60))}
    v_mov_b32 v27, {hex(f2u(2.0**-60))}
    v_cmp_nlt_f32 vcc, v25, v26
    v_cmp_ngt_f32 s[{sT0}:{sT0+1}], v25, v27
    s_or_b64 vcc, vcc, s[{sT0}:{sT0+1}]
    s_cbranch_vccnz L_slow
    L_p2_norm:
    v_rcp_f32 v25, v25
    s_nop 0
    """)
    for i in range(12): k(f"v_mul_f32 v{OA+i}, v{OA+i}, v25")
    k(f"""
    v_cvt_pk_bf16_f32 v{P}, v{OA}, v{OA+1}
    v_cvt_pk_bf16_f32 v{P+1}, v{OA+2}, v{OA+3}
    v_cvt_pk_bf16_f32 v{P+2}, v{OA+4}, v{OA+5}
    v_cvt_pk_bf16_f32 v{P+3}, v{OA+6}, v{OA+7}
    v_cvt_pk_bf16_f32 v{P+4}, v{OA+8}, v{OA+9}
    v_cvt_pk_bf16_f32 v{P+5}, v{OA+10}, v{OA+11}
    v_permlane32_swap_b32 v{P}, v{P+2}
    v_permlane32_swap_b32 v{P+1}, v{P+3}
    buffer_store_dwordx4 v[{P}:{P+3}], v{vOA}, s[{sWS}:{sWS+3}], 0 offen sc1
    s_mov_b32 exec_lo, -1
    s_mov_b32 exec_hi, 0
    buffer_store_dwordx2 v[{P+4}:{P+5}], v{vOH}, s[{sWS}:{sWS+3}], 0 offen sc1
    s_mov_b64 exec, -1
    """)
    stamp(8)
    k(f"""
    s_waitcnt vmcnt(0) lgkmcnt(0)
    s_barrier
    """)
    stamp(9)
    if stop <= 2:
        k("s_branch L_fin")
    k(f"""
    s_cmp_gt_u32 s{sWAVE}, 4
    s_cbranch_scc1 L_fin
    s_cmp_lt_u32 s{sWAVE}, 4
    s_cbranch_scc1 L_p3
    s_lshl_b32 s{sT0}, s{sRB}, 5
    s_add_u32 s{sT0}, s{sT0}, s{sH}
    s_lshl_b32 s{sT0}, s{sT0}, 7
    s_add_u32 s{sT0}, s{sT0}, {FL2_OFF}
    v_mov_b32 v9, 0
    v_mov_b32 v11, s{sTAG}
    s_lshl_b32 s{sT1}, s{sXCD}, 12
    s_add_u32 s{sT1}, s{sT1}, {FL2_OFF}
    v_lshlrev_b32 v7, 7, v0
    v_add_u32 v7, s{sT1}, v7
    s_mov_b64 exec, 1
    buffer_store_dword v11, v9, s[{sWS}:{sWS+3}], s{sT0} offen sc1
    s_mov_b32 exec_lo, -1
    s_mov_b32 exec_hi, 0
    """)
    poll("L_poll2", 7, None, sWS)
    k("s_mov_b64 exec, -1")
    stamp(10)
    k("s_barrier          ; BF")
    k("s_branch L_fin")

    NPRE = 7
    A3 = 100
    B3 = 16
    C3 = 236 + 0
    A3 = 96
    C3 = 236
    k("L_p3:")
    srd(sOUT, 10, 2621440)
    k(f"""
    v_lshrrev_b32 v2, 2, v0            ; 4g + r
    v_mul_u32_u24 v2, 160, v2
    v_and_b32 v3, 3, v0
    v_lshl_add_u32 v2, v3, 3, v2       ; steps 0..9
    v_add_u32 v3, {10*5120}, v2        ; steps 10..19
    v_lshrrev_b32 v4, 4, v0
    v_and_b32 v5, 15, v0
    v_lshlrev_b32 v6, 15, v4
    v_lshl_add_u32 v6, v5, 4, v6
    s_lshl_b32 s{sT0}, s{sXCD}, 8
    s_and_b32 s{sT1}, s{sJ}, 3
    s_lshl_b32 s{sT1}, s{sT1}, 6
    s_add_u32 s{sT0}, s{sT0}, s{sT1}
    s_lshl_b32 s{sT1}, s{sWAVE}, 4
    s_add_u32 s{sT0}, s{sT0}, s{sT1}     ; row0
    s_lshl_b32 s{sT1}, s{sT0}, 4
    s_add_u32 s{sT1}, s{sT1}, {O_OFF}
    v_add_u32 v7, s{sT0}, v5
    v_mul_u32_u24 v7, 1280, v7
    s_mul_i32 s{sT2}, s{sRB}, 160
    v_add_u32 v7, s{sT2}, v7
    v_lshl_add_u32 v8, v4, 3, v7
    v_and_b32 v9, 1, v4
    v_lshl_add_u32 v7, v9, 5, v7
    v_lshrrev_b32 v9, 1, v4
    v_lshl_add_u32 v7, v9, 4, v7
    """)
    def LA(ks):
        base = A3 + (ks % NPRE) * 20
        va = 2 if ks < 10 else 3
        o = (ks % 10) * 5120
        for tl in range(5):
            for t in range(2):
                a = base + tl * 4 + 2 * t
                k(f"ds_read_b64_tr_b16 v[{a}:{a+1}], v{va} offset:{o + t*16*160 + tl*32}")
    for ks in range(NPRE):
        LA(ks)
        k("s_waitcnt lgkmcnt(5)")
    for i in range(20): k(f"v_mov_b32 v{C3+i}, 0")
    k("s_barrier          ; BF")
    stamp(11)
    for ks in range(20):
        k(f"buffer_load_dwordx4 v[{B3+4*ks}:{B3+4*ks+3}], v6, s[{sWS}:{sWS+3}], s{sT1} offen sc1")
        if ks < 19: k(f"s_add_u32 s{sT1}, s{sT1}, {4*32768}")
    for ks in range(20):
        lg = 5 if (ks >= 1 and ks - 1 + NPRE < 20) else 0
        k(f"s_waitcnt vmcnt({19-ks}) lgkmcnt({lg})")
        base = A3 + (ks % NPRE) * 20
        for tl in range(5):
            a = base + tl * 4; c = C3 + tl * 4; b = B3 + 4 * ks
            k(f"v_mfma_f32_16x16x32_bf16 v[{c}:{c+3}], v[{a}:{a+3}], v[{b}:{b+3}], v[{c}:{c+3}]")
        if ks + NPRE < 20: LA(ks + NPRE)
    stamp(12)
    k("s_nop 7")
    for tl in range(5):
        c = C3 + tl * 4
        q = 16 + (tl >> 1) * 4 + (tl & 1) * 2
        k(f"v_cvt_pk_bf16_f32 v{q}, v{c}, v{c+1}")
        k(f"v_cvt_pk_bf16_f32 v{q+1}, v{c+2}, v{c+3}")
    k(f"""
    v_permlane16_swap_b32 v16, v18
    v_permlane16_swap_b32 v17, v19
    v_permlane16_swap_b32 v20, v22
    v_permlane16_swap_b32 v21, v23
    buffer_store_dwordx4 v[16:19], v7, s[{sOUT}:{sOUT+3}], 0 offen
    buffer_store_dwordx4 v[20:23], v7, s[{sOUT}:{sOUT+3}], 0 offen offset:64
    buffer_store_dwordx2 v[24:25], v8, s[{sOUT}:{sOUT+3}], 0 offen offset:128
    """)
    k("L_fin:")
    if stamps:
        k(f"""
        s_waitcnt vmcnt(0)
        s_memrealtime s[{sST+26}:{sST+27}]
        s_and_b32 s{sT0}, s{sWAVE}, 3
        s_cmp_lg_u32 s{sT0}, 0
        s_cbranch_scc1 L_end
        s_waitcnt lgkmcnt(0)
        s_lshl_b32 s{sT0}, s2, 1
        s_lshr_b32 s{sT1}, s{sWAVE}, 2
        s_add_u32 s{sT0}, s{sT0}, s{sT1}
        s_lshl_b32 s{sT0}, s{sT0}, 6
        s_add_u32 s{sT0}, s{sT0}, {STAMP_OFF}
        v_mov_b32 v1, 0
        """)
        for i in range(16): k(f"v_mov_b32 v{4+i}, s{sST+2*i}")
        for i in range(4): k(f"buffer_store_dwordx4 v[{4+4*i}:{7+4*i}], v1, s[{sWS}:{sWS+3}], s{sT0} offen offset:{16*i}")
    k("L_end:")
    k("s_endpgm")

    k("L_slow:")
    s = S[0]
    k(f"""
    v_cndmask_b32 v{vQ2}, v{vQ2}, 0, s[{sUP}:{sUP+1}]
    v_mov_b32 v24, 0xff800000
    s_mov_b32 s{sT2}, 0               ; pass
    """)
    for i in range(16): k(f"v_mov_b32 v{OA+i}, 0")
    k(f"""
    L_slow_pass:
    s_mov_b32 s{sCNT}, 0
    L_slow_tile:
    s_sub_u32 s{sT3}, 8, s{sCNT}
    s_lshl_b32 s{sT3}, s{sT3}, 9
    v_add_u32 v26, s{sT3}, v{vKA1}
    v_add_u32 v27, s{sT3}, v{vKA2}
    v_add_u32 v28, s{sT3}, v{vVA[0]}
    v_add_u32 v29, s{sT3}, v{vVA[1]}
    ds_read_b128 v[{KF[0]}:{KF[0]+3}], v26
    ds_read_b64 v[{KF[0]+4}:{KF[0]+5}], v27
    ds_read_b64_tr_b16 v[{VF[0]}:{VF[0]+1}], v28
    ds_read_b64_tr_b16 v[{VF[0]+2}:{VF[0]+3}], v29
    ds_read_b64_tr_b16 v[{VF[0]+4}:{VF[0]+5}], v28 offset:256
    ds_read_b64_tr_b16 v[{VF[0]+6}:{VF[0]+7}], v29 offset:256
    """)
    for i in range(16): k(f"v_mov_b32 v{s+i}, 0")
    k(f"""
    s_cmp_lg_u32 s{sCNT}, 0
    s_cbranch_scc1 L_slow_nd
    """)
    for i in range(16): k(f"v_mov_b32 v{s+i}, v{CD+i}")
    k(f"""
    L_slow_nd:
    s_cmp_lg_u32 s{sCNT}, 8
    s_cbranch_scc1 L_slow_nf
    """)
    for i in range(16): k(f"v_mov_b32 v{s+i}, v{CF+i}")
    k(f"""
    L_slow_nf:
    s_waitcnt lgkmcnt(0)
    s_nop 1
    """)
    QK(0, 0, s)
    k(f"""
    s_nop 15
    s_cmp_lg_u32 s{sT2}, 0
    s_cbranch_scc1 L_slow_p2
    """)
    for i in range(16): k(f"v_max_f32 v24, v24, v{s+i}")
    k("s_branch L_slow_next")
    k("L_slow_p2:")
    for i in range(16): k(f"v_sub_f32 v{s+i}, v{s+i}, v24")
    EXP(0, 0, 16)
    k("s_nop 0")
    CVT(0, 0, 8)
    k("s_nop 1")
    PV(0, 0); PV(0, 1)
    k(f"""
    s_nop 15
    L_slow_next:
    s_add_u32 s{sCNT}, s{sCNT}, 1
    s_cmp_lt_u32 s{sCNT}, s{sNT}
    s_cbranch_scc1 L_slow_tile
    s_cmp_lg_u32 s{sT2}, 0
    s_cbranch_scc1 L_slow_done
    v_mov_b32 v25, v24
    s_nop 1
    v_permlane32_swap_b32 v24, v25
    v_max_f32 v24, v24, v25
    s_mov_b32 s{sT2}, 1
    s_branch L_slow_pass
    L_slow_done:
    v_mov_b32 v24, v{OA+8}
    v_mov_b32 v25, v{OA+8}
    s_nop 1
    v_permlane32_swap_b32 v24, v25
    s_branch L_p2_norm
    """)
    return emit([k], single=True)

if __name__ == "__main__":
    out = sys.argv[1]
    opts = {}
    for a in sys.argv[2:]:
        kx, v = a.split("=")
        opts[kx] = int(v)
    open(out, "w").write(gen(opts))
```

```python
import sys, math, struct
from asmlib import *

def f2u(x): return struct.unpack("<I", struct.pack("<f", x))[0]

QKV_OFF = 0
O_OFF   = 8 << 20
FL1_OFF = 12 << 20
FL2_OFF = FL1_OFF + 256 * 128
TAG_OFF = FL2_OFF + 256 * 128
STAMP_OFF = 13 << 20
WS_SIZE = 14 << 20
SLOT = 32768
LDS_WO = 0
LDS_K = 102400
LDS_V = LDS_K + 24576
LDS_Q = LDS_V + 24576
LDS_TOTAL = 163840
QSCALE = (20 ** -0.5) * math.log2(math.e)
SPIN_MAX = 400000

def gen(opts):
    NSLOT = opts.get("nslot", 5)
    stamps = opts.get("stamps", False)
    stop = opts.get("stop", 99)
    k = K("standalone__sliding_block__prompt_kernel", (256, 1, 1), (512, 1, 1), LDS_TOTAL, vgpr=256, sgpr=102)

    sX, sW, sWO, sOUT, sWS = 16, 20, 24, 28, 32
    sWAVE, sXCD, sJ, sR1, sCT = 36, 37, 38, 39, 40
    sH, sRB, sODD, sTAG = 41, 42, 43, 44
    sT0, sT1, sT2, sT3, sT4, sT5 = 46, 47, 48, 49, 50, 51
    sCNT, sSLOT = 52, 53
    sUP = 54
    sEX = 56
    sNT = 58
    sB0 = 59
    sST = 64
    nstamp = [0]
    def stamp(idx):
        if stamps:
            k(f"s_memrealtime s[{sST+2*idx}:{sST+2*idx+1}]")
    def srd(d, lo, size):
        k(f"s_mov_b32 s{d}, s{lo}\ns_mov_b32 s{d+1}, s{lo+1}\ns_mov_b32 s{d+2}, {size}\ns_mov_b32 s{d+3}, 0x20000")

    if stamps:
        for i in range(16): k(f"s_mov_b64 s[{sST+2*i}:{sST+2*i+1}], 0")
    stamp(0)
    k(f"""
    s_cmp_ge_u32 s2, 256
    s_cbranch_scc1 L_end
    s_load_dwordx8 s[4:11], s[0:1], 0
    s_load_dwordx4 s[12:15], s[0:1], 32
    v_lshrrev_b32 v1, 6, v0
    v_and_b32 v0, 63, v0
    v_readfirstlane_b32 s{sWAVE}, v1
    s_and_b32 s{sXCD}, s2, 7
    s_lshr_b32 s{sJ}, s2, 3
    s_and_b32 s{sT0}, s{sXCD}, 3
    s_lshl_b32 s{sT0}, s{sT0}, 2
    s_and_b32 s{sT1}, s{sJ}, 3
    s_add_u32 s{sR1}, s{sT0}, s{sT1}
    s_lshr_b32 s{sT0}, s{sXCD}, 2
    s_lshl_b32 s{sT0}, s{sT0}, 3
    s_lshr_b32 s{sRB}, s{sJ}, 2
    s_add_u32 s{sCT}, s{sT0}, s{sRB}
    s_lshl_b32 s{sH}, s{sXCD}, 2
    s_add_u32 s{sH}, s{sH}, s{sT1}
    s_and_b32 s{sODD}, s{sH}, 1
    s_mov_b32 s{sUP}, 0
    s_mov_b32 s{sUP+1}, -1
    s_cmp_ge_u32 s{sWAVE}, 4
    s_cbranch_scc1 L_loader
    """)
    ACC = 0 + 64
    AF = [[128, 132], [144, 148]]
    BF = [[136, 140], [152, 156]]
    vXB = [2, 3, 4, 5]
    vWB = [6, 7]
    vXA = [8, 9, 10, 11]
    vWA = [12, 13]
    k(f"""
    s_waitcnt lgkmcnt(0)
    """)
    srd(sWS, 14, WS_SIZE)
    k(f"""
    s_cmp_ge_u32 s{sCT}, 15
    s_cbranch_scc1 L_p1_done_c
    s_and_b32 s{sT0}, s{sWAVE}, 1
    s_lshr_b32 s{sT1}, s{sWAVE}, 1
    v_and_b32 v14, 31, v0
    v_lshrrev_b32 v15, 5, v0          ; h
    v_bfe_u32 v16, v0, 1, 3
    v_xor_b32 v16, v16, v15           ; y
    s_lshl_b32 s{sT2}, s{sT1}, 13     ; wm*64*128
    v_lshlrev_b32 v14, 7, v14
    v_add_u32 v14, s{sT2}, v14        ; row*128
    """)
    for s in range(4):
        k(f"v_xor_b32 v17, {2*s}, v16\nv_lshl_add_u32 v{vXB[s]}, v17, 4, v14")
    k(f"""
    v_bfe_u32 v14, v0, 2, 2           ; r
    v_lshl_add_u32 v17, v15, 3, v14   ; 8h + r
    v_lshlrev_b32 v17, 8, v17         ; *256
    v_add_u32 v17, 16384, v17
    v_bfe_u32 v18, v0, 4, 1           ; g&1
    v_bfe_u32 v19, v0, 1, 1           ; c>>1
    v_lshl_add_u32 v18, v18, 1, v19
    v_and_b32 v19, 1, v0
    v_lshl_add_u32 v17, v19, 3, v17   ; + (c&1)*8
    v_lshl_add_u32 v17, v18, 4, v17   ; + low*16
    s_lshl_b32 s{sT2}, s{sT0}, 1      ; 2wn
    """)
    for tn in range(2):
        k(f"""
        s_add_u32 s{sT3}, s{sT2}, {tn}
        v_xor_b32 v18, s{sT3}, v14
        v_lshl_add_u32 v{vWB[tn]}, v18, 6, v17
        """)
    for i in range(64): k(f"v_mov_b32 v{ACC+i}, 0")
    for s in range(4): k(f"v_mov_b32 v{vXA[s]}, v{vXB[s]}")
    for t in range(2): k(f"v_mov_b32 v{vWA[t]}, v{vWB[t]}")

    def reads(step, buf):
        for tn in range(2):
            for t in range(2):
                a = AF[buf][tn] + 2 * t
                k(f"ds_read_b64_tr_b16 v[{a}:{a+1}], v{vWA[tn]} offset:{(step*16+4*t)*256}")
        for tm in range(2):
            b = BF[buf][tm]
            k(f"ds_read_b128 v[{b}:{b+3}], v{vXA[step]} offset:{tm*4096}")
    def mfmas(buf):
        for tn in range(2):
            for tm in range(2):
                c = ACC + (tn * 2 + tm) * 16
                a = AF[buf][tn]; b = BF[buf][tm]
                k(f"v_mfma_f32_32x32x16_bf16 v[{c}:{c+15}], v[{a}:{a+3}], v[{b}:{b+3}], v[{c}:{c+15}]")
    k(f"""
    s_mov_b32 s{sCNT}, 0
    s_mov_b32 s{sSLOT}, 0
    s_barrier
    """)
    stamp(1)
    reads(0, 0)
    k("L_p1_loop:")
    reads(1, 1); k("s_waitcnt lgkmcnt(6)"); mfmas(0)
    reads(2, 0); k("s_waitcnt lgkmcnt(6)"); mfmas(1)
    reads(3, 1); k("s_waitcnt lgkmcnt(6)"); mfmas(0)
    k(f"""
    s_add_u32 s{sCNT}, s{sCNT}, 1
    s_add_u32 s{sSLOT}, s{sSLOT}, {SLOT}
    s_cmp_ge_u32 s{sSLOT}, {NSLOT*SLOT}
    s_cselect_b32 s{sSLOT}, 0, s{sSLOT}
    s_cmp_ge_u32 s{sCNT}, 10
    s_waitcnt lgkmcnt(0)
    s_cbranch_scc1 L_p1_last
    """)
    for s in range(4): k(f"v_add_u32 v{vXA[s]}, s{sSLOT}, v{vXB[s]}")
    for t in range(2): k(f"v_add_u32 v{vWA[t]}, s{sSLOT}, v{vWB[t]}")
    k("s_barrier")
    reads(0, 0)
    mfmas(1)
    k("s_branch L_p1_loop")
    k("L_p1_last:")
    mfmas(1)
    stamp(2)
    k(f"""
    s_and_b32 s{sT0}, s{sWAVE}, 1
    s_lshr_b32 s{sT1}, s{sWAVE}, 1
    s_lshl_b32 s{sT2}, s{sCT}, 4
    s_lshl_b32 s{sT0}, s{sT0}, 3
    s_add_u32 s{sT2}, s{sT2}, s{sT0}
    s_lshl_b32 s{sT2}, s{sT2}, 15           ; *32768
    s_lshl_b32 s{sT3}, s{sR1}, 11           ; r*128*16
    s_lshl_b32 s{sT1}, s{sT1}, 10           ; wm*64*16
    s_add_u32 s{sT2}, s{sT2}, s{sT3}
    s_add_u32 s{sT2}, s{sT2}, s{sT1}
    v_lshlrev_b32 v14, 4, v0
    s_mov_b32 s{sT4}, {hex(f2u(QSCALE))}
    s_mov_b32 s{sT5}, s{sT4}
    s_nop 7
    s_cmp_ge_u32 s{sCT}, 5
    s_cbranch_scc1 L_p1_noscale
    """)
    for i in range(32):
        k(f"v_pk_mul_f32 v[{ACC+2*i}:{ACC+2*i+1}], v[{ACC+2*i}:{ACC+2*i+1}], s[{sT4}:{sT5}]")
    k("L_p1_noscale:")
    for b in range(8):
        tn, bi = b >> 2, b & 3
        q = 128 + 4 * b
        c0 = ACC + (tn * 2 + 0) * 16 + 4 * bi
        c1 = ACC + (tn * 2 + 1) * 16 + 4 * bi
        k(f"""
        v_cvt_pk_bf16_f32 v{q}, v{c0}, v{c0+1}
        v_cvt_pk_bf16_f32 v{q+1}, v{c0+2}, v{c0+3}
        v_cvt_pk_bf16_f32 v{q+2}, v{c1}, v{c1+1}
        v_cvt_pk_bf16_f32 v{q+3}, v{c1+2}, v{c1+3}
        s_nop 1
        v_permlane32_swap_b32 v{q}, v{q+2}
        v_permlane32_swap_b32 v{q+1}, v{q+3}
        buffer_store_dwordx4 v[{q}:{q+3}], v14, s[{sWS}:{sWS+3}], s{sT2} offen sc1
        s_add_u32 s{sT2}, s{sT2}, 32768
        """)
    k("s_barrier")
    k("s_waitcnt vmcnt(0)")
    stamp(3)
    k("s_barrier")
    k("L_p1_done_c:")
    k("s_branch L_p2_prep")

    k("L_loader:")
    k(f"""
    s_sub_u32 s{sT0}, s{sWAVE}, 4
    v_lshrrev_b32 v2, 3, v0
    v_mul_u32_u24 v2, 1280, v2
    s_and_b32 s{sT1}, s{sT0}, 1
    s_lshl_b32 s{sT1}, s{sT1}, 2
    v_lshrrev_b32 v3, 4, v0
    v_add_u32 v4, s{sT1}, v3
    v_and_b32 v5, 7, v0
    v_xor_b32 v4, v4, v5
    v_lshl_add_u32 v2, v4, 4, v2
    s_mul_i32 s{sT2}, s{sR1}, {128*1280}
    s_mul_i32 s{sT3}, s{sT0}, {8*1280}
    s_add_u32 s{sT2}, s{sT2}, s{sT3}
    v_add_u32 v2, s{sT2}, v2             ; v2 = x voffset
    v_mul_u32_u24 v4, 3840, v3
    v_lshlrev_b32 v5, 2, v3
    v_and_b32 v6, 15, v0
    v_xor_b32 v5, v5, v6
    v_lshl_add_u32 v3, v5, 4, v4
    s_lshl_b32 s{sT2}, s{sCT}, 8
    s_mul_i32 s{sT3}, s{sT0}, {4*3840}
    s_add_u32 s{sT2}, s{sT2}, s{sT3}
    v_add_u32 v3, s{sT2}, v3             ; v3 = W voffset
    s_lshl_b32 s{sT4}, s{sT0}, 10        ; lw*1024
    s_waitcnt lgkmcnt(0)
    """)
    srd(sX, 4, 2621440); srd(sW, 6, 2457600); srd(sWS, 14, WS_SIZE); srd(sWO, 8, 819200)
    k(f"""
    s_cmp_ge_u32 s{sCT}, 15
    s_cbranch_scc1 L_p1_done_l
    """)
    def issue(c):
        slot = (c % NSLOT) * SLOT
        for t in range(4):
            k(f"s_add_u32 m0, s{sT4}, {slot + t*4096}")
            k(f"s_mov_b32 s{sT5}, {c*128 + t*32*1280}")
            k(f"buffer_load_dwordx4 v2, s[{sX}:{sX+3}], s{sT5} offen lds")
        for t in range(4):
            k(f"s_add_u32 m0, s{sT4}, {slot + 16384 + t*4096}")
            k(f"s_mov_b32 s{sT5}, {c*64*3840 + t*16*3840}")
            k(f"buffer_load_dwordx4 v3, s[{sW}:{sW+3}], s{sT5} offen lds")
    issued = 0
    for c in range(min(NSLOT, 10)): issue(c); issued += 1
    for c in range(10):
        k(f"s_waitcnt vmcnt({(issued - c - 1) * 8})")
        k(f"s_barrier      ; B_{c}")
        if c >= 1 and issued < 10:
            issue(issued); issued += 1
    k("s_barrier          ; BA")
    k("L_p1_done_l:")
    k(f"""
    s_cmp_eq_u32 s{sWAVE}, 4
    s_cbranch_scc1 L_sync1
    """)
    for i in range(5):
        k(f"""
        v_add_u32 v10, {64*i}, v0
        v_mul_u32_u24 v11, 6554, v10
        v_lshrrev_b32 v11, 16, v11        ; rho
        v_mul_u32_u24 v12, 10, v11
        v_sub_u32 v12, v10, v12           ; piece
        v_and_b32 v13, 3, v11             ; r
        v_bfe_u32 v14, v11, 2, 2          ; g
        v_lshl_add_u32 v13, v14, 3, v13
        v_lshrrev_b32 v14, 4, v11         ; t
        v_lshl_add_u32 v13, v14, 2, v13   ; k
        v_mul_u32_u24 v13, 1280, v13
        v_lshl_add_u32 v{4+i}, v12, 4, v13
        """)
    k(f"""
    s_sub_u32 s{sT0}, s{sWAVE}, 5
    s_mul_i32 s{sT1}, s{sT0}, 7
    s_add_u32 s{sT2}, s{sT1}, 7
    s_min_u32 s{sT2}, s{sT2}, 20
    s_mul_i32 s{sT3}, s{sRB}, 160
    s_mul_i32 s{sT5}, s{sT1}, {32*1280}
    s_add_u32 s{sT3}, s{sT3}, s{sT5}        ; soffset
    s_mul_i32 s{sT4}, s{sT1}, 5120
    L_wo_loop:
    """)
    for i in range(5):
        k(f"s_add_u32 m0, s{sT4}, {LDS_WO + i*1024}")
        k("s_nop 0")
        k(f"buffer_load_dwordx4 v{4+i}, s[{sWO}:{sWO+3}], s{sT3} offen lds")
    k(f"""
    s_add_u32 s{sT4}, s{sT4}, 5120
    s_add_u32 s{sT3}, s{sT3}, {32*1280}
    s_add_u32 s{sT1}, s{sT1}, 1
    s_cmp_lt_u32 s{sT1}, s{sT2}
    s_cbranch_scc1 L_wo_loop
    s_cmp_ge_u32 s{sCT}, 15
    s_cbranch_scc1 L_p2_prep
    s_barrier          ; BB
    s_branch L_p2_prep
    """)
    def poll(lab, vaddr, cond_ne_reg, srdreg, is_tag=False):
        k(f"""
        s_mov_b32 s{sCNT}, 0
        {lab}:
        """)
        if is_tag:
            k(f"global_load_dword v10, v{vaddr}, s[12:13] sc1")
        else:
            k(f"buffer_load_dword v10, v{vaddr}, s[{srdreg}:{srdreg+3}], 0 offen sc1")
        k(f"""
        s_add_u32 s{sCNT}, s{sCNT}, 1
        s_cmp_ge_u32 s{sCNT}, {SPIN_MAX}
        s_waitcnt vmcnt(0)
        s_cbranch_scc1 {lab}_out
        """)
        if is_tag:
            k(f"v_cmp_eq_u32 vcc, 0, v10")
        else:
            k(f"v_cmp_ne_u32 vcc, s{sTAG}, v10")
        k(f"""
        s_cbranch_vccnz {lab}
        {lab}_out:
        """)
    k("L_sync1:")
    k(f"""
    v_mov_b32 v9, 0
    s_cmp_lg_u32 s2, 255
    s_cbranch_scc1 L_notleader
    s_mov_b64 exec, 1
    v_mov_b32 v11, {TAG_OFF}
    buffer_load_dword v10, v11, s[{sWS}:{sWS+3}], 0 offen sc1
    s_waitcnt vmcnt(0)
    v_add_u32 v10, 1, v10
    v_max_u32 v10, 1, v10
    buffer_store_dword v10, v11, s[{sWS}:{sWS+3}], 0 offen sc1
    global_store_dword v9, v10, s[12:13] sc1
    s_mov_b64 exec, -1
    L_notleader:
    """)
    poll("L_polltag", 9, None, None, is_tag=True)
    k(f"""
    v_readfirstlane_b32 s{sTAG}, v10
    v_lshrrev_b32 v2, 3, v0            ; ty
    v_bfe_u32 v3, v0, 1, 2             ; ro
    v_and_b32 v4, 1, v0                ; hi
    s_lshr_b32 s{sT0}, s{sH}, 1
    s_mul_i32 s{sT0}, s{sT0}, 5
    s_lshl_b32 s{sT1}, s{sODD}, 1
    s_add_u32 s{sT0}, s{sT0}, s{sT1}     ; 5m + 2*odd
    v_mul_u32_u24 v5, 80, v2
    v_lshl_add_u32 v5, v4, 1, v5
    v_add_u32 v5, s{sT0}, v5
    v_lshrrev_b32 v5, 4, v5            ; ct
    s_lshl_b32 s{sT1}, s{sRB}, 1
    s_sub_u32 s{sT1}, s{sT1}, 2
    v_add_u32 v6, s{sT1}, v3
    v_mul_i32_i24 v7, 15, v6
    v_add_u32 v7, v7, v5
    v_lshlrev_b32 v7, 7, v7
    v_add_u32 v7, {FL1_OFF}, v7
    v_cmp_gt_u32 vcc, 24, v0
    v_cmp_le_i32 s[{sT2}:{sT2+1}], 0, v6
    s_and_b64 vcc, vcc, s[{sT2}:{sT2+1}]
    v_lshl_add_u32 v8, v2, 2, v3
    v_cmp_le_u32 s[{sT2}:{sT2+1}], 2, v8
    s_and_b64 s[{sEX}:{sEX+1}], vcc, s[{sT2}:{sT2+1}]
    s_cmp_ge_u32 s{sCT}, 15
    s_cbranch_scc1 L_sync1_noflag
    s_barrier          ; BB
    s_mul_i32 s{sT0}, s{sR1}, 15
    s_add_u32 s{sT0}, s{sT0}, s{sCT}
    s_lshl_b32 s{sT0}, s{sT0}, 7
    s_add_u32 s{sT0}, s{sT0}, {FL1_OFF}
    s_mov_b64 exec, 1
    v_mov_b32 v11, s{sTAG}
    buffer_store_dword v11, v9, s[{sWS}:{sWS+3}], s{sT0} offen sc1
    L_sync1_noflag:
    s_mov_b64 exec, s[{sEX}:{sEX+1}]
    """)
    stamp(4)
    poll("L_poll1", 7, None, sWS)
    k("s_mov_b64 exec, -1")
    stamp(5)

    vQ1, vQ2 = 16, 20
    vKA1, vKA2 = 2, 3
    vVA = [4, 5]
    vOA, vOH = 6, 7
    CD, CF = 32, 48
    S = [64, 80]
    P = 96
    KF = [104, 112]
    VF = [120, 128]
    OA = 136
    k("L_p2_prep:")
    BIG = 2.0 ** 100
    k(f"""
    v_and_b32 v10, 31, v0              ; q
    v_lshrrev_b32 v11, 5, v0           ; h
    v_lshlrev_b32 v12, 2, v11
    v_sub_u32 v12, v10, v12            ; t = q - 4h
    v_cvt_f32_i32 v12, v12
    v_mul_f32 v12, {hex(f2u(BIG))}, v12
    """)
    for i in range(16):
        key = 8 * (i >> 2) + (i & 3)
        k(f"v_add_f32 v{CD+i}, {hex(f2u(-key*BIG)) if key else 0}, v12")
        k(f"v_min_f32 v{CD+i}, 0, v{CD+i}")
        k(f"v_sub_f32 v{CF+i}, {hex(f2u((key-1)*BIG)) if key != 1 else 0}, v12")
        k(f"v_min_f32 v{CF+i}, 0, v{CF+i}")
    k(f"""
    s_lshl_b32 s{sT0}, s{sWAVE}, 9        ; w*512
    v_lshlrev_b32 v13, 4, v10
    v_add_u32 v13, s{sT0}, v13            ; (32w+q)*16
    v_lshl_add_u32 v{vKA1}, v11, 13, v13
    v_add_u32 v{vKA1}, {LDS_K}, v{vKA1}
    v_xor_b32 v14, s{sODD}, v11
    v_lshl_add_u32 v{vKA2}, v14, 3, v13
    v_add_u32 v{vKA2}, {LDS_K+16384}, v{vKA2}
    v_lshl_add_u32 v22, v11, 12, v13
    v_add_u32 v22, {LDS_Q}, v22
    s_lshl_b32 s{sT1}, s{sODD}, 3
    s_add_u32 s{sT1}, s{sT1}, {LDS_Q+8192}
    v_add_u32 v23, s{sT1}, v13
    v_bfe_u32 v14, v0, 4, 1              ; g1
    v_bfe_u32 v15, v0, 1, 1              ; c>>1
    v_cmp_eq_u32 vcc, 1, v14
    v_mov_b32 v24, 2
    v_and_b32 v25, 1, v0                 ; c&1
    v_cndmask_b32 v15, v15, v24, vcc     ; p
    v_and_b32 v24, s{sODD}, v14
    v_xor_b32 v25, v25, v24              ; half
    v_bfe_u32 v24, v0, 2, 2              ; r
    v_lshl_add_u32 v24, v11, 2, v24      ; 4h + r
    v_lshlrev_b32 v26, 2, v15            ; p<<2
    v_lshlrev_b32 v27, 13, v15           ; p*8192
    v_lshl_add_u32 v27, v25, 3, v27
    v_add_u32 v27, s{sT0}, v27
    v_add_u32 v27, {LDS_V}, v27
    v_xor_b32 v25, v24, v26
    v_lshl_add_u32 v{vVA[0]}, v25, 4, v27
    v_or_b32 v24, 8, v24
    v_xor_b32 v25, v24, v26
    v_lshl_add_u32 v{vVA[1]}, v25, 4, v27
    s_lshr_b32 s{sT1}, s{sH}, 1
    s_mul_i32 s{sB0}, s{sT1}, 5            ; 5m
    s_mul_i32 s{sT2}, s{sODD}, 3
    s_add_u32 s{sT2}, s{sT2}, s{sB0}       ; blockA
    s_lshl_b32 s{sT3}, s{sRB}, 12          ; 256*RB*16
    s_lshl_b32 s{sT4}, s{sT2}, 15
    s_add_u32 s{sT4}, s{sT4}, s{sT3}
    s_add_u32 s{sT4}, s{sT4}, {O_OFF}
    v_lshl_add_u32 v{vOA}, v11, 15, v13
    v_add_u32 v{vOA}, s{sT4}, v{vOA}
    s_add_u32 s{sT4}, s{sB0}, 2
    s_lshl_b32 s{sT4}, s{sT4}, 15
    s_add_u32 s{sT4}, s{sT4}, s{sT3}
    s_lshl_b32 s{sT5}, s{sODD}, 3
    s_add_u32 s{sT4}, s{sT4}, s{sT5}
    s_add_u32 s{sT4}, s{sT4}, {O_OFF}
    v_add_u32 v{vOH}, s{sT4}, v13
    ; ntiles
    s_add_u32 s{sNT}, s{sWAVE}, 1
    s_cmp_lg_u32 s{sRB}, 0
    s_cselect_b32 s{sNT}, 9, s{sNT}
    """)
    for i in range(16): k(f"v_mov_b32 v{OA+i}, 0")
    k(f"""
    v_lshlrev_b32 v28, 4, v0
    v_xor_b32 v29, 64, v28
    v_xor_b32 v30, 128, v28
    s_barrier
    """)
    stamp(6)
    if stop <= 1:
        k("s_branch L_fin")
    k(f"""
    s_cmp_ge_u32 s{sWAVE}, 4
    s_cbranch_scc1 L_p2_nodma
    s_mul_i32 s{sT0}, s{sODD}, 3
    s_add_u32 s{sT0}, s{sT0}, s{sB0}
    s_lshl_b32 s{sT0}, s{sT0}, 15
    s_add_u32 s{sT1}, s{sB0}, 2
    s_lshl_b32 s{sT1}, s{sT1}, 15
    s_lshl_b32 s{sT2}, s{sRB}, 12          ; 256RB*16
    s_lshl_b32 s{sT3}, s{sWAVE}, 10
    s_add_u32 s{sT2}, s{sT2}, s{sT3}
    s_add_u32 s{sT0}, s{sT0}, s{sT2}
    s_add_u32 s{sT1}, s{sT1}, s{sT2}
    """)
    def dma(ldsbase, vreg, sbase, add):
        k(f"s_add_u32 m0, s{sT3}, {ldsbase}")
        k(f"s_add_u32 s{sT5}, s{sbase}, {add}")
        k(f"buffer_load_dwordx4 v{vreg}, s[{sWS}:{sWS+3}], s{sT5} offen sc1 lds")
    TY = 80 * 32768
    vl = [28, 29, 30]
    for p in range(3):
        sb, add = (sT0, p * 32768) if p < 2 else (sT1, 0)
        dma(LDS_Q + p * 4096, 28, sb, add)
    for p in range(3):
        sb, add = (sT0, p * 32768) if p < 2 else (sT1, 0)
        dma(LDS_K + p * 8192 + 4096, 28, sb, add + TY)
    for p in range(3):
        sb, add = (sT0, p * 32768) if p < 2 else (sT1, 0)
        dma(LDS_V + p * 8192 + 4096, vl[p], sb, add + 2 * TY)
    k(f"""
    s_cmp_eq_u32 s{sRB}, 0
    s_cbranch_scc1 L_p2_nolow
    """)
    for p in range(3):
        sb, add = (sT0, p * 32768) if p < 2 else (sT1, 0)
        dma(LDS_K + p * 8192, 28, sb, add + TY - 4096)
    for p in range(3):
        sb, add = (sT0, p * 32768) if p < 2 else (sT1, 0)
        dma(LDS_V + p * 8192, vl[p], sb, add + 2 * TY - 4096)
    k("L_p2_nolow:")
    k(f"""
    v_mov_b32 v24, 0x3f80
    v_mov_b32 v25, 0
    s_xor_b32 s{sT5}, s{sODD}, 1
    s_lshl_b32 s{sT5}, s{sT5}, 3
    s_add_u32 s{sT5}, s{sT5}, s{sT3}
    v_add_u32 v26, s{sT5}, v28
    v_add_u32 v26, {LDS_K+16384}, v26
    s_waitcnt vmcnt(0)
    ds_write_b64 v26, v[24:25]
    ds_write_b64 v26, v[24:25] offset:4096
    ds_write_b64 v26, v[24:25] offset:24576
    ds_write_b64 v26, v[24:25] offset:{24576+4096}
    s_waitcnt lgkmcnt(0)
    L_p2_nodma:
    s_barrier
    """)
    stamp(7)

    def LK(kk, buf):
        off = (8 - kk) * 512
        f = KF[buf]
        k(f"ds_read_b128 v[{f}:{f+3}], v{vKA1} offset:{off}")
        k(f"ds_read_b64 v[{f+4}:{f+5}], v{vKA2} offset:{off}")
    def LV(kk, buf):
        off = (8 - kk) * 512
        f = VF[buf]
        for u in range(2):
            for t in range(2):
                k(f"ds_read_b64_tr_b16 v[{f+4*u+2*t}:{f+4*u+2*t+1}], v{vVA[t]} offset:{off + u*256}")
    def QK(buf, sbuf, c):
        f = KF[buf]; s = S[sbuf]
        cs = "0" if c is None else f"v[{c}:{c+15}]"
        k(f"v_mfma_f32_32x32x16_bf16 v[{s}:{s+15}], v[{f}:{f+3}], v[{vQ1}:{vQ1+3}], {cs}")
        k(f"v_mfma_f32_32x32x8_bf16 v[{s}:{s+15}], v[{f+4}:{f+5}], v[{vQ2}:{vQ2+1}], v[{s}:{s+15}]")
    def EXP(sbuf, lo, hi):
        s = S[sbuf]
        for i in range(lo, hi): k(f"v_exp_f32 v{s+i}, v{s+i}")
    def CVT(sbuf, lo, hi):
        s = S[sbuf]
        for i in range(lo, hi): k(f"v_cvt_pk_bf16_f32 v{P+i}, v{s+2*i}, v{s+2*i+1}")
    def PV(buf, u):
        f = VF[buf] + 4 * u
        k(f"v_mfma_f32_32x32x16_bf16 v[{OA}:{OA+15}], v[{f}:{f+3}], v[{P+4*u}:{P+4*u+3}], v[{OA}:{OA+15}]")

    k(f"ds_read_b128 v[{vQ1}:{vQ1+3}], v22")
    k(f"ds_read_b64 v[{vQ2}:{vQ2+1}], v23")
    LK(0, 0); LK(1, 1); LV(0, 0)
    k(f"""
    s_waitcnt lgkmcnt(8)
    v_cndmask_b32 v{vQ2}, v{vQ2}, 0, s[{sUP}:{sUP+1}]
    v_cndmask_b32 v{vQ2+1}, v{vQ2+1}, 0, s[{sUP}:{sUP+1}]
    s_waitcnt lgkmcnt(6)
    s_nop 0
    """)
    QK(0, 0, CD)
    LK(2, 0)
    s = S[0]
    k("s_nop 9")
    k(f"v_max3_f32 v24, v{s}, v{s+1}, v{s+2}")
    k(f"v_max3_f32 v25, v{s+3}, v{s+4}, v{s+5}")
    k(f"v_max3_f32 v24, v24, v{s+6}, v{s+7}")
    k(f"v_max3_f32 v25, v25, v{s+8}, v{s+9}")
    k(f"v_max3_f32 v24, v24, v{s+10}, v{s+11}")
    k(f"v_max3_f32 v25, v25, v{s+12}, v{s+13}")
    k(f"v_max3_f32 v24, v24, v{s+14}, v{s+15}")
    k(f"""
    v_max_f32 v24, v24, v25
    v_mov_b32 v25, v24
    s_nop 1
    v_permlane32_swap_b32 v24, v25
    v_max_f32 v24, v24, v25
    v_and_b32 v24, 0xffff0000, v24
    v_lshrrev_b32 v25, 16, v24
    v_xor_b32 v25, 0x8000, v25
    v_cndmask_b32 v{vQ2}, v{vQ2}, v25, s[{sUP}:{sUP+1}]
    """)
    for i in range(16): k(f"v_sub_f32 v{s+i}, v{s+i}, v24")
    for kk in range(9):
        cur = kk & 1; nxt = cur ^ 1
        if kk < 8:
            after = 4 + (2 if kk + 2 <= 8 else 0)
            if kk == 0: after = 4 + 2
            k(f"s_waitcnt lgkmcnt({after})")
            QK(nxt, nxt, CF if kk + 1 == 8 else None)
        EXP(cur, 0, 8)
        CVT(cur, 0, 4)
        EXP(cur, 8, 12)
        k(f"s_waitcnt lgkmcnt({2 if kk + 2 <= 8 else 0})")
        PV(cur, 0)
        EXP(cur, 12, 16)
        k("s_nop 0")
        CVT(cur, 4, 8)
        if kk < 8: LV(kk + 1, nxt)
        else: k("s_nop 1")
        PV(cur, 1)
        if kk + 3 <= 8: LK(kk + 3, nxt)
        if kk < 8:
            k(f"s_cmp_eq_u32 s{sNT}, {kk+1}")
            k("s_cbranch_scc1 L_p2_done")
    k("L_p2_done:")
    k(f"""
    s_nop 11
    v_mov_b32 v24, v{OA+8}
    v_mov_b32 v25, v{OA+8}
    s_nop 1
    v_permlane32_swap_b32 v24, v25
    v_mov_b32 v26, {hex(f2u(2.0**60))}
    v_mov_b32 v27, {hex(f2u(2.0**-60))}
    v_cmp_nlt_f32 vcc, v25, v26
    v_cmp_ngt_f32 s[{sT0}:{sT0+1}], v25, v27
    s_or_b64 vcc, vcc, s[{sT0}:{sT0+1}]
    s_cbranch_vccnz L_slow
    L_p2_norm:
    v_rcp_f32 v25, v25
    s_nop 0
    """)
    for i in range(12): k(f"v_mul_f32 v{OA+i}, v{OA+i}, v25")
    k(f"""
    v_cvt_pk_bf16_f32 v{P}, v{OA}, v{OA+1}
    v_cvt_pk_bf16_f32 v{P+1}, v{OA+2}, v{OA+3}
    v_cvt_pk_bf16_f32 v{P+2}, v{OA+4}, v{OA+5}
    v_cvt_pk_bf16_f32 v{P+3}, v{OA+6}, v{OA+7}
    v_cvt_pk_bf16_f32 v{P+4}, v{OA+8}, v{OA+9}
    v_cvt_pk_bf16_f32 v{P+5}, v{OA+10}, v{OA+11}
    v_permlane32_swap_b32 v{P}, v{P+2}
    v_permlane32_swap_b32 v{P+1}, v{P+3}
    buffer_store_dwordx4 v[{P}:{P+3}], v{vOA}, s[{sWS}:{sWS+3}], 0 offen sc1
    s_mov_b32 exec_lo, -1
    s_mov_b32 exec_hi, 0
    buffer_store_dwordx2 v[{P+4}:{P+5}], v{vOH}, s[{sWS}:{sWS+3}], 0 offen sc1
    s_mov_b64 exec, -1
    """)
    stamp(8)
    k(f"""
    s_waitcnt vmcnt(0) lgkmcnt(0)
    s_barrier
    """)
    stamp(9)
    if stop <= 2:
        k("s_branch L_fin")
    k(f"""
    s_cmp_gt_u32 s{sWAVE}, 4
    s_cbranch_scc1 L_fin
    s_cmp_lt_u32 s{sWAVE}, 4
    s_cbranch_scc1 L_p3
    s_lshl_b32 s{sT0}, s{sRB}, 5
    s_add_u32 s{sT0}, s{sT0}, s{sH}
    s_lshl_b32 s{sT0}, s{sT0}, 7
    s_add_u32 s{sT0}, s{sT0}, {FL2_OFF}
    v_mov_b32 v9, 0
    v_mov_b32 v11, s{sTAG}
    s_lshl_b32 s{sT1}, s{sXCD}, 12
    s_add_u32 s{sT1}, s{sT1}, {FL2_OFF}
    v_lshlrev_b32 v7, 7, v0
    v_add_u32 v7, s{sT1}, v7
    s_mov_b64 exec, 1
    buffer_store_dword v11, v9, s[{sWS}:{sWS+3}], s{sT0} offen sc1
    s_mov_b32 exec_lo, -1
    s_mov_b32 exec_hi, 0
    """)
    poll("L_poll2", 7, None, sWS)
    k("s_mov_b64 exec, -1")
    stamp(10)
    k("s_barrier          ; BF")
    k("s_branch L_fin")

    NPRE = 7
    A3 = 100
    B3 = 16
    C3 = 236 + 0
    A3 = 96
    C3 = 236
    k("L_p3:")
    srd(sOUT, 10, 2621440)
    k(f"""
    v_lshrrev_b32 v2, 2, v0            ; 4g + r
    v_mul_u32_u24 v2, 160, v2
    v_and_b32 v3, 3, v0
    v_lshl_add_u32 v2, v3, 3, v2       ; steps 0..9
    v_add_u32 v3, {10*5120}, v2        ; steps 10..19
    v_lshrrev_b32 v4, 4, v0
    v_and_b32 v5, 15, v0
    v_lshlrev_b32 v6, 15, v4
    v_lshl_add_u32 v6, v5, 4, v6
    s_lshl_b32 s{sT0}, s{sXCD}, 8
    s_and_b32 s{sT1}, s{sJ}, 3
    s_lshl_b32 s{sT1}, s{sT1}, 6
    s_add_u32 s{sT0}, s{sT0}, s{sT1}
    s_lshl_b32 s{sT1}, s{sWAVE}, 4
    s_add_u32 s{sT0}, s{sT0}, s{sT1}     ; row0
    s_lshl_b32 s{sT1}, s{sT0}, 4
    s_add_u32 s{sT1}, s{sT1}, {O_OFF}
    v_add_u32 v7, s{sT0}, v5
    v_mul_u32_u24 v7, 1280, v7
    s_mul_i32 s{sT2}, s{sRB}, 160
    v_add_u32 v7, s{sT2}, v7
    v_lshl_add_u32 v8, v4, 3, v7
    v_and_b32 v9, 1, v4
    v_lshl_add_u32 v7, v9, 5, v7
    v_lshrrev_b32 v9, 1, v4
    v_lshl_add_u32 v7, v9, 4, v7
    """)
    def LA(ks):
        base = A3 + (ks % NPRE) * 20
        va = 2 if ks < 10 else 3
        o = (ks % 10) * 5120
        for tl in range(5):
            for t in range(2):
                a = base + tl * 4 + 2 * t
                k(f"ds_read_b64_tr_b16 v[{a}:{a+1}], v{va} offset:{o + t*16*160 + tl*32}")
    for ks in range(NPRE):
        LA(ks)
        k("s_waitcnt lgkmcnt(5)")
    for i in range(20): k(f"v_mov_b32 v{C3+i}, 0")
    k("s_barrier          ; BF")
    stamp(11)
    for ks in range(20):
        k(f"buffer_load_dwordx4 v[{B3+4*ks}:{B3+4*ks+3}], v6, s[{sWS}:{sWS+3}], s{sT1} offen sc1")
        if ks < 19: k(f"s_add_u32 s{sT1}, s{sT1}, {4*32768}")
    for ks in range(20):
        lg = 5 if (ks >= 1 and ks - 1 + NPRE < 20) else 0
        k(f"s_waitcnt vmcnt({19-ks}) lgkmcnt({lg})")
        base = A3 + (ks % NPRE) * 20
        for tl in range(5):
            a = base + tl * 4; c = C3 + tl * 4; b = B3 + 4 * ks
            k(f"v_mfma_f32_16x16x32_bf16 v[{c}:{c+3}], v[{a}:{a+3}], v[{b}:{b+3}], v[{c}:{c+3}]")
        if ks + NPRE < 20: LA(ks + NPRE)
    stamp(12)
    k("s_nop 7")
    for tl in range(5):
        c = C3 + tl * 4
        q = 16 + (tl >> 1) * 4 + (tl & 1) * 2
        k(f"v_cvt_pk_bf16_f32 v{q}, v{c}, v{c+1}")
        k(f"v_cvt_pk_bf16_f32 v{q+1}, v{c+2}, v{c+3}")
    k(f"""
    v_permlane16_swap_b32 v16, v18
    v_permlane16_swap_b32 v17, v19
    v_permlane16_swap_b32 v20, v22
    v_permlane16_swap_b32 v21, v23
    buffer_store_dwordx4 v[16:19], v7, s[{sOUT}:{sOUT+3}], 0 offen
    buffer_store_dwordx4 v[20:23], v7, s[{sOUT}:{sOUT+3}], 0 offen offset:64
    buffer_store_dwordx2 v[24:25], v8, s[{sOUT}:{sOUT+3}], 0 offen offset:128
    """)
    k("L_fin:")
    if stamps:
        k(f"""
        s_waitcnt vmcnt(0)
        s_memrealtime s[{sST+26}:{sST+27}]
        s_and_b32 s{sT0}, s{sWAVE}, 3
        s_cmp_lg_u32 s{sT0}, 0
        s_cbranch_scc1 L_end
        s_waitcnt lgkmcnt(0)
        s_lshl_b32 s{sT0}, s2, 1
        s_lshr_b32 s{sT1}, s{sWAVE}, 2
        s_add_u32 s{sT0}, s{sT0}, s{sT1}
        s_lshl_b32 s{sT0}, s{sT0}, 6
        s_add_u32 s{sT0}, s{sT0}, {STAMP_OFF}
        v_mov_b32 v1, 0
        """)
        for i in range(16): k(f"v_mov_b32 v{4+i}, s{sST+2*i}")
        for i in range(4): k(f"buffer_store_dwordx4 v[{4+4*i}:{7+4*i}], v1, s[{sWS}:{sWS+3}], s{sT0} offen offset:{16*i}")
        if opts.get("dbgst"):
            k(f"s_cmp_lg_u32 s2, {opts['dbgst']}")
            k("s_cbranch_scc1 L_end")
            k(f"s_cmp_lg_u32 s{sWAVE}, 0")
            k("s_cbranch_scc1 L_dbg4")
            for n, i in enumerate([1, 2, 3, 6, 7, 8, 9, 11, 12, 13]):
                k(f"v_subrev_u32 v2, s{sST}, v{4+i}")
                k(f"global_store_dword v1, v2, s[12:13] offset:{4+4*n}")
            k("s_branch L_end")
            k("L_dbg4:")
            for n, i in enumerate([4, 5, 8, 10]):
                k(f"v_subrev_u32 v2, s{sST}, v{4+i}")
                k(f"global_store_dword v1, v2, s[12:13] offset:{44+4*n}")
    k("L_end:")
    k("s_endpgm")

    k("L_slow:")
    s = S[0]
    k(f"""
    v_cndmask_b32 v{vQ2}, v{vQ2}, 0, s[{sUP}:{sUP+1}]
    v_mov_b32 v24, 0xff800000
    s_mov_b32 s{sT2}, 0               ; pass
    """)
    for i in range(16): k(f"v_mov_b32 v{OA+i}, 0")
    k(f"""
    L_slow_pass:
    s_mov_b32 s{sCNT}, 0
    L_slow_tile:
    s_sub_u32 s{sT3}, 8, s{sCNT}
    s_lshl_b32 s{sT3}, s{sT3}, 9
    v_add_u32 v26, s{sT3}, v{vKA1}
    v_add_u32 v27, s{sT3}, v{vKA2}
    v_add_u32 v28, s{sT3}, v{vVA[0]}
    v_add_u32 v29, s{sT3}, v{vVA[1]}
    ds_read_b128 v[{KF[0]}:{KF[0]+3}], v26
    ds_read_b64 v[{KF[0]+4}:{KF[0]+5}], v27
    ds_read_b64_tr_b16 v[{VF[0]}:{VF[0]+1}], v28
    ds_read_b64_tr_b16 v[{VF[0]+2}:{VF[0]+3}], v29
    ds_read_b64_tr_b16 v[{VF[0]+4}:{VF[0]+5}], v28 offset:256
    ds_read_b64_tr_b16 v[{VF[0]+6}:{VF[0]+7}], v29 offset:256
    """)
    for i in range(16): k(f"v_mov_b32 v{s+i}, 0")
    k(f"""
    s_cmp_lg_u32 s{sCNT}, 0
    s_cbranch_scc1 L_slow_nd
    """)
    for i in range(16): k(f"v_mov_b32 v{s+i}, v{CD+i}")
    k(f"""
    L_slow_nd:
    s_cmp_lg_u32 s{sCNT}, 8
    s_cbranch_scc1 L_slow_nf
    """)
    for i in range(16): k(f"v_mov_b32 v{s+i}, v{CF+i}")
    k(f"""
    L_slow_nf:
    s_waitcnt lgkmcnt(0)
    s_nop 1
    """)
    QK(0, 0, s)
    k(f"""
    s_nop 15
    s_cmp_lg_u32 s{sT2}, 0
    s_cbranch_scc1 L_slow_p2
    """)
    for i in range(16): k(f"v_max_f32 v24, v24, v{s+i}")
    k("s_branch L_slow_next")
    k("L_slow_p2:")
    for i in range(16): k(f"v_sub_f32 v{s+i}, v{s+i}, v24")
    EXP(0, 0, 16)
    k("s_nop 0")
    CVT(0, 0, 8)
    k("s_nop 1")
    PV(0, 0); PV(0, 1)
    k(f"""
    s_nop 15
    L_slow_next:
    s_add_u32 s{sCNT}, s{sCNT}, 1
    s_cmp_lt_u32 s{sCNT}, s{sNT}
    s_cbranch_scc1 L_slow_tile
    s_cmp_lg_u32 s{sT2}, 0
    s_cbranch_scc1 L_slow_done
    v_mov_b32 v25, v24
    s_nop 1
    v_permlane32_swap_b32 v24, v25
    v_max_f32 v24, v24, v25
    s_mov_b32 s{sT2}, 1
    s_branch L_slow_pass
    L_slow_done:
    v_mov_b32 v24, v{OA+8}
    v_mov_b32 v25, v{OA+8}
    s_nop 1
    v_permlane32_swap_b32 v24, v25
    s_branch L_p2_norm
    """)
    ne = opts.get("empty", 0)
    if ne:
        e = K("empty_kernel", (256, 1, 1), (64, 1, 1), 0, vgpr=8, sgpr=16)
        e("s_endpgm")
        return emit([k, e], launches=[k] + [e] * ne)
    return emit([k], single=True)

if __name__ == "__main__":
    out = sys.argv[1]
    opts = {}
    for a in sys.argv[2:]:
        kx, v = a.split("=")
        opts[kx] = int(v)
    open(out, "w").write(gen(opts))
```

```python
import sys, math, struct
from asmlib import *

def f2u(x): return struct.unpack("<I", struct.pack("<f", x))[0]

QKV_OFF = 0
O_OFF   = 8 << 20
FL1_OFF = 12 << 20
FL2_OFF = FL1_OFF + 256 * 128
TAG_OFF = FL2_OFF + 256 * 128
STAMP_OFF = 13 << 20
WS_SIZE = 14 << 20
SLOT = 32768
LDS_WO = 0
LDS_K = 102400
LDS_V = LDS_K + 24576
LDS_Q = LDS_V + 24576
LDS_TOTAL = 163840
QSCALE = (20 ** -0.5) * math.log2(math.e)
SPIN_MAX = 400000

def gen(opts):
    NSLOT = opts.get("nslot", 5)
    stamps = opts.get("stamps", False)
    stop = opts.get("stop", 99)
    k = K("standalone__sliding_block__prompt_kernel", (256, 1, 1), (512, 1, 1), LDS_TOTAL, vgpr=256, sgpr=102)

    sX, sW, sWO, sOUT, sWS = 16, 20, 24, 28, 32
    sWAVE, sXCD, sJ, sR1, sCT = 36, 37, 38, 39, 40
    sH, sRB, sODD, sTAG = 41, 42, 43, 44
    sT0, sT1, sT2, sT3, sT4, sT5 = 46, 47, 48, 49, 50, 51
    sCNT, sSLOT = 52, 53
    sUP = 54
    sEX = 56
    sNT = 58
    sB0 = 59
    sST = 64
    nstamp = [0]
    def stamp(idx):
        if stamps:
            k(f"s_memrealtime s[{sST+2*idx}:{sST+2*idx+1}]")
    def srd(d, lo, size):
        k(f"s_mov_b32 s{d}, s{lo}\ns_mov_b32 s{d+1}, s{lo+1}\ns_mov_b32 s{d+2}, {size}\ns_mov_b32 s{d+3}, 0x20000")

    if stamps:
        for i in range(16): k(f"s_mov_b64 s[{sST+2*i}:{sST+2*i+1}], 0")
    stamp(0)
    if opts.get("padto"): k("s_memrealtime s[62:63]")
    k(f"""
    s_cmp_ge_u32 s2, 256
    s_cbranch_scc1 L_end
    s_load_dwordx8 s[4:11], s[0:1], 0
    s_load_dwordx4 s[12:15], s[0:1], 32
    v_lshrrev_b32 v1, 6, v0
    v_and_b32 v0, 63, v0
    v_readfirstlane_b32 s{sWAVE}, v1
    s_and_b32 s{sXCD}, s2, 7
    s_lshr_b32 s{sJ}, s2, 3
    s_and_b32 s{sT0}, s{sXCD}, 3
    s_lshl_b32 s{sT0}, s{sT0}, 2
    s_and_b32 s{sT1}, s{sJ}, 3
    s_add_u32 s{sR1}, s{sT0}, s{sT1}
    s_lshr_b32 s{sT0}, s{sXCD}, 2
    s_lshl_b32 s{sT0}, s{sT0}, 3
    s_lshr_b32 s{sRB}, s{sJ}, 2
    s_add_u32 s{sCT}, s{sT0}, s{sRB}
    s_lshl_b32 s{sH}, s{sXCD}, 2
    s_add_u32 s{sH}, s{sH}, s{sT1}
    s_and_b32 s{sODD}, s{sH}, 1
    s_mov_b32 s{sUP}, 0
    s_mov_b32 s{sUP+1}, -1
    s_cmp_ge_u32 s{sWAVE}, 4
    s_cbranch_scc1 L_loader
    """)
    ACC = 0 + 64
    AF = [[128, 132], [144, 148]]
    BF = [[136, 140], [152, 156]]
    vXB = [2, 3, 4, 5]
    vWB = [6, 7]
    vXA = [8, 9, 10, 11]
    vWA = [12, 13]
    k(f"""
    s_waitcnt lgkmcnt(0)
    """)
    srd(sWS, 14, WS_SIZE)
    k(f"""
    s_cmp_ge_u32 s{sCT}, 15
    s_cbranch_scc1 L_p1_done_c
    s_and_b32 s{sT0}, s{sWAVE}, 1
    s_lshr_b32 s{sT1}, s{sWAVE}, 1
    v_and_b32 v14, 31, v0
    v_lshrrev_b32 v15, 5, v0          ; h
    v_bfe_u32 v16, v0, 1, 3
    v_xor_b32 v16, v16, v15           ; y
    s_lshl_b32 s{sT2}, s{sT1}, 13     ; wm*64*128
    v_lshlrev_b32 v14, 7, v14
    v_add_u32 v14, s{sT2}, v14        ; row*128
    """)
    for s in range(4):
        k(f"v_xor_b32 v17, {2*s}, v16\nv_lshl_add_u32 v{vXB[s]}, v17, 4, v14")
    k(f"""
    v_bfe_u32 v14, v0, 2, 2           ; r
    v_lshl_add_u32 v17, v15, 3, v14   ; 8h + r
    v_lshlrev_b32 v17, 8, v17         ; *256
    v_add_u32 v17, 16384, v17
    v_bfe_u32 v18, v0, 4, 1           ; g&1
    v_bfe_u32 v19, v0, 1, 1           ; c>>1
    v_lshl_add_u32 v18, v18, 1, v19
    v_and_b32 v19, 1, v0
    v_lshl_add_u32 v17, v19, 3, v17   ; + (c&1)*8
    v_lshl_add_u32 v17, v18, 4, v17   ; + low*16
    s_lshl_b32 s{sT2}, s{sT0}, 1      ; 2wn
    """)
    for tn in range(2):
        k(f"""
        s_add_u32 s{sT3}, s{sT2}, {tn}
        v_xor_b32 v18, s{sT3}, v14
        v_lshl_add_u32 v{vWB[tn]}, v18, 6, v17
        """)
    for i in range(64): k(f"v_mov_b32 v{ACC+i}, 0")
    for s in range(4): k(f"v_mov_b32 v{vXA[s]}, v{vXB[s]}")
    for t in range(2): k(f"v_mov_b32 v{vWA[t]}, v{vWB[t]}")

    def reads(step, buf):
        for tn in range(2):
            for t in range(2):
                a = AF[buf][tn] + 2 * t
                k(f"ds_read_b64_tr_b16 v[{a}:{a+1}], v{vWA[tn]} offset:{(step*16+4*t)*256}")
        for tm in range(2):
            b = BF[buf][tm]
            k(f"ds_read_b128 v[{b}:{b+3}], v{vXA[step]} offset:{tm*4096}")
    def mfmas(buf):
        for tn in range(2):
            for tm in range(2):
                c = ACC + (tn * 2 + tm) * 16
                a = AF[buf][tn]; b = BF[buf][tm]
                k(f"v_mfma_f32_32x32x16_bf16 v[{c}:{c+15}], v[{a}:{a+3}], v[{b}:{b+3}], v[{c}:{c+15}]")
    k(f"""
    s_mov_b32 s{sCNT}, 0
    s_mov_b32 s{sSLOT}, 0
    s_barrier
    """)
    stamp(1)
    reads(0, 0)
    k("L_p1_loop:")
    reads(1, 1); k("s_waitcnt lgkmcnt(6)"); mfmas(0)
    reads(2, 0); k("s_waitcnt lgkmcnt(6)"); mfmas(1)
    reads(3, 1); k("s_waitcnt lgkmcnt(6)"); mfmas(0)
    k(f"""
    s_add_u32 s{sCNT}, s{sCNT}, 1
    s_add_u32 s{sSLOT}, s{sSLOT}, {SLOT}
    s_cmp_ge_u32 s{sSLOT}, {NSLOT*SLOT}
    s_cselect_b32 s{sSLOT}, 0, s{sSLOT}
    s_cmp_ge_u32 s{sCNT}, 10
    s_waitcnt lgkmcnt(0)
    s_cbranch_scc1 L_p1_last
    """)
    for s in range(4): k(f"v_add_u32 v{vXA[s]}, s{sSLOT}, v{vXB[s]}")
    for t in range(2): k(f"v_add_u32 v{vWA[t]}, s{sSLOT}, v{vWB[t]}")
    k("s_barrier")
    reads(0, 0)
    mfmas(1)
    k("s_branch L_p1_loop")
    k("L_p1_last:")
    mfmas(1)
    stamp(2)
    k(f"""
    s_and_b32 s{sT0}, s{sWAVE}, 1
    s_lshr_b32 s{sT1}, s{sWAVE}, 1
    s_lshl_b32 s{sT2}, s{sCT}, 4
    s_lshl_b32 s{sT0}, s{sT0}, 3
    s_add_u32 s{sT2}, s{sT2}, s{sT0}
    s_lshl_b32 s{sT2}, s{sT2}, 15           ; *32768
    s_lshl_b32 s{sT3}, s{sR1}, 11           ; r*128*16
    s_lshl_b32 s{sT1}, s{sT1}, 10           ; wm*64*16
    s_add_u32 s{sT2}, s{sT2}, s{sT3}
    s_add_u32 s{sT2}, s{sT2}, s{sT1}
    v_lshlrev_b32 v14, 4, v0
    s_mov_b32 s{sT4}, {hex(f2u(QSCALE))}
    s_mov_b32 s{sT5}, s{sT4}
    s_nop 7
    s_cmp_ge_u32 s{sCT}, 5
    s_cbranch_scc1 L_p1_noscale
    """)
    for i in range(32):
        k(f"v_pk_mul_f32 v[{ACC+2*i}:{ACC+2*i+1}], v[{ACC+2*i}:{ACC+2*i+1}], s[{sT4}:{sT5}]")
    k("L_p1_noscale:")
    for b in range(8):
        tn, bi = b >> 2, b & 3
        q = 128 + 4 * b
        c0 = ACC + (tn * 2 + 0) * 16 + 4 * bi
        c1 = ACC + (tn * 2 + 1) * 16 + 4 * bi
        k(f"""
        v_cvt_pk_bf16_f32 v{q}, v{c0}, v{c0+1}
        v_cvt_pk_bf16_f32 v{q+1}, v{c0+2}, v{c0+3}
        v_cvt_pk_bf16_f32 v{q+2}, v{c1}, v{c1+1}
        v_cvt_pk_bf16_f32 v{q+3}, v{c1+2}, v{c1+3}
        s_nop 1
        v_permlane32_swap_b32 v{q}, v{q+2}
        v_permlane32_swap_b32 v{q+1}, v{q+3}
        buffer_store_dwordx4 v[{q}:{q+3}], v14, s[{sWS}:{sWS+3}], s{sT2} offen sc1
        s_add_u32 s{sT2}, s{sT2}, 32768
        """)
    k("s_barrier")
    k("s_waitcnt vmcnt(0)")
    stamp(3)
    k("s_barrier")
    k("L_p1_done_c:")
    k("s_branch L_p2_prep")

    k("L_loader:")
    k(f"""
    s_sub_u32 s{sT0}, s{sWAVE}, 4
    v_lshrrev_b32 v2, 3, v0
    v_mul_u32_u24 v2, 1280, v2
    s_and_b32 s{sT1}, s{sT0}, 1
    s_lshl_b32 s{sT1}, s{sT1}, 2
    v_lshrrev_b32 v3, 4, v0
    v_add_u32 v4, s{sT1}, v3
    v_and_b32 v5, 7, v0
    v_xor_b32 v4, v4, v5
    v_lshl_add_u32 v2, v4, 4, v2
    s_mul_i32 s{sT2}, s{sR1}, {128*1280}
    s_mul_i32 s{sT3}, s{sT0}, {8*1280}
    s_add_u32 s{sT2}, s{sT2}, s{sT3}
    v_add_u32 v2, s{sT2}, v2             ; v2 = x voffset
    v_mul_u32_u24 v4, 3840, v3
    v_lshlrev_b32 v5, 2, v3
    v_and_b32 v6, 15, v0
    v_xor_b32 v5, v5, v6
    v_lshl_add_u32 v3, v5, 4, v4
    s_lshl_b32 s{sT2}, s{sCT}, 8
    s_mul_i32 s{sT3}, s{sT0}, {4*3840}
    s_add_u32 s{sT2}, s{sT2}, s{sT3}
    v_add_u32 v3, s{sT2}, v3             ; v3 = W voffset
    s_lshl_b32 s{sT4}, s{sT0}, 10        ; lw*1024
    s_waitcnt lgkmcnt(0)
    """)
    srd(sX, 4, 2621440); srd(sW, 6, 2457600); srd(sWS, 14, WS_SIZE); srd(sWO, 8, 819200)
    k(f"""
    s_cmp_ge_u32 s{sCT}, 15
    s_cbranch_scc1 L_p1_done_l
    """)
    def issue(c):
        slot = (c % NSLOT) * SLOT
        for t in range(4):
            k(f"s_add_u32 m0, s{sT4}, {slot + t*4096}")
            k(f"s_mov_b32 s{sT5}, {c*128 + t*32*1280}")
            k(f"buffer_load_dwordx4 v2, s[{sX}:{sX+3}], s{sT5} offen lds")
        for t in range(4):
            k(f"s_add_u32 m0, s{sT4}, {slot + 16384 + t*4096}")
            k(f"s_mov_b32 s{sT5}, {c*64*3840 + t*16*3840}")
            k(f"buffer_load_dwordx4 v3, s[{sW}:{sW+3}], s{sT5} offen lds")
    issued = 0
    for c in range(min(NSLOT, 10)): issue(c); issued += 1
    for c in range(10):
        k(f"s_waitcnt vmcnt({(issued - c - 1) * 8})")
        k(f"s_barrier      ; B_{c}")
        if c >= 1 and issued < 10:
            issue(issued); issued += 1
    k("s_barrier          ; BA")
    k("L_p1_done_l:")
    k(f"""
    s_cmp_eq_u32 s{sWAVE}, 4
    s_cbranch_scc1 L_sync1
    """)
    for i in range(5):
        k(f"""
        v_add_u32 v10, {64*i}, v0
        v_mul_u32_u24 v11, 6554, v10
        v_lshrrev_b32 v11, 16, v11        ; rho
        v_mul_u32_u24 v12, 10, v11
        v_sub_u32 v12, v10, v12           ; piece
        v_and_b32 v13, 3, v11             ; r
        v_bfe_u32 v14, v11, 2, 2          ; g
        v_lshl_add_u32 v13, v14, 3, v13
        v_lshrrev_b32 v14, 4, v11         ; t
        v_lshl_add_u32 v13, v14, 2, v13   ; k
        v_mul_u32_u24 v13, 1280, v13
        v_lshl_add_u32 v{4+i}, v12, 4, v13
        """)
    k(f"""
    s_sub_u32 s{sT0}, s{sWAVE}, 5
    s_mul_i32 s{sT1}, s{sT0}, 7
    s_add_u32 s{sT2}, s{sT1}, 7
    s_min_u32 s{sT2}, s{sT2}, 20
    s_mul_i32 s{sT3}, s{sRB}, 160
    s_mul_i32 s{sT5}, s{sT1}, {32*1280}
    s_add_u32 s{sT3}, s{sT3}, s{sT5}        ; soffset
    s_mul_i32 s{sT4}, s{sT1}, 5120
    L_wo_loop:
    """)
    for i in range(5):
        k(f"s_add_u32 m0, s{sT4}, {LDS_WO + i*1024}")
        k("s_nop 0")
        k(f"buffer_load_dwordx4 v{4+i}, s[{sWO}:{sWO+3}], s{sT3} offen lds")
    k(f"""
    s_add_u32 s{sT4}, s{sT4}, 5120
    s_add_u32 s{sT3}, s{sT3}, {32*1280}
    s_add_u32 s{sT1}, s{sT1}, 1
    s_cmp_lt_u32 s{sT1}, s{sT2}
    s_cbranch_scc1 L_wo_loop
    s_cmp_ge_u32 s{sCT}, 15
    s_cbranch_scc1 L_p2_prep
    s_barrier          ; BB
    s_branch L_p2_prep
    """)
    def poll(lab, vaddr, cond_ne_reg, srdreg, is_tag=False):
        k(f"""
        s_mov_b32 s{sCNT}, 0
        {lab}:
        """)
        if is_tag:
            k(f"global_load_dword v10, v{vaddr}, s[12:13] sc1")
        else:
            k(f"buffer_load_dword v10, v{vaddr}, s[{srdreg}:{srdreg+3}], 0 offen sc1")
        k(f"""
        s_add_u32 s{sCNT}, s{sCNT}, 1
        s_cmp_ge_u32 s{sCNT}, {SPIN_MAX}
        s_waitcnt vmcnt(0)
        s_cbranch_scc1 {lab}_out
        """)
        if is_tag:
            k(f"v_cmp_eq_u32 vcc, 0, v10")
        else:
            k(f"v_cmp_ne_u32 vcc, s{sTAG}, v10")
        k(f"""
        s_cbranch_vccnz {lab}
        {lab}_out:
        """)
    k("L_sync1:")
    k(f"""
    v_mov_b32 v9, 0
    s_cmp_lg_u32 s2, 255
    s_cbranch_scc1 L_notleader
    s_mov_b64 exec, 1
    v_mov_b32 v11, {TAG_OFF}
    buffer_load_dword v10, v11, s[{sWS}:{sWS+3}], 0 offen sc1
    s_waitcnt vmcnt(0)
    v_add_u32 v10, 1, v10
    v_max_u32 v10, 1, v10
    buffer_store_dword v10, v11, s[{sWS}:{sWS+3}], 0 offen sc1
    global_store_dword v9, v10, s[12:13] sc1
    s_mov_b64 exec, -1
    L_notleader:
    """)
    poll("L_polltag", 9, None, None, is_tag=True)
    k(f"""
    v_readfirstlane_b32 s{sTAG}, v10
    v_lshrrev_b32 v2, 3, v0            ; ty
    v_bfe_u32 v3, v0, 1, 2             ; ro
    v_and_b32 v4, 1, v0                ; hi
    s_lshr_b32 s{sT0}, s{sH}, 1
    s_mul_i32 s{sT0}, s{sT0}, 5
    s_lshl_b32 s{sT1}, s{sODD}, 1
    s_add_u32 s{sT0}, s{sT0}, s{sT1}     ; 5m + 2*odd
    v_mul_u32_u24 v5, 80, v2
    v_lshl_add_u32 v5, v4, 1, v5
    v_add_u32 v5, s{sT0}, v5
    v_lshrrev_b32 v5, 4, v5            ; ct
    s_lshl_b32 s{sT1}, s{sRB}, 1
    s_sub_u32 s{sT1}, s{sT1}, 2
    v_add_u32 v6, s{sT1}, v3
    v_mul_i32_i24 v7, 15, v6
    v_add_u32 v7, v7, v5
    v_lshlrev_b32 v7, 7, v7
    v_add_u32 v7, {FL1_OFF}, v7
    v_cmp_gt_u32 vcc, 24, v0
    v_cmp_le_i32 s[{sT2}:{sT2+1}], 0, v6
    s_and_b64 vcc, vcc, s[{sT2}:{sT2+1}]
    v_lshl_add_u32 v8, v2, 2, v3
    v_cmp_le_u32 s[{sT2}:{sT2+1}], 2, v8
    s_and_b64 s[{sEX}:{sEX+1}], vcc, s[{sT2}:{sT2+1}]
    s_cmp_ge_u32 s{sCT}, 15
    s_cbranch_scc1 L_sync1_noflag
    s_barrier          ; BB
    s_mul_i32 s{sT0}, s{sR1}, 15
    s_add_u32 s{sT0}, s{sT0}, s{sCT}
    s_lshl_b32 s{sT0}, s{sT0}, 7
    s_add_u32 s{sT0}, s{sT0}, {FL1_OFF}
    s_mov_b64 exec, 1
    v_mov_b32 v11, s{sTAG}
    buffer_store_dword v11, v9, s[{sWS}:{sWS+3}], s{sT0} offen sc1
    L_sync1_noflag:
    s_mov_b64 exec, s[{sEX}:{sEX+1}]
    """)
    stamp(4)
    poll("L_poll1", 7, None, sWS)
    k("s_mov_b64 exec, -1")
    stamp(5)

    vQ1, vQ2 = 16, 20
    vKA1, vKA2 = 2, 3
    vVA = [4, 5]
    vOA, vOH = 6, 7
    CD, CF = 32, 48
    S = [64, 80]
    P = 96
    KF = [104, 112]
    VF = [120, 128]
    OA = 136
    k("L_p2_prep:")
    BIG = 2.0 ** 100
    k(f"""
    v_and_b32 v10, 31, v0              ; q
    v_lshrrev_b32 v11, 5, v0           ; h
    v_lshlrev_b32 v12, 2, v11
    v_sub_u32 v12, v10, v12            ; t = q - 4h
    v_cvt_f32_i32 v12, v12
    v_mul_f32 v12, {hex(f2u(BIG))}, v12
    """)
    for i in range(16):
        key = 8 * (i >> 2) + (i & 3)
        k(f"v_add_f32 v{CD+i}, {hex(f2u(-key*BIG)) if key else 0}, v12")
        k(f"v_min_f32 v{CD+i}, 0, v{CD+i}")
        k(f"v_sub_f32 v{CF+i}, {hex(f2u((key-1)*BIG)) if key != 1 else 0}, v12")
        k(f"v_min_f32 v{CF+i}, 0, v{CF+i}")
    k(f"""
    s_lshl_b32 s{sT0}, s{sWAVE}, 9        ; w*512
    v_lshlrev_b32 v13, 4, v10
    v_add_u32 v13, s{sT0}, v13            ; (32w+q)*16
    v_lshl_add_u32 v{vKA1}, v11, 13, v13
    v_add_u32 v{vKA1}, {LDS_K}, v{vKA1}
    v_xor_b32 v14, s{sODD}, v11
    v_lshl_add_u32 v{vKA2}, v14, 3, v13
    v_add_u32 v{vKA2}, {LDS_K+16384}, v{vKA2}
    v_lshl_add_u32 v22, v11, 12, v13
    v_add_u32 v22, {LDS_Q}, v22
    s_lshl_b32 s{sT1}, s{sODD}, 3
    s_add_u32 s{sT1}, s{sT1}, {LDS_Q+8192}
    v_add_u32 v23, s{sT1}, v13
    v_bfe_u32 v14, v0, 4, 1              ; g1
    v_bfe_u32 v15, v0, 1, 1              ; c>>1
    v_cmp_eq_u32 vcc, 1, v14
    v_mov_b32 v24, 2
    v_and_b32 v25, 1, v0                 ; c&1
    v_cndmask_b32 v15, v15, v24, vcc     ; p
    v_and_b32 v24, s{sODD}, v14
    v_xor_b32 v25, v25, v24              ; half
    v_bfe_u32 v24, v0, 2, 2              ; r
    v_lshl_add_u32 v24, v11, 2, v24      ; 4h + r
    v_lshlrev_b32 v26, 2, v15            ; p<<2
    v_lshlrev_b32 v27, 13, v15           ; p*8192
    v_lshl_add_u32 v27, v25, 3, v27
    v_add_u32 v27, s{sT0}, v27
    v_add_u32 v27, {LDS_V}, v27
    v_xor_b32 v25, v24, v26
    v_lshl_add_u32 v{vVA[0]}, v25, 4, v27
    v_or_b32 v24, 8, v24
    v_xor_b32 v25, v24, v26
    v_lshl_add_u32 v{vVA[1]}, v25, 4, v27
    s_lshr_b32 s{sT1}, s{sH}, 1
    s_mul_i32 s{sB0}, s{sT1}, 5            ; 5m
    s_mul_i32 s{sT2}, s{sODD}, 3
    s_add_u32 s{sT2}, s{sT2}, s{sB0}       ; blockA
    s_lshl_b32 s{sT3}, s{sRB}, 12          ; 256*RB*16
    s_lshl_b32 s{sT4}, s{sT2}, 15
    s_add_u32 s{sT4}, s{sT4}, s{sT3}
    s_add_u32 s{sT4}, s{sT4}, {O_OFF}
    v_lshl_add_u32 v{vOA}, v11, 15, v13
    v_add_u32 v{vOA}, s{sT4}, v{vOA}
    s_add_u32 s{sT4}, s{sB0}, 2
    s_lshl_b32 s{sT4}, s{sT4}, 15
    s_add_u32 s{sT4}, s{sT4}, s{sT3}
    s_lshl_b32 s{sT5}, s{sODD}, 3
    s_add_u32 s{sT4}, s{sT4}, s{sT5}
    s_add_u32 s{sT4}, s{sT4}, {O_OFF}
    v_add_u32 v{vOH}, s{sT4}, v13
    ; ntiles
    s_add_u32 s{sNT}, s{sWAVE}, 1
    s_cmp_lg_u32 s{sRB}, 0
    s_cselect_b32 s{sNT}, 9, s{sNT}
    """)
    for i in range(16): k(f"v_mov_b32 v{OA+i}, 0")
    k(f"""
    v_lshlrev_b32 v28, 4, v0
    v_xor_b32 v29, 64, v28
    v_xor_b32 v30, 128, v28
    s_barrier
    """)
    stamp(6)
    if stop <= 1:
        k("s_branch L_fin")
    k(f"""
    s_cmp_ge_u32 s{sWAVE}, 4
    s_cbranch_scc1 L_p2_nodma
    s_mul_i32 s{sT0}, s{sODD}, 3
    s_add_u32 s{sT0}, s{sT0}, s{sB0}
    s_lshl_b32 s{sT0}, s{sT0}, 15
    s_add_u32 s{sT1}, s{sB0}, 2
    s_lshl_b32 s{sT1}, s{sT1}, 15
    s_lshl_b32 s{sT2}, s{sRB}, 12          ; 256RB*16
    s_lshl_b32 s{sT3}, s{sWAVE}, 10
    s_add_u32 s{sT2}, s{sT2}, s{sT3}
    s_add_u32 s{sT0}, s{sT0}, s{sT2}
    s_add_u32 s{sT1}, s{sT1}, s{sT2}
    """)
    def dma(ldsbase, vreg, sbase, add):
        k(f"s_add_u32 m0, s{sT3}, {ldsbase}")
        k(f"s_add_u32 s{sT5}, s{sbase}, {add}")
        k(f"buffer_load_dwordx4 v{vreg}, s[{sWS}:{sWS+3}], s{sT5} offen sc1 lds")
    TY = 80 * 32768
    vl = [28, 29, 30]
    for p in range(3):
        sb, add = (sT0, p * 32768) if p < 2 else (sT1, 0)
        dma(LDS_Q + p * 4096, 28, sb, add)
    for p in range(3):
        sb, add = (sT0, p * 32768) if p < 2 else (sT1, 0)
        dma(LDS_K + p * 8192 + 4096, 28, sb, add + TY)
    for p in range(3):
        sb, add = (sT0, p * 32768) if p < 2 else (sT1, 0)
        dma(LDS_V + p * 8192 + 4096, vl[p], sb, add + 2 * TY)
    k(f"""
    s_cmp_eq_u32 s{sRB}, 0
    s_cbranch_scc1 L_p2_nolow
    """)
    for p in range(3):
        sb, add = (sT0, p * 32768) if p < 2 else (sT1, 0)
        dma(LDS_K + p * 8192, 28, sb, add + TY - 4096)
    for p in range(3):
        sb, add = (sT0, p * 32768) if p < 2 else (sT1, 0)
        dma(LDS_V + p * 8192, vl[p], sb, add + 2 * TY - 4096)
    k("L_p2_nolow:")
    k(f"""
    v_mov_b32 v24, 0x3f80
    v_mov_b32 v25, 0
    s_xor_b32 s{sT5}, s{sODD}, 1
    s_lshl_b32 s{sT5}, s{sT5}, 3
    s_add_u32 s{sT5}, s{sT5}, s{sT3}
    v_add_u32 v26, s{sT5}, v28
    v_add_u32 v26, {LDS_K+16384}, v26
    s_waitcnt vmcnt(0)
    ds_write_b64 v26, v[24:25]
    ds_write_b64 v26, v[24:25] offset:4096
    ds_write_b64 v26, v[24:25] offset:24576
    ds_write_b64 v26, v[24:25] offset:{24576+4096}
    s_waitcnt lgkmcnt(0)
    L_p2_nodma:
    s_barrier
    """)
    stamp(7)

    def LK(kk, buf):
        off = (8 - kk) * 512
        f = KF[buf]
        k(f"ds_read_b128 v[{f}:{f+3}], v{vKA1} offset:{off}")
        k(f"ds_read_b64 v[{f+4}:{f+5}], v{vKA2} offset:{off}")
    def LV(kk, buf):
        off = (8 - kk) * 512
        f = VF[buf]
        for u in range(2):
            for t in range(2):
                k(f"ds_read_b64_tr_b16 v[{f+4*u+2*t}:{f+4*u+2*t+1}], v{vVA[t]} offset:{off + u*256}")
    def QK(buf, sbuf, c):
        f = KF[buf]; s = S[sbuf]
        cs = "0" if c is None else f"v[{c}:{c+15}]"
        k(f"v_mfma_f32_32x32x16_bf16 v[{s}:{s+15}], v[{f}:{f+3}], v[{vQ1}:{vQ1+3}], {cs}")
        k(f"v_mfma_f32_32x32x8_bf16 v[{s}:{s+15}], v[{f+4}:{f+5}], v[{vQ2}:{vQ2+1}], v[{s}:{s+15}]")
    def EXP(sbuf, lo, hi):
        s = S[sbuf]
        for i in range(lo, hi): k(f"v_exp_f32 v{s+i}, v{s+i}")
    def CVT(sbuf, lo, hi):
        s = S[sbuf]
        for i in range(lo, hi): k(f"v_cvt_pk_bf16_f32 v{P+i}, v{s+2*i}, v{s+2*i+1}")
    def PV(buf, u):
        f = VF[buf] + 4 * u
        k(f"v_mfma_f32_32x32x16_bf16 v[{OA}:{OA+15}], v[{f}:{f+3}], v[{P+4*u}:{P+4*u+3}], v[{OA}:{OA+15}]")

    k(f"ds_read_b128 v[{vQ1}:{vQ1+3}], v22")
    k(f"ds_read_b64 v[{vQ2}:{vQ2+1}], v23")
    LK(0, 0); LK(1, 1); LV(0, 0)
    k(f"""
    s_waitcnt lgkmcnt(8)
    v_cndmask_b32 v{vQ2}, v{vQ2}, 0, s[{sUP}:{sUP+1}]
    v_cndmask_b32 v{vQ2+1}, v{vQ2+1}, 0, s[{sUP}:{sUP+1}]
    s_waitcnt lgkmcnt(6)
    s_nop 0
    """)
    QK(0, 0, CD)
    LK(2, 0)
    s = S[0]
    k("s_nop 9")
    k(f"v_max3_f32 v24, v{s}, v{s+1}, v{s+2}")
    k(f"v_max3_f32 v25, v{s+3}, v{s+4}, v{s+5}")
    k(f"v_max3_f32 v24, v24, v{s+6}, v{s+7}")
    k(f"v_max3_f32 v25, v25, v{s+8}, v{s+9}")
    k(f"v_max3_f32 v24, v24, v{s+10}, v{s+11}")
    k(f"v_max3_f32 v25, v25, v{s+12}, v{s+13}")
    k(f"v_max3_f32 v24, v24, v{s+14}, v{s+15}")
    k(f"""
    v_max_f32 v24, v24, v25
    v_mov_b32 v25, v24
    s_nop 1
    v_permlane32_swap_b32 v24, v25
    v_max_f32 v24, v24, v25
    v_and_b32 v24, 0xffff0000, v24
    v_lshrrev_b32 v25, 16, v24
    v_xor_b32 v25, 0x8000, v25
    v_cndmask_b32 v{vQ2}, v{vQ2}, v25, s[{sUP}:{sUP+1}]
    """)
    for i in range(16): k(f"v_sub_f32 v{s+i}, v{s+i}, v24")
    for kk in range(9):
        cur = kk & 1; nxt = cur ^ 1
        if kk < 8:
            after = 4 + (2 if kk + 2 <= 8 else 0)
            if kk == 0: after = 4 + 2
            k(f"s_waitcnt lgkmcnt({after})")
            QK(nxt, nxt, CF if kk + 1 == 8 else None)
        EXP(cur, 0, 8)
        CVT(cur, 0, 4)
        EXP(cur, 8, 12)
        k(f"s_waitcnt lgkmcnt({2 if kk + 2 <= 8 else 0})")
        PV(cur, 0)
        EXP(cur, 12, 16)
        k("s_nop 0")
        CVT(cur, 4, 8)
        if kk < 8: LV(kk + 1, nxt)
        else: k("s_nop 1")
        PV(cur, 1)
        if kk + 3 <= 8: LK(kk + 3, nxt)
        if kk < 8:
            k(f"s_cmp_eq_u32 s{sNT}, {kk+1}")
            k("s_cbranch_scc1 L_p2_done")
    k("L_p2_done:")
    k(f"""
    s_nop 11
    v_mov_b32 v24, v{OA+8}
    v_mov_b32 v25, v{OA+8}
    s_nop 1
    v_permlane32_swap_b32 v24, v25
    v_mov_b32 v26, {hex(f2u(2.0**60))}
    v_mov_b32 v27, {hex(f2u(2.0**-60))}
    v_cmp_nlt_f32 vcc, v25, v26
    v_cmp_ngt_f32 s[{sT0}:{sT0+1}], v25, v27
    s_or_b64 vcc, vcc, s[{sT0}:{sT0+1}]
    s_cbranch_vccnz L_slow
    L_p2_norm:
    v_rcp_f32 v25, v25
    s_nop 0
    """)
    for i in range(12): k(f"v_mul_f32 v{OA+i}, v{OA+i}, v25")
    k(f"""
    v_cvt_pk_bf16_f32 v{P}, v{OA}, v{OA+1}
    v_cvt_pk_bf16_f32 v{P+1}, v{OA+2}, v{OA+3}
    v_cvt_pk_bf16_f32 v{P+2}, v{OA+4}, v{OA+5}
    v_cvt_pk_bf16_f32 v{P+3}, v{OA+6}, v{OA+7}
    v_cvt_pk_bf16_f32 v{P+4}, v{OA+8}, v{OA+9}
    v_cvt_pk_bf16_f32 v{P+5}, v{OA+10}, v{OA+11}
    v_permlane32_swap_b32 v{P}, v{P+2}
    v_permlane32_swap_b32 v{P+1}, v{P+3}
    buffer_store_dwordx4 v[{P}:{P+3}], v{vOA}, s[{sWS}:{sWS+3}], 0 offen sc1
    s_mov_b32 exec_lo, -1
    s_mov_b32 exec_hi, 0
    buffer_store_dwordx2 v[{P+4}:{P+5}], v{vOH}, s[{sWS}:{sWS+3}], 0 offen sc1
    s_mov_b64 exec, -1
    """)
    stamp(8)
    k(f"""
    s_waitcnt vmcnt(0) lgkmcnt(0)
    s_barrier
    """)
    stamp(9)
    if stop <= 2:
        k("s_branch L_fin")
    k(f"""
    s_cmp_gt_u32 s{sWAVE}, 4
    s_cbranch_scc1 L_fin
    s_cmp_lt_u32 s{sWAVE}, 4
    s_cbranch_scc1 L_p3
    s_lshl_b32 s{sT0}, s{sRB}, 5
    s_add_u32 s{sT0}, s{sT0}, s{sH}
    s_lshl_b32 s{sT0}, s{sT0}, 7
    s_add_u32 s{sT0}, s{sT0}, {FL2_OFF}
    v_mov_b32 v9, 0
    v_mov_b32 v11, s{sTAG}
    s_lshl_b32 s{sT1}, s{sXCD}, 12
    s_add_u32 s{sT1}, s{sT1}, {FL2_OFF}
    v_lshlrev_b32 v7, 7, v0
    v_add_u32 v7, s{sT1}, v7
    s_mov_b64 exec, 1
    buffer_store_dword v11, v9, s[{sWS}:{sWS+3}], s{sT0} offen sc1
    s_mov_b32 exec_lo, -1
    s_mov_b32 exec_hi, 0
    """)
    poll("L_poll2", 7, None, sWS)
    k("s_mov_b64 exec, -1")
    stamp(10)
    k("s_barrier          ; BF")
    k("s_branch L_fin")

    NPRE = 7
    A3 = 100
    B3 = 16
    C3 = 236 + 0
    A3 = 96
    C3 = 236
    k("L_p3:")
    srd(sOUT, 10, 2621440)
    k(f"""
    v_lshrrev_b32 v2, 2, v0            ; 4g + r
    v_mul_u32_u24 v2, 160, v2
    v_and_b32 v3, 3, v0
    v_lshl_add_u32 v2, v3, 3, v2       ; steps 0..9
    v_add_u32 v3, {10*5120}, v2        ; steps 10..19
    v_lshrrev_b32 v4, 4, v0
    v_and_b32 v5, 15, v0
    v_lshlrev_b32 v6, 15, v4
    v_lshl_add_u32 v6, v5, 4, v6
    s_lshl_b32 s{sT0}, s{sXCD}, 8
    s_and_b32 s{sT1}, s{sJ}, 3
    s_lshl_b32 s{sT1}, s{sT1}, 6
    s_add_u32 s{sT0}, s{sT0}, s{sT1}
    s_lshl_b32 s{sT1}, s{sWAVE}, 4
    s_add_u32 s{sT0}, s{sT0}, s{sT1}     ; row0
    s_lshl_b32 s{sT1}, s{sT0}, 4
    s_add_u32 s{sT1}, s{sT1}, {O_OFF}
    v_add_u32 v7, s{sT0}, v5
    v_mul_u32_u24 v7, 1280, v7
    s_mul_i32 s{sT2}, s{sRB}, 160
    v_add_u32 v7, s{sT2}, v7
    v_lshl_add_u32 v8, v4, 3, v7
    v_and_b32 v9, 1, v4
    v_lshl_add_u32 v7, v9, 5, v7
    v_lshrrev_b32 v9, 1, v4
    v_lshl_add_u32 v7, v9, 4, v7
    """)
    def LA(ks):
        base = A3 + (ks % NPRE) * 20
        va = 2 if ks < 10 else 3
        o = (ks % 10) * 5120
        for tl in range(5):
            for t in range(2):
                a = base + tl * 4 + 2 * t
                k(f"ds_read_b64_tr_b16 v[{a}:{a+1}], v{va} offset:{o + t*16*160 + tl*32}")
    for ks in range(NPRE):
        LA(ks)
        k("s_waitcnt lgkmcnt(5)")
    for i in range(20): k(f"v_mov_b32 v{C3+i}, 0")
    k("s_barrier          ; BF")
    stamp(11)
    for ks in range(20):
        k(f"buffer_load_dwordx4 v[{B3+4*ks}:{B3+4*ks+3}], v6, s[{sWS}:{sWS+3}], s{sT1} offen sc1")
        if ks < 19: k(f"s_add_u32 s{sT1}, s{sT1}, {4*32768}")
    for ks in range(20):
        lg = 5 if (ks >= 1 and ks - 1 + NPRE < 20) else 0
        k(f"s_waitcnt vmcnt({19-ks}) lgkmcnt({lg})")
        base = A3 + (ks % NPRE) * 20
        for tl in range(5):
            a = base + tl * 4; c = C3 + tl * 4; b = B3 + 4 * ks
            k(f"v_mfma_f32_16x16x32_bf16 v[{c}:{c+3}], v[{a}:{a+3}], v[{b}:{b+3}], v[{c}:{c+3}]")
        if ks + NPRE < 20: LA(ks + NPRE)
    stamp(12)
    k("s_nop 7")
    for tl in range(5):
        c = C3 + tl * 4
        q = 16 + (tl >> 1) * 4 + (tl & 1) * 2
        k(f"v_cvt_pk_bf16_f32 v{q}, v{c}, v{c+1}")
        k(f"v_cvt_pk_bf16_f32 v{q+1}, v{c+2}, v{c+3}")
    k(f"""
    v_permlane16_swap_b32 v16, v18
    v_permlane16_swap_b32 v17, v19
    v_permlane16_swap_b32 v20, v22
    v_permlane16_swap_b32 v21, v23
    buffer_store_dwordx4 v[16:19], v7, s[{sOUT}:{sOUT+3}], 0 offen
    buffer_store_dwordx4 v[20:23], v7, s[{sOUT}:{sOUT+3}], 0 offen offset:64
    buffer_store_dwordx2 v[24:25], v8, s[{sOUT}:{sOUT+3}], 0 offen offset:128
    """)
    k("L_fin:")
    if opts.get("padto"):
        k(f'''
        L_pad:
        s_memrealtime s[60:61]
        s_waitcnt lgkmcnt(0)
        s_sub_u32 s60, s60, s62
        s_cmp_lt_u32 s60, {opts["padto"]}
        s_cbranch_scc1 L_pad
        ''')
    if stamps:
        k(f"""
        s_waitcnt vmcnt(0)
        s_memrealtime s[{sST+26}:{sST+27}]
        s_and_b32 s{sT0}, s{sWAVE}, 3
        s_cmp_lg_u32 s{sT0}, 0
        s_cbranch_scc1 L_end
        s_waitcnt lgkmcnt(0)
        s_lshl_b32 s{sT0}, s2, 1
        s_lshr_b32 s{sT1}, s{sWAVE}, 2
        s_add_u32 s{sT0}, s{sT0}, s{sT1}
        s_lshl_b32 s{sT0}, s{sT0}, 6
        s_add_u32 s{sT0}, s{sT0}, {STAMP_OFF}
        v_mov_b32 v1, 0
        """)
        for i in range(16): k(f"v_mov_b32 v{4+i}, s{sST+2*i}")
        for i in range(4): k(f"buffer_store_dwordx4 v[{4+4*i}:{7+4*i}], v1, s[{sWS}:{sWS+3}], s{sT0} offen offset:{16*i}")
        if opts.get("dbgst"):
            k(f"s_cmp_lg_u32 s2, {opts['dbgst']}")
            k("s_cbranch_scc1 L_end")
            k(f"s_cmp_lg_u32 s{sWAVE}, 0")
            k("s_cbranch_scc1 L_dbg4")
            for n, i in enumerate([1, 2, 3, 6, 7, 8, 9, 11, 12, 13]):
                k(f"v_subrev_u32 v2, s{sST}, v{4+i}")
                k(f"global_store_dword v1, v2, s[12:13] offset:{4+4*n}")
            k("s_branch L_end")
            k("L_dbg4:")
            for n, i in enumerate([4, 5, 8, 10]):
                k(f"v_subrev_u32 v2, s{sST}, v{4+i}")
                k(f"global_store_dword v1, v2, s[12:13] offset:{44+4*n}")
    k("L_end:")
    k("s_endpgm")

    k("L_slow:")
    s = S[0]
    k(f"""
    v_cndmask_b32 v{vQ2}, v{vQ2}, 0, s[{sUP}:{sUP+1}]
    v_mov_b32 v24, 0xff800000
    s_mov_b32 s{sT2}, 0               ; pass
    """)
    for i in range(16): k(f"v_mov_b32 v{OA+i}, 0")
    k(f"""
    L_slow_pass:
    s_mov_b32 s{sCNT}, 0
    L_slow_tile:
    s_sub_u32 s{sT3}, 8, s{sCNT}
    s_lshl_b32 s{sT3}, s{sT3}, 9
    v_add_u32 v26, s{sT3}, v{vKA1}
    v_add_u32 v27, s{sT3}, v{vKA2}
    v_add_u32 v28, s{sT3}, v{vVA[0]}
    v_add_u32 v29, s{sT3}, v{vVA[1]}
    ds_read_b128 v[{KF[0]}:{KF[0]+3}], v26
    ds_read_b64 v[{KF[0]+4}:{KF[0]+5}], v27
    ds_read_b64_tr_b16 v[{VF[0]}:{VF[0]+1}], v28
    ds_read_b64_tr_b16 v[{VF[0]+2}:{VF[0]+3}], v29
    ds_read_b64_tr_b16 v[{VF[0]+4}:{VF[0]+5}], v28 offset:256
    ds_read_b64_tr_b16 v[{VF[0]+6}:{VF[0]+7}], v29 offset:256
    """)
    for i in range(16): k(f"v_mov_b32 v{s+i}, 0")
    k(f"""
    s_cmp_lg_u32 s{sCNT}, 0
    s_cbranch_scc1 L_slow_nd
    """)
    for i in range(16): k(f"v_mov_b32 v{s+i}, v{CD+i}")
    k(f"""
    L_slow_nd:
    s_cmp_lg_u32 s{sCNT}, 8
    s_cbranch_scc1 L_slow_nf
    """)
    for i in range(16): k(f"v_mov_b32 v{s+i}, v{CF+i}")
    k(f"""
    L_slow_nf:
    s_waitcnt lgkmcnt(0)
    s_nop 1
    """)
    QK(0, 0, s)
    k(f"""
    s_nop 15
    s_cmp_lg_u32 s{sT2}, 0
    s_cbranch_scc1 L_slow_p2
    """)
    for i in range(16): k(f"v_max_f32 v24, v24, v{s+i}")
    k("s_branch L_slow_next")
    k("L_slow_p2:")
    for i in range(16): k(f"v_sub_f32 v{s+i}, v{s+i}, v24")
    EXP(0, 0, 16)
    k("s_nop 0")
    CVT(0, 0, 8)
    k("s_nop 1")
    PV(0, 0); PV(0, 1)
    k(f"""
    s_nop 15
    L_slow_next:
    s_add_u32 s{sCNT}, s{sCNT}, 1
    s_cmp_lt_u32 s{sCNT}, s{sNT}
    s_cbranch_scc1 L_slow_tile
    s_cmp_lg_u32 s{sT2}, 0
    s_cbranch_scc1 L_slow_done
    v_mov_b32 v25, v24
    s_nop 1
    v_permlane32_swap_b32 v24, v25
    v_max_f32 v24, v24, v25
    s_mov_b32 s{sT2}, 1
    s_branch L_slow_pass
    L_slow_done:
    v_mov_b32 v24, v{OA+8}
    v_mov_b32 v25, v{OA+8}
    s_nop 1
    v_permlane32_swap_b32 v24, v25
    s_branch L_p2_norm
    """)
    ne = opts.get("empty", 0)
    if ne:
        e = K("empty_kernel", (256, 1, 1), (64, 1, 1), 0, vgpr=8, sgpr=16)
        e("s_endpgm")
        return emit([k, e], launches=[k] + [e] * ne)
    return emit([k], single=True)

if __name__ == "__main__":
    out = sys.argv[1]
    opts = {}
    for a in sys.argv[2:]:
        kx, v = a.split("=")
        opts[kx] = int(v)
    open(out, "w").write(gen(opts))
```

```python
import sys, math, struct
from asmlib import *

def f2u(x): return struct.unpack("<I", struct.pack("<f", x))[0]

QKV_OFF = 0
O_OFF   = 8 << 20
CN1_OFF = 12 << 20
CN2_OFF = CN1_OFF + 768 * 128
STAMP_OFF = 13 << 20
WS_SIZE = 14 << 20
SLOT = 24576
NSLOT = 4
LDS_WO = 0
LDS_K = 102400
LDS_V = LDS_K + 24576
LDS_Q = LDS_V + 24576
LDS_TOTAL = 163840
QSCALE = (20 ** -0.5) * math.log2(math.e)
SPIN_MAX = 400000

def gen(opts):
    DEPTH = 3
    ATOM = opts.get('atom', 1)
    ATOM2 = opts.get('atom2', 1)
    stamps = opts.get("stamps", False)
    k = K("standalone__sliding_block__prompt_kernel", (256, 1, 1), (512, 1, 1), LDS_TOTAL, vgpr=256, sgpr=102)

    sX, sW, sWO, sOUT, sWS = 16, 20, 24, 28, 32
    sWAVE, sXCD, sJ, sR1, sCT = 36, 37, 38, 39, 40
    sH, sRB, sODD, sTAG = 41, 42, 43, 44
    sLW = 45
    sT0, sT1, sT2, sT3, sT4, sT5 = 46, 47, 48, 49, 50, 51
    sCNT, sFL = 52, 53
    sUP = 54
    sEX = 56
    sNT = 58
    sB0 = 59
    sSTO = 60
    sROLE = 61
    sCB = 100
    sUM = 101
    sNX = 99
    sSC = 62
    sU = 96
    sST = 64
    def stamp(idx):
        if stamps and (idx in opts.get("only", range(16)) or idx == 0):
            k(f"s_mem{'' if opts.get('cyc') else 'real'}time s[{sST+2*idx}:{sST+2*idx+1}]")
    def srd(d, lo, size):
        k(f"s_mov_b32 s{d}, s{lo}\ns_mov_b32 s{d+1}, s{lo+1}\ns_mov_b32 s{d+2}, {size}\ns_mov_b32 s{d+3}, 0x20000")

    if stamps:
        for i in range(16): k(f"s_mov_b64 s[{sST+2*i}:{sST+2*i+1}], 0")
    stamp(0)
    k(f"""
    s_cmp_ge_u32 s2, 256
    s_cbranch_scc1 L_end
    s_load_dwordx8 s[4:11], s[0:1], 0
    s_load_dwordx4 s[12:15], s[0:1], 32
    v_lshrrev_b32 v1, 6, v0
    v_and_b32 v0, 63, v0
    v_readfirstlane_b32 s{sWAVE}, v1
    s_and_b32 s{sXCD}, s2, 7
    s_lshr_b32 s{sJ}, s2, 3
    s_and_b32 s{sT0}, s{sXCD}, 3
    s_lshl_b32 s{sT0}, s{sT0}, 2
    s_and_b32 s{sT1}, s{sJ}, 3
    s_lshr_b32 s{sT2}, s{sXCD}, 2
    s_lshr_b32 s{sRB}, s{sJ}, 2
    s_lshl_b32 s{sT3}, s{sT2}, 3
    s_add_u32 s{sCT}, s{sT3}, s{sRB}
    s_lshl_b32 s{sT3}, s{sT2}, 1
    s_add_u32 s{sT3}, s{sT3}, s{sT1}
    s_cmp_ge_u32 s{sJ}, 28
    s_cselect_b32 s{sCT}, 7, s{sCT}
    s_cselect_b32 s{sT3}, s{sT3}, s{sT1}
    s_add_u32 s{sR1}, s{sT0}, s{sT3}
    s_cmp_ge_u32 s{sJ}, 30
    s_cselect_b32 s{sCT}, 15, s{sCT}
    s_lshl_b32 s{sH}, s{sXCD}, 2
    s_add_u32 s{sH}, s{sH}, s{sT1}
    s_and_b32 s{sODD}, s{sH}, 1
    s_mov_b32 s{sUP}, 0
    s_mov_b32 s{sUP+1}, -1
    s_cmp_lt_u32 s{sWAVE}, 4
    s_cbranch_scc1 L_compute
    """)
    vLX, vLW = 240, 241
    k(f"""
    s_mov_b32 s{sROLE}, 1
    s_sub_u32 s{sT0}, s{sWAVE}, 4
    v_lshrrev_b32 v2, 3, v0
    v_mul_u32_u24 v2, 1280, v2
    s_and_b32 s{sT1}, s{sT0}, 1
    s_lshl_b32 s{sT1}, s{sT1}, 2
    v_lshrrev_b32 v3, 4, v0
    v_add_u32 v4, s{sT1}, v3
    v_and_b32 v5, 7, v0
    v_xor_b32 v4, v4, v5
    v_lshl_add_u32 v2, v4, 4, v2
    s_mul_i32 s{sT2}, s{sR1}, {128*1280}
    s_mul_i32 s{sT3}, s{sT0}, {8*1280}
    s_add_u32 s{sT2}, s{sT2}, s{sT3}
    v_add_u32 v{vLX}, s{sT2}, v2
    v_mul_u32_u24 v4, 3840, v3
    v_lshlrev_b32 v5, 2, v3
    v_and_b32 v6, 15, v0
    v_xor_b32 v5, v5, v6
    v_lshl_add_u32 v3, v5, 4, v4
    s_lshl_b32 s{sT2}, s{sCT}, 8
    s_mul_i32 s{sT3}, s{sT0}, {4*3840}
    s_add_u32 s{sT2}, s{sT2}, s{sT3}
    v_add_u32 v{vLW}, s{sT2}, v3
    s_lshl_b32 s{sLW}, s{sT0}, 10
    s_waitcnt lgkmcnt(0)
    """)
    stamp(1)
    srd(sX, 4, 2621440); srd(sW, 6, 2457600)
    k(f"""
    s_cmp_ge_u32 s{sCT}, 15
    s_cbranch_scc1 L_ld_idle
    """)
    cnt = []
    def issue(c):
        slot = (c % NSLOT) * SLOT
        n = 0
        if c < 10:
            for t in range(4):
                k(f"s_add_u32 m0, s{sLW}, {slot + t*4096}")
                k(f"s_mov_b32 s{sT5}, {c*64*3840 + t*16*3840}")
                k(f"buffer_load_dwordx4 v{vLW}, s[{sW}:{sW+3}], s{sT5} offen lds"); n += 1
            for t in range(2):
                k(f"s_add_u32 m0, s{sLW}, {slot + 16384 + t*4096}")
                k(f"s_mov_b32 s{sT5}, {c*128 + t*32*1280}")
                k(f"buffer_load_dwordx4 v{vLX}, s[{sX}:{sX+3}], s{sT5} offen lds"); n += 1
        else:
            g = 2 + (c - 10) // 2; hf = (c - 10) & 1
            for p in range(5):
                k(f"s_add_u32 m0, s{sLW}, {slot + p*4096}")
                k(f"s_mov_b32 s{sT5}, {g*32*1280 + (hf*5+p)*128}")
                k(f"buffer_load_dwordx4 v{vLX}, s[{sX}:{sX+3}], s{sT5} offen lds"); n += 1
        cnt.append(n)
    for c in range(DEPTH):
        issue(c)
        if c == 0: stamp(2)
    stamp(3)
    srd(sWS, 14, WS_SIZE)
    k("s_branch L_prep")
    k("L_ld_idle:")
    srd(sWS, 14, WS_SIZE); srd(sWO, 8, 819200)
    k(f"""
    """)
    if opts.get("prewarm", 1):
        k(f"""
        v_lshlrev_b32 v2, 4, v0
        s_and_b32 s{sT0}, s{sJ}, 1
        s_mul_i32 s{sT0}, s{sT0}, 409600
        s_add_u32 s{sT0}, s{sT0}, s{sLW}        ; + lw*1024
        s_mov_b32 s{sT1}, 0
        s_mov_b32 m0, s{sLW}
        L_warm:
        buffer_load_dwordx4 v2, s[{sWO}:{sWO+3}], s{sT0} offen lds
        s_add_u32 s{sT0}, s{sT0}, 4096
        s_add_u32 s{sT1}, s{sT1}, 1
        s_waitcnt vmcnt(12)
        s_cmp_lt_u32 s{sT1}, 100
        s_cbranch_scc1 L_warm
        s_waitcnt vmcnt(0)
        """)
    k("s_branch L_prep")

    AREG = 96
    ACCS = [16, 32, 48, 16]
    BR = 64
    PK = 88
    vXL = [2, 3, 4, 5]; vXH = [6, 7, 8, 9]; vWL, vWH = 10, 11
    vSA, vSB, vTG, vZ0, vFA = 12, 13, 14, 15, 1
    k("L_compute:")
    k(f"""
    s_mov_b32 s{sROLE}, 0
    v_and_b32 v16, 31, v0
    v_lshrrev_b32 v17, 5, v0          ; h
    v_bfe_u32 v18, v0, 1, 3
    v_xor_b32 v18, v18, v17           ; y
    v_lshlrev_b32 v19, 7, v16         ; row*128
    """)
    for s in range(4):
        k(f"v_xor_b32 v20, {2*s}, v18\nv_lshl_add_u32 v{vXL[s]}, v20, 4, v19\nv_add_u32 v{vXH[s]}, {2*SLOT}, v{vXL[s]}")
    k(f"""
    v_bfe_u32 v20, v0, 2, 2           ; r
    v_lshl_add_u32 v21, v17, 3, v20   ; 8h + r
    v_lshlrev_b32 v21, 8, v21         ; *256
    v_bfe_u32 v22, v0, 4, 1           ; g&1
    v_bfe_u32 v23, v0, 1, 1           ; c>>1
    v_lshl_add_u32 v22, v22, 1, v23
    v_and_b32 v23, 1, v0
    v_lshl_add_u32 v21, v23, 3, v21
    v_lshl_add_u32 v21, v22, 4, v21
    v_xor_b32 v22, s{sWAVE}, v20
    v_lshl_add_u32 v{vWL}, v22, 6, v21
    v_add_u32 v{vWH}, {2*SLOT}, v{vWL}
    v_lshlrev_b32 v{vSA}, 4, v0               ; lane*16
    v_lshlrev_b32 v{vSB}, 4, v16
    v_lshl_add_u32 v{vSB}, v17, 15, v{vSB}    ; (l&31)*16 + h*32768
    v_mov_b32 v{vZ0}, 0
    s_lshl_b32 s{sT0}, s{sCT}, 2
    s_add_u32 s{sT0}, s{sT0}, s{sWAVE}
    s_lshl_b32 s{sSTO}, s{sT0}, 17
    s_lshl_b32 s{sT1}, s{sR1}, 11
    s_add_u32 s{sSTO}, s{sSTO}, s{sT1}
    ; consumers of this wave's 32 columns: ty = cg/20, c = cg%20 ; heads floor(8c/5) .. floor((8c+12)/5)-1 ; row blocks r>>1 (+1 for K,V)
    s_mul_i32 s{sT1}, s{sT0}, 205
    s_lshr_b32 s{sT1}, s{sT1}, 12             ; ty
    s_mul_i32 s{sT2}, s{sT1}, 20
    s_sub_u32 s{sT2}, s{sT0}, s{sT2}          ; c
    s_mul_i32 s{sT3}, s{sT2}, 1640
    s_lshr_b32 s{sT3}, s{sT3}, 10             ; floor(8c/5)
    s_lshl_b32 s{sT2}, s{sT2}, 3
    s_add_u32 s{sT2}, s{sT2}, 12
    s_mul_i32 s{sT2}, s{sT2}, 205
    s_lshr_b32 s{sT2}, s{sT2}, 10             ; floor((8c+12)/5)
    v_and_b32 v20, 3, v0
    v_add_u32 v20, s{sT3}, v20                ; head
    v_lshrrev_b32 v21, 2, v0                  ; Rsel
    s_lshr_b32 s{sT3}, s{sR1}, 1
    s_min_u32 s{sT1}, s{sT1}, 1
    s_add_u32 s{sT1}, s{sT1}, s{sT3}
    s_min_u32 s{sT1}, s{sT1}, 7
    v_add_u32 v21, s{sT3}, v21
    v_cmp_gt_u32 vcc, s{sT2}, v20
    v_cmp_ge_u32 s[{sT4}:{sT4+1}], s{sT1}, v21
    s_and_b64 s[{sEX}:{sEX+1}], vcc, s[{sT4}:{sT4+1}]
    v_lshl_add_u32 v20, v21, 5, v20
    v_mul_u32_u24 v{vFA}, 384, v20
    v_add_u32 v{vFA}, {CN1_OFF - 128}, v{vFA}
    s_cmp_lt_u32 s{sCT}, 5
    s_cselect_b32 s{sSC}, {hex(f2u(QSCALE))}, 1.0
    s_mov_b32 s{sSC+1}, s{sSC}
    s_waitcnt lgkmcnt(0)
    """)
    srd(sWS, 14, WS_SIZE)
    k(f"""
    s_cmp_lt_u32 s{sCT}, 15
    s_cbranch_scc1 L_p1_go
    s_and_b32 s{sT0}, s{sJ}, 1
    s_lshl_b32 s{sT0}, s{sT0}, 3
    s_add_u32 s{sT0}, s{sT0}, s{sXCD}
    s_lshl_b32 s{sT0}, s{sT0}, 2
    s_add_u32 s{sT0}, s{sT0}, s{sWAVE}
    s_mul_i32 s{sT0}, s{sT0}, {20*128}
    s_add_u32 s{sT0}, s{sT0}, {CN1_OFF}
    v_lshlrev_b32 v20, 7, v0
    v_mov_b32 v21, 1
    s_mov_b64 exec, 0xfffff
    buffer_store_dword v{vZ0}, v20, s[{sWS}:{sWS+3}], s{sT0} offen sc1
    s_mov_b64 exec, 1
    s_waitcnt vmcnt(0)
    global_atomic_add v{vZ0}, v21, s[12:13] sc1
    s_mov_b64 exec, -1
    s_branch L_prep
    L_p1_go:
    """)
    def xaddr(c, s):
        sl = c % NSLOT
        return (vXL[s] if sl < 2 else vXH[s]), (sl & 1) * SLOT
    def rdA(c, s):
        sl = c % NSLOT
        va = vWL if sl < 2 else vWH
        o = (sl & 1) * SLOT + s * 16 * 256
        a = AREG + 4 * (4 * c + s)
        k(f"ds_read_b64_tr_b16 v[{a}:{a+1}], v{va} offset:{o}")
        k(f"ds_read_b64_tr_b16 v[{a+2}:{a+3}], v{va} offset:{o + 4*256}")
    def rdB(c, s, off, f):
        va, o = xaddr(c, s)
        b = BR + 4 * f
        k(f"ds_read_b128 v[{b}:{b+3}], v{va} offset:{o + off}")
    def mf(acc, ks, f, first):
        a = AREG + 4 * ks; b = BR + 4 * f
        cs = "0" if first else f"v[{acc}:{acc+15}]"
        k(f"v_mfma_f32_32x32x16_bf16 v[{acc}:{acc+15}], v[{a}:{a+3}], v[{b}:{b+3}], {cs}")
    for c in range(10):
        k(f"s_barrier      ; B_{c}")
        if c == 0: stamp(1)
        fr = lambda s, g: (2 * s + g) % 6
        def rd(s):
            rdA(c, s); rdB(c, s, 16384, fr(s, 0)); rdB(c, s, 16384 + 4096, fr(s, 1))
        rd(0); rd(1); rd(2)
        if c == 4: k(f"global_load_dword v{vTG}, v{vZ0}, s[12:13] sc1")
        for s in range(4):
            k(f"s_waitcnt lgkmcnt({[8, 8, 4, 0][s]})")
            mf(ACCS[0], 4*c+s, fr(s, 0), c == 0 and s == 0)
            mf(ACCS[1], 4*c+s, fr(s, 1), c == 0 and s == 0)
            if s == 0: rd(3)
    k(f"""
    s_mov_b32 s{sCNT}, 0
    L_tagchk:
    s_waitcnt vmcnt(0)
    v_readfirstlane_b32 s{sTAG}, v{vTG}
    s_add_u32 s{sCNT}, s{sCNT}, 1
    s_cmp_ge_u32 s{sCNT}, {SPIN_MAX}
    s_cbranch_scc1 L_tagok
    s_cmp_ge_u32 s{sTAG}, 64
    s_cbranch_scc1 L_tagok
    global_load_dword v{vTG}, v{vZ0}, s[12:13] sc1
    s_branch L_tagchk
    L_tagok:
    v_mov_b32 v{vTG}, 1
    """)
    stamp(2)
    def ep_scale(acc):
        return [f"v_pk_mul_f32 v[{acc+2*i}:{acc+2*i+1}], v[{acc+2*i}:{acc+2*i+1}], s[{sSC}:{sSC+1}]" for i in range(8)]
    def ep_pair(c0, c1, q, vaddr, off_s):
        return [f"v_cvt_pk_bf16_f32 v{q}, v{c0}, v{c0+1}",
                f"v_cvt_pk_bf16_f32 v{q+1}, v{c0+2}, v{c0+3}",
                f"v_cvt_pk_bf16_f32 v{q+2}, v{c1}, v{c1+1}",
                f"v_cvt_pk_bf16_f32 v{q+3}, v{c1+2}, v{c1+3}",
                f"s_add_u32 s{sT5}, s{sSTO}, {off_s}",
                "s_nop 0",
                f"v_permlane32_swap_b32 v{q}, v{q+2}",
                f"v_permlane32_swap_b32 v{q+1}, v{q+3}",
                f"buffer_store_dwordx4 v[{q}:{q+3}], v{vaddr}, s[{sWS}:{sWS+3}], s{sT5} offen sc1"]
    def ep_part0():
        o = ep_scale(ACCS[0]) + ep_scale(ACCS[1])
        for b in range(4):
            o += ep_pair(ACCS[0] + 4*b, ACCS[1] + 4*b, PK + 4*(b & 1), vSA, b * 32768)
        return o
    def ep_part(g):
        acc = ACCS[g]
        o = ep_scale(acc)
        for b in (0, 2):
            o += ep_pair(acc + 4*b, acc + 4*b + 4, PK + 2*b, vSB, b * 32768 + g * 512)
        return o
    def flag(st, vm):
        return [f"s_mov_b64 exec, s[{sEX}:{sEX+1}]", f"s_waitcnt vmcnt({vm})",
                f"buffer_atomic_add v{vTG}, v{vFA}, s[{sWS}:{sWS+3}], 0 offen offset:{st*128} sc1", "s_mov_b64 exec, -1"]
    steps = []
    for c in range(10, 14):
        g = 2 + (c - 10) // 2; hf = (c - 10) & 1
        for p in range(5):
            for s in range(4):
                steps.append((c, g, hf * 20 + p * 4 + s, s, p * 4096))
    LOOK = 5
    fill = {}
    def spread(instrs, start, per):
        i = start
        while instrs:
            fill.setdefault(i, []).extend(instrs[:per]); instrs = instrs[per:]; i += 1
    spread(ep_part0(), 2, 3)
    spread(ep_part(2), 44, 3)
    F1AT = opts.get("f1at", 66)
    fill.setdefault(F1AT, []).extend(flag(1, 2))
    k("s_barrier      ; B_10")
    for i in range(LOOK):
        c, g, ks, s, off = steps[i]
        rdB(c, s, off, i % 6)
    for i, (c, g, ks, s, off) in enumerate(steps):
        n = i + LOOK
        if n < 80:
            cn, gn, ksn, sn, offn = steps[n]
            if cn != steps[n - 1][0]:
                k(f"s_barrier      ; B_{cn}")
                stamp({11: 5, 12: 6, 13: 4}[cn])
            rdB(cn, sn, offn, n % 6)
        k(f"s_waitcnt lgkmcnt({min(LOOK, 79 - i)})")
        if i == 79: k("s_barrier      ; B_14")
        mf(ACCS[g], ks, i % 6, ks == 0)
        for ins in fill.get(i, []): k(ins)
        if i == F1AT: stamp(15)
    stamp(14)
    k("s_nop 11")
    for ins in ep_part(3): k(ins)
    for ins in flag(2, 3): k(ins)

    vQ1, vQ2 = 16, 20
    vKA1, vKA2 = 2, 3
    vVA = [4, 5]
    vOA, vOH = 6, 7
    CD, CF = 32, 48
    S = [64, 80]
    P = 96
    KF = [104, 112]
    VF = [120, 128]
    OA = 136
    vCN = 8
    k("L_prep:")
    BIG = 2.0 ** 100
    k(f"""
    v_and_b32 v10, 31, v0              ; q
    v_lshrrev_b32 v11, 5, v0           ; h
    v_lshlrev_b32 v12, 2, v11
    v_sub_u32 v12, v10, v12            ; t = q - 4h
    v_cvt_f32_i32 v12, v12
    v_mul_f32 v12, {hex(f2u(BIG))}, v12
    """)
    for i in range(16):
        key = 8 * (i >> 2) + (i & 3)
        k(f"v_add_f32 v{CD+i}, {hex(f2u(-key*BIG)) if key else 0}, v12")
        k(f"v_min_f32 v{CD+i}, 0, v{CD+i}")
        k(f"v_sub_f32 v{CF+i}, {hex(f2u((key-1)*BIG)) if key != 1 else 0}, v12")
        k(f"v_min_f32 v{CF+i}, 0, v{CF+i}")
    k(f"""
    s_lshl_b32 s{sT0}, s{sWAVE}, 9        ; w*512
    v_lshlrev_b32 v13, 4, v10
    v_add_u32 v13, s{sT0}, v13            ; (32w+q)*16
    v_lshl_add_u32 v{vKA1}, v11, 13, v13
    v_add_u32 v{vKA1}, {LDS_K}, v{vKA1}
    s_lshl_b32 s{sT1}, s{sODD}, 3
    s_add_u32 s{sT2}, s{sT1}, {LDS_K+16384}
    v_add_u32 v{vKA2}, s{sT2}, v13
    s_sub_u32 s{sCB}, {LDS_K+16384+12*16+8}, s{sT1}
    v_mov_b32 v31, s{sCB}
    v_cndmask_b32 v{vKA2}, v{vKA2}, v31, s[{sUP}:{sUP+1}]
    v_lshl_add_u32 v21, v0, 8, v31
    v_lshl_add_u32 v22, v11, 12, v13
    v_add_u32 v22, {LDS_Q}, v22
    s_lshl_b32 s{sT1}, s{sODD}, 3
    s_add_u32 s{sT2}, s{sT1}, {LDS_Q+8192}
    v_add_u32 v23, s{sT2}, v13
    s_sub_u32 s{sT2}, {LDS_V + 16384 + 511*16 + 8}, s{sT1}
    v_mov_b32 v{vCN}, s{sT2}
    v_bfe_u32 v30, v0, 4, 1              ; g1
    v_bfe_u32 v9, v0, 1, 1               ; c>>1
    v_cmp_eq_u32 vcc, 1, v30
    v_mov_b32 v24, 2
    v_and_b32 v25, 1, v0                 ; c&1
    v_cndmask_b32 v9, v9, v24, vcc       ; p
    v_and_b32 v29, v25, v30
    v_mov_b32 v24, s{sODD}
    v_cndmask_b32 v25, v25, v24, vcc
    v_bfe_u32 v24, v0, 2, 2              ; r
    v_lshl_add_u32 v24, v11, 2, v24      ; 4h + r
    v_lshlrev_b32 v26, 2, v9             ; p<<2
    v_lshlrev_b32 v27, 13, v9            ; p*8192
    v_lshl_add_u32 v27, v25, 3, v27
    v_add_u32 v27, s{sT0}, v27
    v_add_u32 v27, {LDS_V}, v27
    v_xor_b32 v25, v24, v26
    v_lshl_add_u32 v{vVA[0]}, v25, 4, v27
    v_or_b32 v24, 8, v24
    v_xor_b32 v25, v24, v26
    v_lshl_add_u32 v{vVA[1]}, v25, 4, v27
    v_cmp_eq_u32 vcc, 1, v29
    s_nop 1
    v_cndmask_b32 v{vVA[0]}, v{vVA[0]}, v31, vcc
    v_cndmask_b32 v{vVA[1]}, v{vVA[1]}, v31, vcc
    s_lshr_b32 s{sT1}, s{sH}, 1
    s_mul_i32 s{sB0}, s{sT1}, 5            ; 5m
    s_mul_i32 s{sT2}, s{sODD}, 3
    s_add_u32 s{sT2}, s{sT2}, s{sB0}       ; blockA
    s_lshl_b32 s{sT3}, s{sRB}, 12          ; 256*RB*16
    s_lshl_b32 s{sT4}, s{sT2}, 15
    s_add_u32 s{sT4}, s{sT4}, s{sT3}
    s_add_u32 s{sT4}, s{sT4}, {O_OFF}
    v_lshl_add_u32 v{vOA}, v11, 15, v13
    v_add_u32 v{vOA}, s{sT4}, v{vOA}
    s_add_u32 s{sT4}, s{sB0}, 2
    s_lshl_b32 s{sT4}, s{sT4}, 15
    s_add_u32 s{sT4}, s{sT4}, s{sT3}
    s_lshl_b32 s{sT5}, s{sODD}, 3
    s_add_u32 s{sT4}, s{sT4}, s{sT5}
    s_add_u32 s{sT4}, s{sT4}, {O_OFF}
    v_add_u32 v{vOH}, s{sT4}, v13
    s_add_u32 s{sNT}, s{sWAVE}, 1
    s_cmp_lg_u32 s{sRB}, 0
    s_cselect_b32 s{sNT}, 9, s{sNT}
    """)
    for i in range(8): k(f"v_mov_b64 v[{OA+2*i}:{OA+2*i+1}], 0")
    k(f"""
    s_cmp_eq_u32 s{sROLE}, 1
    s_cbranch_scc1 L_role_ld
    """)
    vWOA = 200
    k(f"s_lshl_b32 s{sLW}, s{sWAVE}, 10\ns_lshl_b32 s{sT0}, s{sWAVE}, 6\nv_add_u32 v9, s{sT0}, v0\ns_mul_i32 s{sSTO}, s{sRB}, 160")
    for i in range(5):
        k(f"""
        v_add_u32 v10, {256*i}, v9
        v_mul_u32_u24 v11, 6554, v10
        v_lshrrev_b32 v11, 16, v11        ; rho (0..127)
        v_mul_u32_u24 v12, 10, v11
        v_sub_u32 v12, v10, v12           ; piece
        v_and_b32 v13, 0x63, v11
        v_bfe_u32 v24, v11, 2, 2          ; g
        v_lshl_add_u32 v13, v24, 3, v13
        v_bfe_u32 v24, v11, 4, 1          ; t
        v_lshl_add_u32 v13, v24, 2, v13   ; k
        v_mul_u32_u24 v13, 1280, v13
        v_lshl_add_u32 v{vWOA+i}, v12, 4, v13
        """)
    srd(sWO, 8, 819200)
    k(f"""
    s_cmp_ge_u32 s{sCT}, 15
    s_cbranch_scc1 L_idle_c
    """)
    for ins in flag(3, 1): k(ins)
    stamp(3)
    k("s_branch L_BD")
    k(f"""
    L_idle_c:
    v_mov_b32 v{vZ0}, 0
    s_barrier
    s_mov_b32 s{sCNT}, 0
    L_tagchk2:
    global_load_dword v{vTG}, v{vZ0}, s[12:13] sc1
    s_add_u32 s{sCNT}, s{sCNT}, 1
    s_waitcnt vmcnt(0)
    v_readfirstlane_b32 s{sTAG}, v{vTG}
    s_cmp_ge_u32 s{sCNT}, {SPIN_MAX}
    s_cbranch_scc1 L_BD
    s_cmp_lt_u32 s{sTAG}, 64
    s_cbranch_scc1 L_tagchk2
    """)
    k("s_branch L_BD")

    vP, vZ, vF = 200, 201, 202
    vU = 204
    TY = 80 * 32768
    k(f"""
    L_role_ld:
    v_mov_b32 v{vZ}, 0
    ; expected arrivals: (#units) * (1 + (lo != hi))
    s_lshl_b32 s{sT1}, s{sODD}, 1
    s_add_u32 s{sT1}, s{sT1}, s{sB0}
    s_add_u32 s{sT2}, s{sT1}, 2
    s_lshr_b32 s{sT1}, s{sT1}, 2
    s_lshr_b32 s{sT2}, s{sT2}, 2
    s_sub_u32 s{sT2}, s{sT2}, s{sT1}          ; 0 or 1
    s_cmp_eq_u32 s{sRB}, 0
    s_cselect_b32 s{sNX}, 6, 10
    s_lshl_b32 s{sNX}, s{sNX}, s{sT2}
    ; unit mask: all / without the previous block ; waves 6,7 take even / odd units
    s_cmp_eq_u32 s{sRB}, 0
    s_cselect_b32 s{sUM}, 0x333, 0x3ff if False else s{sUM}
    """.replace("s_cselect_b32 s%d, 0x333, 0x3ff if False else s%d" % (sUM, sUM), "s_movk_i32 s%d, 0x3ff\n    s_cselect_b32 s%d, 0x333, s%d" % (sUM, sUM, sUM)))
    k(f"""
    s_movk_i32 s{sT1}, 0x3ff
    s_cmp_eq_u32 s{sWAVE}, 6
    s_cselect_b32 s{sT1}, 0x155, s{sT1}
    s_cmp_eq_u32 s{sWAVE}, 7
    s_cselect_b32 s{sT1}, 0x2aa, s{sT1}
    s_and_b32 s{sUM}, s{sUM}, s{sT1}
    """)
    k(f"""
    s_sub_u32 s{sFL}, s{sWAVE}, 3
    s_min_u32 s{sFL}, s{sFL}, 3
    s_lshl_b32 s{sSTO}, s{sFL}, 9
    s_cmp_eq_u32 s{sFL}, 1
    s_cselect_b32 s{sSTO}, 0, s{sSTO}
    s_lshl_b32 s{sT0}, s{sRB}, 5
    s_add_u32 s{sT0}, s{sT0}, s{sH}
    s_mul_i32 s{sT0}, s{sT0}, 3
    s_add_u32 s{sT0}, s{sT0}, s{sFL}
    s_lshl_b32 s{sT0}, s{sT0}, 7
    s_add_u32 s{sT0}, s{sT0}, {CN1_OFF - 128}
    v_mov_b32 v{vF}, s{sT0}
    ; voffsets
    s_mul_i32 s{sT0}, s{sODD}, 3
    s_add_u32 s{sT0}, s{sT0}, s{sB0}
    s_lshl_b32 s{sT0}, s{sT0}, 15
    s_add_u32 s{sT1}, s{sB0}, 2
    s_lshl_b32 s{sT1}, s{sT1}, 15
    s_lshl_b32 s{sT2}, s{sRB}, 12
    s_add_u32 s{sT0}, s{sT0}, s{sT2}
    s_add_u32 s{sT1}, s{sT1}, s{sT2}
    v_lshlrev_b32 v217, 4, v0
    v_add_u32 v{vU}, s{sT0}, v217
    v_add_u32 v{vU+1}, 32768, v{vU}
    v_add_u32 v{vU+2}, s{sT1}, v217
    v_xor_b32 v{vU+3}, 64, v{vU+1}
    v_xor_b32 v{vU+4}, 128, v{vU+2}
    s_cmp_ge_u32 s{sCT}, 15
    s_cbranch_scc1 L_ld_idle2
    """)
    srd(sX, 4, 2621440); srd(sW, 6, 2457600)
    for c in range(14):
        k(f"s_waitcnt vmcnt({sum(cnt[c+1:])})")
        if c == 13: stamp(14)
        if c == 9: stamp(15)
        k(f"s_barrier      ; B_{c}")
        if len(cnt) < 14: issue(len(cnt))
    k(f"""
    L_ld_idle2:
    global_load_dword v{vP}, v{vZ}, s[12:13] sc1
    s_barrier
    s_mov_b32 s{sCNT}, 0
    L_tagchk3:
    s_waitcnt vmcnt(0)
    v_readfirstlane_b32 s{sTAG}, v{vP}
    s_add_u32 s{sCNT}, s{sCNT}, 1
    s_cmp_ge_u32 s{sCNT}, {SPIN_MAX}
    s_cbranch_scc1 L_tagok3
    s_cmp_ge_u32 s{sTAG}, 64
    s_cbranch_scc1 L_tagok3
    global_load_dword v{vP}, v{vZ}, s[12:13] sc1
    s_branch L_tagchk3
    L_tagok3:
    s_mov_b64 exec, 1
    s_mov_b32 s{sCNT}, 0
    L_poll1:
    {f"v_mov_b32 v{vP}, 0" if ATOM else ""}
    {f"buffer_atomic_add v{vP}, v{vF}, s[{sWS}:{sWS+3}], 0 offen sc0 sc1" if ATOM else f"buffer_load_dword v{vP}, v{vF}, s[{sWS}:{sWS+3}], 0 offen sc1"}
    s_add_u32 s{sCNT}, s{sCNT}, 1
    s_cmp_ge_u32 s{sCNT}, {SPIN_MAX}
    s_waitcnt vmcnt(0)
    s_cbranch_scc1 L_poll1_out
    v_cmp_gt_u32 vcc, s{sNX}, v{vP}
    s_cbranch_vccnz L_poll1
    L_poll1_out:
    s_mov_b32 exec_lo, -1
    s_cmp_eq_u32 s{sFL}, 1
    s_cselect_b32 exec_hi, -1, 0
    """)
    stamp(4)
    for u in (0, 1, 4, 5, 8, 9, 2, 3, 6, 7):
        ty = (u + 2) >> 2; t1 = (u + 2) & 3
        k(f"s_bitcmp1_b32 s{sUM}, {u}\ns_cbranch_scc0 L_skipu{u}")
        for p in range(3):
            ldsb = [LDS_Q + (t1 - 2) * 2048 + p * 4096, LDS_K + t1 * 2048 + p * 8192, LDS_V + t1 * 2048 + p * 8192][ty]
            vr = vU + p if (ty < 2 or p == 0) else vU + 2 + p
            k(f"s_add_u32 m0, s{sSTO}, {ldsb}")
            if p == 0: k(f"s_add_u32 s{sT5}, s{sSTO}, {ty * TY + (t1 - 2) * 2048}")
            else: k("s_nop 0")
            k(f"buffer_load_dwordx4 v{vr}, s[{sWS}:{sWS+3}], s{sT5} offen sc1 lds")
        k(f"L_skipu{u}:")
    stamp(5)
    k(f"""
    s_mov_b64 exec, -1
    s_waitcnt vmcnt(0)
    s_cmp_lg_u32 s{sWAVE}, 7
    s_cbranch_scc1 L_BD
    ds_write_b32 v{vCN}, v{vZ}
    s_waitcnt lgkmcnt(0)
    L_BD:
    s_barrier
    """)
    stamp(7)

    def LK(kk, buf):
        off = (8 - kk) * 512
        f = KF[buf]
        k(f"ds_read_b128 v[{f}:{f+3}], v{vKA1} offset:{off}")
        k(f"ds_read_b64 v[{f+4}:{f+5}], v{vKA2} offset:{off}")
    def LV(kk, buf):
        off = (8 - kk) * 512
        f = VF[buf]
        for u in range(2):
            for t in range(2):
                k(f"ds_read_b64_tr_b16 v[{f+4*u+2*t}:{f+4*u+2*t+1}], v{vVA[t]} offset:{off + u*256}")
    def QK(buf, sbuf, c):
        f = KF[buf]; s = S[sbuf]
        cs = "0" if c is None else f"v[{c}:{c+15}]"
        k(f"v_mfma_f32_32x32x16_bf16 v[{s}:{s+15}], v[{f}:{f+3}], v[{vQ1}:{vQ1+3}], {cs}")
        k(f"v_mfma_f32_32x32x8_bf16 v[{s}:{s+15}], v[{f+4}:{f+5}], v[{vQ2}:{vQ2+1}], v[{s}:{s+15}]")
    def EXP(sbuf, lo, hi):
        s = S[sbuf]
        for i in range(lo, hi): k(f"v_exp_f32 v{s+i}, v{s+i}")
    def CVT(sbuf, lo, hi):
        s = S[sbuf]
        for i in range(lo, hi): k(f"v_cvt_pk_bf16_f32 v{P+i}, v{s+2*i}, v{s+2*i+1}")
    def PV(buf, u):
        f = VF[buf] + 4 * u
        k(f"v_mfma_f32_32x32x16_bf16 v[{OA}:{OA+15}], v[{f}:{f+3}], v[{P+4*u}:{P+4*u+3}], v[{OA}:{OA+15}]")

    def wo_group(gi):
        for i in range(5):
            k(f"s_add_u32 m0, s{sLW}, {LDS_WO + (gi*5+i)*4096}")
            if i == 0: k(f"s_add_u32 s{sT5}, s{sSTO}, {gi*4*40960}")
            else: k("s_nop 0")
            k(f"buffer_load_dwordx4 v{vWOA+i}, s[{sWO}:{sWO+3}], s{sT5} offen lds")
    k(f"""
    v_mov_b32 v24, 0x3f80
    v_mov_b32 v25, 0
    s_mov_b64 exec, 0x3ffff
    ds_write_b64 v21, v[24:25]
    s_mov_b64 exec, -1
    """)
    k(f"ds_read_b128 v[{vQ1}:{vQ1+3}], v22")
    k(f"ds_read_b64 v[{vQ2}:{vQ2+1}], v23")
    LK(0, 0); LK(1, 1); LV(0, 0)
    k(f"""
    s_waitcnt lgkmcnt(8)
    v_cndmask_b32 v{vQ2}, v{vQ2}, 0, s[{sUP}:{sUP+1}]
    v_cndmask_b32 v{vQ2+1}, v{vQ2+1}, 0, s[{sUP}:{sUP+1}]
    s_waitcnt lgkmcnt(6)
    s_nop 0
    """)
    QK(0, 0, CD)
    LK(2, 0)
    s = S[0]
    k("s_nop 9")
    k(f"v_max3_f32 v24, v{s}, v{s+1}, v{s+2}")
    k(f"v_max3_f32 v25, v{s+3}, v{s+4}, v{s+5}")
    k(f"v_max3_f32 v24, v24, v{s+6}, v{s+7}")
    k(f"v_max3_f32 v25, v25, v{s+8}, v{s+9}")
    k(f"v_max3_f32 v24, v24, v{s+10}, v{s+11}")
    k(f"v_max3_f32 v25, v25, v{s+12}, v{s+13}")
    k(f"v_max3_f32 v24, v24, v{s+14}, v{s+15}")
    k(f"""
    v_max_f32 v24, v24, v25
    v_mov_b32 v25, v24
    s_nop 1
    v_permlane32_swap_b32 v24, v25
    v_max_f32 v24, v24, v25
    v_and_b32 v24, 0xffff0000, v24
    v_lshrrev_b32 v25, 16, v24
    v_xor_b32 v25, 0x8000, v25
    v_cndmask_b32 v{vQ2}, v{vQ2}, v25, s[{sUP}:{sUP+1}]
    """)
    for i in range(16): k(f"v_sub_f32 v{s+i}, v{s+i}, v24")
    for kk in range(9):
        cur = kk & 1; nxt = cur ^ 1
        if kk < 8:
            after = 4 + (2 if kk + 2 <= 8 else 0)
            k(f"s_waitcnt lgkmcnt({after})")
            QK(nxt, nxt, CF if kk + 1 == 8 else None)
        if kk < 5:
            k(f"s_cmp_eq_u32 s{sROLE}, 1\ns_cbranch_scc1 L_nowo{kk}")
            wo_group(kk)
            k(f"L_nowo{kk}:")
        EXP(cur, 0, 8)
        CVT(cur, 0, 4)
        EXP(cur, 8, 12)
        k(f"s_waitcnt lgkmcnt({2 if kk + 2 <= 8 else 0})")
        PV(cur, 0)
        EXP(cur, 12, 16)
        k("s_nop 0")
        CVT(cur, 4, 8)
        if kk < 8: LV(kk + 1, nxt)
        else: k("s_nop 1")
        PV(cur, 1)
        if kk + 3 <= 8: LK(kk + 3, nxt)
        if kk < 8:
            k(f"s_cmp_eq_u32 s{sNT}, {kk+1}")
            k(f"s_cbranch_scc1 {'L_worest%d' % (kk+1) if kk < 4 else 'L_p2_done'}")
    k("L_p2_done:")
    k(f"""
    s_lshl_b32 s{sT2}, s{sRB}, 5
    s_and_b32 s{sT3}, s{sWAVE}, 3
    s_add_u32 s{sT2}, s{sT2}, s{sT3}
    s_lshl_b32 s{sT2}, s{sT2}, 1
    s_add_u32 s{sT2}, s{sT2}, s{sROLE}
    s_lshl_b32 s{sT2}, s{sT2}, 7
    s_add_u32 s{sFL}, s{sT2}, {CN2_OFF}
    v_mov_b32 v26, {hex(f2u(2.0**60))}
    v_mov_b32 v27, {hex(f2u(2.0**-60))}
    v_mov_b32 v28, 1
    v_lshlrev_b32 v29, 10, v0
    s_nop 1
    v_mov_b32 v24, v{OA+8}
    v_mov_b32 v25, v{OA+8}
    s_nop 1
    v_permlane32_swap_b32 v24, v25
    v_cmp_nlt_f32 vcc, v25, v26
    v_cmp_ngt_f32 s[{sT0}:{sT0+1}], v25, v27
    s_or_b64 vcc, vcc, s[{sT0}:{sT0+1}]
    s_cbranch_vccnz L_slow
    L_p2_norm:
    v_rcp_f32 v25, v25
    s_nop 0
    """)
    for i in range(12): k(f"v_mul_f32 v{OA+i}, v{OA+i}, v25")
    k(f"""
    v_cvt_pk_bf16_f32 v{P}, v{OA}, v{OA+1}
    v_cvt_pk_bf16_f32 v{P+1}, v{OA+2}, v{OA+3}
    v_cvt_pk_bf16_f32 v{P+2}, v{OA+4}, v{OA+5}
    v_cvt_pk_bf16_f32 v{P+3}, v{OA+6}, v{OA+7}
    v_cvt_pk_bf16_f32 v{P+4}, v{OA+8}, v{OA+9}
    v_cvt_pk_bf16_f32 v{P+5}, v{OA+10}, v{OA+11}
    v_permlane32_swap_b32 v{P}, v{P+2}
    v_permlane32_swap_b32 v{P+1}, v{P+3}
    buffer_store_dwordx4 v[{P}:{P+3}], v{vOA}, s[{sWS}:{sWS+3}], 0 offen sc1
    s_mov_b32 exec_hi, 0
    buffer_store_dwordx2 v[{P+4}:{P+5}], v{vOH}, s[{sWS}:{sWS+3}], 0 offen sc1
    """)
    stamp(8)
    k(f"""
    s_movk_i32 exec_lo, 0xff
    s_waitcnt vmcnt(0)
    buffer_atomic_add v28, v29, s[{sWS}:{sWS+3}], s{sFL} offen sc1
    """)
    stamp(9)
    k(f"""
    s_cmp_eq_u32 s{sROLE}, 1
    s_cbranch_scc1 L_fin
    s_mov_b32 exec_lo, 1
    ds_add_u32 v{vCN}, v28
    s_mov_b64 exec, -1
    """)

    NPRE = 7
    B3 = 16
    A3 = 96
    C3 = 236
    srd(sOUT, 10, 2621440)
    k(f"""
    v_lshrrev_b32 v2, 2, v0            ; 4g + r
    v_mul_u32_u24 v2, 160, v2
    v_and_b32 v3, 3, v0
    v_lshl_add_u32 v2, v3, 3, v2       ; steps 0..9
    v_add_u32 v3, {10*5120}, v2        ; steps 10..19
    v_lshrrev_b32 v4, 4, v0
    v_and_b32 v5, 15, v0
    v_lshlrev_b32 v6, 15, v4
    v_lshl_add_u32 v6, v5, 4, v6
    s_lshl_b32 s{sT0}, s{sXCD}, 3
    s_and_b32 s{sT1}, s{sJ}, 3
    s_add_u32 s{sT0}, s{sT0}, s{sT1}
    s_lshr_b32 s{sT1}, s{sWAVE}, 1
    s_lshl_b32 s{sT1}, s{sT1}, 2
    s_add_u32 s{sT0}, s{sT0}, s{sT1}     ; q tile
    s_lshl_b32 s{sT2}, s{sXCD}, 5
    s_add_u32 s{sT2}, s{sT2}, s{sJ}
    s_lshl_b32 s{sT2}, s{sT2}, 1
    s_lshr_b32 s{sT3}, s{sWAVE}, 1
    s_add_u32 s{sT2}, s{sT2}, s{sT3}
    s_lshl_b32 s{sT2}, s{sT2}, 7
    s_add_u32 s{sT2}, s{sT2}, {CN2_OFF}
    v_mov_b32 v10, s{sT2}
    s_lshl_b32 s{sT0}, s{sT0}, 5
    s_and_b32 s{sT1}, s{sWAVE}, 1
    s_lshl_b32 s{sT1}, s{sT1}, 4
    s_add_u32 s{sT0}, s{sT0}, s{sT1}     ; row0
    s_lshl_b32 s{sT1}, s{sT0}, 4
    s_add_u32 s{sT1}, s{sT1}, {O_OFF}
    v_add_u32 v7, s{sT0}, v5
    v_mul_u32_u24 v7, 1280, v7
    s_mul_i32 s{sT2}, s{sRB}, 160
    v_add_u32 v7, s{sT2}, v7
    v_lshl_add_u32 v9, v4, 3, v7
    v_and_b32 v11, 1, v4
    v_lshl_add_u32 v7, v11, 5, v7
    v_lshrrev_b32 v11, 1, v4
    v_lshl_add_u32 v7, v11, 4, v7
    L_c1wait:
    ds_read_b32 v11, v{vCN}
    s_waitcnt lgkmcnt(0)
    v_cmp_gt_u32 vcc, 4, v11
    s_cbranch_vccnz L_c1wait
    """)
    def LA(ks):
        base = A3 + (ks % NPRE) * 20
        va = 2 if ks < 10 else 3
        o = (ks % 10) * 5120
        for tl in range(5):
            for t in range(2):
                a = base + tl * 4 + 2 * t
                k(f"ds_read_b64_tr_b16 v[{a}:{a+1}], v{va} offset:{o + t*16*160 + tl*32}")
    for ks in range(NPRE):
        LA(ks)
        k("s_waitcnt lgkmcnt(5)")
    k(f"""
    s_mov_b64 exec, 1
    {"s_memrealtime s[%d:%d]" % (sST+20, sST+21) if stamps else ""}
    s_mov_b32 s{sCNT}, 0
    L_poll2:
    {"v_mov_b32 v11, 0" if ATOM2 else ""}
    {f"buffer_atomic_add v11, v10, s[{sWS}:{sWS+3}], 0 offen sc0 sc1" if ATOM2 else f"buffer_load_dword v11, v10, s[{sWS}:{sWS+3}], 0 offen sc1"}
    s_add_u32 s{sCNT}, s{sCNT}, 1
    s_cmp_ge_u32 s{sCNT}, {SPIN_MAX}
    s_waitcnt vmcnt(0)
    s_cbranch_scc1 L_poll2_out
    v_cmp_gt_u32 vcc, 32, v11
    s_cbranch_vccnz L_poll2
    L_poll2_out:
    s_mov_b64 exec, -1
    """)
    stamp(11)
    for ks in range(20):
        k(f"buffer_load_dwordx4 v[{B3+4*ks}:{B3+4*ks+3}], v6, s[{sWS}:{sWS+3}], s{sT1} offen sc1")
        if ks < 19: k(f"s_add_u32 s{sT1}, s{sT1}, {4*32768}")
    for ks in range(20):
        lg = 5 if (ks >= 1 and ks - 1 + NPRE < 20) else 0
        k(f"s_waitcnt vmcnt({19-ks}) lgkmcnt({lg})")
        base = A3 + (ks % NPRE) * 20
        for tl in range(5):
            a = base + tl * 4; c = C3 + tl * 4; b = B3 + 4 * ks
            cs = "0" if ks == 0 else f"v[{c}:{c+3}]"
            k(f"v_mfma_f32_16x16x32_bf16 v[{c}:{c+3}], v[{a}:{a+3}], v[{b}:{b+3}], {cs}")
        if ks + NPRE < 20: LA(ks + NPRE)
    stamp(12)
    k("s_nop 7")
    for tl in range(5):
        c = C3 + tl * 4
        q = 16 + (tl >> 1) * 4 + (tl & 1) * 2
        k(f"v_cvt_pk_bf16_f32 v{q}, v{c}, v{c+1}")
        k(f"v_cvt_pk_bf16_f32 v{q+1}, v{c+2}, v{c+3}")
    osc = " sc1" if opts.get("outsc1") else (" nt" if opts.get("outnt") else "")
    k(f"""
    v_permlane16_swap_b32 v16, v18
    v_permlane16_swap_b32 v17, v19
    v_permlane16_swap_b32 v20, v22
    v_permlane16_swap_b32 v21, v23
    buffer_store_dwordx4 v[16:19], v7, s[{sOUT}:{sOUT+3}], 0 offen{osc}
    buffer_store_dwordx4 v[20:23], v7, s[{sOUT}:{sOUT+3}], 0 offen offset:64{osc}
    buffer_store_dwordx2 v[24:25], v9, s[{sOUT}:{sOUT+3}], 0 offen offset:128{osc}
    """)
    k("L_fin:")
    if stamps:
        SW = opts.get("sw", 0)
        k(f"""
        s_mov_b64 exec, -1
        s_waitcnt vmcnt(0)
        s_mem{'' if opts.get('cyc') else 'real'}time s[{sST+26}:{sST+27}]
        s_and_b32 s{sT0}, s{sWAVE}, 3
        s_cmp_lg_u32 s{sT0}, {SW}
        s_cbranch_scc1 L_end
        s_waitcnt lgkmcnt(0)
        s_lshl_b32 s{sT0}, s2, 1
        s_lshr_b32 s{sT1}, s{sWAVE}, 2
        s_add_u32 s{sT0}, s{sT0}, s{sT1}
        s_lshl_b32 s{sT0}, s{sT0}, 6
        s_add_u32 s{sT0}, s{sT0}, {STAMP_OFF}
        v_mov_b32 v1, 0
        """)
        for i in range(16): k(f"v_mov_b32 v{4+i}, s{sST+2*i}")
        for i in range(4): k(f"buffer_store_dwordx4 v[{4+4*i}:{7+4*i}], v1, s[{sWS}:{sWS+3}], s{sT0} offen offset:{16*i}")
    k("L_end:")
    k("s_endpgm")

    for g in range(1, 5):
        k(f"L_worest{g}:")
        k(f"s_cmp_eq_u32 s{sROLE}, 1\ns_cbranch_scc1 L_p2_done")
        wo_group(g)
    k("s_branch L_p2_done")
    k("L_slow:")
    s = S[0]
    k(f"""
    v_cndmask_b32 v{vQ2}, v{vQ2}, 0, s[{sUP}:{sUP+1}]
    v_mov_b32 v24, 0xff800000
    s_mov_b32 s{sT2}, 0               ; pass
    """)
    for i in range(16): k(f"v_mov_b32 v{OA+i}, 0")
    k(f"""
    L_slow_pass:
    s_mov_b32 s{sCNT}, 0
    L_slow_tile:
    s_sub_u32 s{sT3}, 8, s{sCNT}
    s_lshl_b32 s{sT3}, s{sT3}, 9
    v_add_u32 v26, s{sT3}, v{vKA1}
    v_add_u32 v27, s{sT3}, v{vKA2}
    v_add_u32 v30, s{sT3}, v{vVA[0]}
    v_add_u32 v31, s{sT3}, v{vVA[1]}
    ds_read_b128 v[{KF[0]}:{KF[0]+3}], v26
    ds_read_b64 v[{KF[0]+4}:{KF[0]+5}], v27
    ds_read_b64_tr_b16 v[{VF[0]}:{VF[0]+1}], v30
    ds_read_b64_tr_b16 v[{VF[0]+2}:{VF[0]+3}], v31
    ds_read_b64_tr_b16 v[{VF[0]+4}:{VF[0]+5}], v30 offset:256
    ds_read_b64_tr_b16 v[{VF[0]+6}:{VF[0]+7}], v31 offset:256
    """)
    for i in range(16): k(f"v_mov_b32 v{s+i}, 0")
    k(f"""
    s_cmp_lg_u32 s{sCNT}, 0
    s_cbranch_scc1 L_slow_nd
    """)
    for i in range(16): k(f"v_mov_b32 v{s+i}, v{CD+i}")
    k(f"""
    L_slow_nd:
    s_cmp_lg_u32 s{sCNT}, 8
    s_cbranch_scc1 L_slow_nf
    """)
    for i in range(16): k(f"v_mov_b32 v{s+i}, v{CF+i}")
    k(f"""
    L_slow_nf:
    s_waitcnt lgkmcnt(0)
    s_nop 1
    """)
    QK(0, 0, s)
    k(f"""
    s_nop 15
    s_cmp_lg_u32 s{sT2}, 0
    s_cbranch_scc1 L_slow_p2
    """)
    for i in range(16): k(f"v_max_f32 v24, v24, v{s+i}")
    k("s_branch L_slow_next")
    k("L_slow_p2:")
    for i in range(16): k(f"v_sub_f32 v{s+i}, v{s+i}, v24")
    EXP(0, 0, 16)
    k("s_nop 0")
    CVT(0, 0, 8)
    k("s_nop 1")
    PV(0, 0); PV(0, 1)
    k(f"""
    s_nop 15
    L_slow_next:
    s_add_u32 s{sCNT}, s{sCNT}, 1
    s_cmp_lt_u32 s{sCNT}, s{sNT}
    s_cbranch_scc1 L_slow_tile
    s_cmp_lg_u32 s{sT2}, 0
    s_cbranch_scc1 L_slow_done
    v_mov_b32 v25, v24
    s_nop 1
    v_permlane32_swap_b32 v24, v25
    v_max_f32 v24, v24, v25
    s_mov_b32 s{sT2}, 1
    s_branch L_slow_pass
    L_slow_done:
    v_mov_b32 v24, v{OA+8}
    v_mov_b32 v25, v{OA+8}
    s_nop 1
    v_permlane32_swap_b32 v24, v25
    s_branch L_p2_norm
    """)
    return emit([k], single=True)

if __name__ == "__main__":
    out = sys.argv[1]
    opts = {}
    for a in sys.argv[2:]:
        kx, v = a.split("=")
        opts[kx] = [int(x) for x in v.split(',')] if kx == 'only' else int(v)
    open(out, "w").write(gen(opts))
```

```python
import sys, math, struct
from asmlib import *

def f2u(x): return struct.unpack("<I", struct.pack("<f", x))[0]

QKV_OFF = 0
O_OFF   = 8 << 20
CN1_OFF = 12 << 20
CN2_OFF = CN1_OFF + 768 * 128
STAMP_OFF = 13 << 20
WS_SIZE = 14 << 20
SLOT = 28672
NSLOT = 4
LDS_WO = 0
LDS_K = 102400
LDS_V = LDS_K + 24576
LDS_Q = LDS_V + 24576
LDS_TOTAL = 163840
QSCALE = (20 ** -0.5) * math.log2(math.e)
SPIN_MAX = 400000
NEG = 0xf149f2ca

def gen(opts):
    DEPTH = opts.get("depth", 3)
    NCH = 12
    CODEPF = ""
    if opts.get("codepf"):
        CODEPF = "s_getpc_b64 s[46:47]\nv_lshlrev_b32 v20, 6, v0\ns_lshl_b32 s48, s36, 12\nv_add_u32 v20, s48, v20\nglobal_load_dword v21, v20, s[46:47]\ns_waitcnt vmcnt(0)"
    stamps = opts.get("stamps", False)
    k = K("standalone__sliding_block__prompt_kernel", (256, 1, 1), (512, 1, 1), LDS_TOTAL, vgpr=256, sgpr=102)

    sX, sW, sWO, sOUT, sWS = 16, 20, 24, 28, 32
    sWAVE, sXCD, sJ, sR1, sCT = 36, 37, 38, 39, 40
    sH, sRB, sODD, sTAG = 41, 42, 43, 44
    sLW = 45
    sT0, sT1, sT2, sT3, sT4, sT5 = 46, 47, 48, 49, 50, 51
    sCNT, sFL = 52, 53
    sUP = 54
    sEX = 56
    sNT = 58
    sB0 = 59
    sSTO = 60
    sROLE = 61
    sSC = 62
    sST = 64
    sUM, sNX, sWB = 98, 99, 100
    def astamp(idx):
        if stamps and opts.get("attst"): k(f"s_mem{'' if opts.get('cyc') else 'real'}time s[{sST+2*idx}:{sST+2*idx+1}]")
    def stamp(idx):
        if opts.get("attst") and idx in (1, 2, 3, 14, 15, 5, 6): return
        if stamps and (idx in opts.get("only", range(16)) or idx == 0):
            k(f"s_mem{'' if opts.get('cyc') else 'real'}time s[{sST+2*idx}:{sST+2*idx+1}]")
    def srd(d, lo, size):
        k(f"s_mov_b32 s{d}, s{lo}\ns_mov_b32 s{d+1}, s{lo+1}\ns_mov_b32 s{d+2}, {size}\ns_mov_b32 s{d+3}, 0x20000")
    def readychk(lab, vreg, vz, issue_first):
        k(f"s_mov_b32 s{sCNT}, 0")
        if issue_first: k(f"global_load_dword v{vreg}, v{vz}, s[12:13] sc1")
        k(f"""
        {lab}:
        s_waitcnt vmcnt(0)
        v_readfirstlane_b32 s{sTAG}, v{vreg}
        s_add_u32 s{sCNT}, s{sCNT}, 1
        s_cmp_ge_u32 s{sCNT}, {SPIN_MAX}
        s_cbranch_scc1 {lab}_ok
        s_cmp_ge_u32 s{sTAG}, 64
        s_cbranch_scc1 {lab}_ok
        global_load_dword v{vreg}, v{vz}, s[12:13] sc1
        s_branch {lab}
        {lab}_ok:
        """)
    def gpoll(lab, vreg, vaddr, target):
        k(f"""
        s_mov_b32 s{sCNT}, 0
        {lab}:
        v_mov_b32 v{vreg}, 0
        buffer_atomic_add v{vreg}, v{vaddr}, s[{sWS}:{sWS+3}], 0 offen sc0 sc1
        s_add_u32 s{sCNT}, s{sCNT}, 1
        s_cmp_ge_u32 s{sCNT}, {SPIN_MAX}
        s_waitcnt vmcnt(0)
        s_cbranch_scc1 {lab}_out
        v_cmp_gt_u32 vcc, {target}, v{vreg}
        s_cbranch_vccnz {lab}
        {lab}_out:
        """)
    def lwait(lab, vreg, vaddr, off, target):
        k(f"""
        {lab}:
        ds_read_b32 v{vreg}, v{vaddr} offset:{off}
        s_waitcnt lgkmcnt(0)
        v_cmp_gt_u32 vcc, {target}, v{vreg}
        s_cbranch_vccnz {lab}
        """)

    if stamps:
        for i in range(16): k(f"s_mov_b64 s[{sST+2*i}:{sST+2*i+1}], 0")
    stamp(0)
    k(f"""
    s_cmp_ge_u32 s2, 256
    s_cbranch_scc1 L_end
    s_load_dwordx8 s[4:11], s[0:1], 0
    s_load_dwordx4 s[12:15], s[0:1], 32
    v_lshrrev_b32 v1, 6, v0
    v_and_b32 v0, 63, v0
    v_readfirstlane_b32 s{sWAVE}, v1
    s_and_b32 s{sXCD}, s2, 7
    s_lshr_b32 s{sJ}, s2, 3
    {"s_xor_b32 s%d, s%d, 4" % (sWAVE, sWAVE) if opts.get("swap") else ""}
    s_and_b32 s{sT0}, s{sXCD}, 3
    s_lshl_b32 s{sT0}, s{sT0}, 2
    s_and_b32 s{sT1}, s{sJ}, 3
    s_lshr_b32 s{sT2}, s{sXCD}, 2
    s_lshr_b32 s{sRB}, s{sJ}, 2
    s_lshl_b32 s{sT3}, s{sT2}, 3
    s_add_u32 s{sCT}, s{sT3}, s{sRB}
    s_lshl_b32 s{sT3}, s{sT2}, 1
    s_add_u32 s{sT3}, s{sT3}, s{sT1}
    s_cmp_ge_u32 s{sJ}, 28
    s_cselect_b32 s{sCT}, 7, s{sCT}
    s_cselect_b32 s{sT3}, s{sT3}, s{sT1}
    s_add_u32 s{sR1}, s{sT0}, s{sT3}
    s_cmp_ge_u32 s{sJ}, 30
    s_cselect_b32 s{sCT}, 15, s{sCT}
    s_lshl_b32 s{sH}, s{sXCD}, 2
    s_add_u32 s{sH}, s{sH}, s{sT1}
    s_and_b32 s{sODD}, s{sH}, 1
    s_mov_b32 s{sUP}, 0
    s_mov_b32 s{sUP+1}, -1
    """)
    if opts.get("codepf", 1):
        k(f"""
        s_cmp_lt_u32 s{sJ}, 30
        s_cbranch_scc1 L_nopf
        s_getpc_b64 s[{sT2}:{sT2+1}]
        s_lshl_b32 s{sT0}, s{sWAVE}, 12
        v_lshlrev_b32 v2, 6, v0
        v_add_u32 v2, s{sT0}, v2
        v_min_u32 v2, L_code_end - L_nopf, v2
        global_load_dword v255, v2, s[{sT2}:{sT2+1}]
        L_nopf:
        """)
    k(f"""
    s_cmp_lt_u32 s{sWAVE}, 4
    s_cbranch_scc1 L_compute
    """)
    vLX, vLW = 240, 241
    k(f"""
    s_mov_b32 s{sROLE}, 1
    s_sub_u32 s{sT0}, s{sWAVE}, 4
    v_lshrrev_b32 v2, 3, v0
    v_mul_u32_u24 v2, 1280, v2
    s_and_b32 s{sT1}, s{sT0}, 1
    s_lshl_b32 s{sT1}, s{sT1}, 2
    v_lshrrev_b32 v3, 4, v0
    v_add_u32 v4, s{sT1}, v3
    v_and_b32 v5, 7, v0
    v_xor_b32 v4, v4, v5
    v_lshl_add_u32 v2, v4, 4, v2
    s_mul_i32 s{sT2}, s{sR1}, {128*1280}
    s_mul_i32 s{sT3}, s{sT0}, {8*1280}
    s_add_u32 s{sT2}, s{sT2}, s{sT3}
    v_add_u32 v{vLX}, s{sT2}, v2
    v_mul_u32_u24 v4, 3840, v3
    v_lshlrev_b32 v5, 2, v3
    v_and_b32 v6, 15, v0
    v_xor_b32 v5, v5, v6
    v_lshl_add_u32 v3, v5, 4, v4
    s_lshl_b32 s{sT2}, s{sCT}, 8
    s_mul_i32 s{sT3}, s{sT0}, {4*3840}
    s_add_u32 s{sT2}, s{sT2}, s{sT3}
    v_add_u32 v{vLW}, s{sT2}, v3
    s_lshl_b32 s{sLW}, s{sT0}, 10
    s_and_b32 s{sT1}, s{sJ}, 3
    s_add_u32 s{sT1}, s{sT1}, s{sRB}
    s_and_b32 s{sT1}, s{sT1}, {1 if opts.get('rot') else 0}
    s_mul_i32 s96, s{sT1}, {5*64*3840}
    s_mul_i32 s97, s{sT1}, 640
    s_waitcnt lgkmcnt(0)
    """)
    stamp(1)
    srd(sX, 4, 2621440); srd(sW, 6, 2457600)
    k(f"""
    s_cmp_ge_u32 s{sCT}, 15
    s_cbranch_scc1 L_ld_idle
    """)
    cnt = []
    def issue(c):
        slot = ((c + 3) % NSLOT) * SLOT
        n = 0
        if c < 10:
            for t in range(4):
                k(f"s_add_u32 m0, s{sLW}, {slot + t*4096}")
                k(f"s_{'add' if c < 5 else 'sub'}_u32 s{sT5}, {c*64*3840 + t*16*3840}, s96")
                k(f"buffer_load_dwordx4 v{vLW}, s[{sW}:{sW+3}], s{sT5} offen lds"); n += 1
            for t in range(3):
                k(f"s_add_u32 m0, s{sLW}, {slot + 16384 + t*4096}")
                k(f"s_{'add' if c < 5 else 'sub'}_u32 s{sT5}, {c*128 + t*32*1280}, s97")
                k(f"buffer_load_dwordx4 v{vLX}, s[{sX}:{sX+3}], s{sT5} offen lds"); n += 1
        else:
            hf = c - 10
            for p in range(5):
                k(f"s_add_u32 m0, s{sLW}, {slot + p*4096}")
                k(f"s_{'add' if hf == 0 else 'sub'}_u32 s{sT5}, {3*32*1280 + (hf*5+p)*128}, s97")
                k(f"buffer_load_dwordx4 v{vLX}, s[{sX}:{sX+3}], s{sT5} offen lds"); n += 1
        cnt.append(n)
    for c in range(DEPTH):
        issue(c)
        if c == 0: stamp(2)
    stamp(3)
    srd(sWS, 14, WS_SIZE)
    k("s_branch L_prep")
    k("L_ld_idle:")
    srd(sWS, 14, WS_SIZE); srd(sWO, 8, 819200)
    TP = opts.get("tailpf", 0)
    if TP:
        k(f"""
        v_lshlrev_b32 v2, 4, v0
        s_mov_b32 m0, s{sLW}
        s_and_b32 s{sT0}, s{sXCD}, 3
        s_lshl_b32 s{sT0}, s{sT0}, 2
        s_and_b32 s{sT1}, s{sJ}, 1
        s_lshl_b32 s{sT2}, s{sT1}, 1
        s_add_u32 s{sT0}, s{sT0}, s{sT2}
        s_mul_i32 s{sT0}, s{sT0}, {128*1280}
        s_add_u32 s{sT0}, s{sT0}, {96*1280}
        s_add_u32 s{sT0}, s{sT0}, s{sLW}
        s_mul_i32 s{sT2}, s{sT1}, {32*TP*3840}
        s_lshr_b32 s{sT3}, s{sLW}, 11
        s_mul_i32 s{sT3}, s{sT3}, 3840
        s_add_u32 s{sT2}, s{sT2}, s{sT3}
        s_lshr_b32 s{sT3}, s{sXCD}, 2
        s_mul_i32 s{sT3}, s{sT3}, 1792
        s_add_u32 s{sT2}, s{sT2}, s{sT3}
        s_and_b32 s{sT3}, s{sLW}, 1024
        s_add_u32 s{sT2}, s{sT2}, s{sT3}
        s_add_u32 s{sT2}, s{sT2}, {(640-64*TP)*3840}
        s_mov_b32 s{sT1}, 0
        L_tpw:
        buffer_load_dwordx4 v2, s[{sW}:{sW+3}], s{sT2} offen lds
        s_add_u32 s{sT2}, s{sT2}, {2*3840}
        s_add_u32 s{sT1}, s{sT1}, 1
        s_waitcnt vmcnt(12)
        s_cmp_lt_u32 s{sT1}, {16*TP}
        s_cbranch_scc1 L_tpw
        s_mov_b32 s{sT1}, 0
        L_tpx:
        buffer_load_dwordx4 v2, s[{sX}:{sX+3}], s{sT0} offen lds
        s_add_u32 s{sT0}, s{sT0}, 4096
        s_add_u32 s{sT1}, s{sT1}, 1
        s_cmp_eq_u32 s{sT1}, 10
        s_cselect_b32 s{sT3}, {128*1280 - 40960}, 0
        s_add_u32 s{sT0}, s{sT0}, s{sT3}
        s_waitcnt vmcnt(12)
        s_cmp_lt_u32 s{sT1}, 20
        s_cbranch_scc1 L_tpx
        """)
    k(f"""
    v_lshlrev_b32 v2, 4, v0
    s_and_b32 s{sT0}, s{sJ}, 1
    s_mul_i32 s{sT0}, s{sT0}, 409600
    s_add_u32 s{sT0}, s{sT0}, s{sLW}
    s_mov_b32 s{sT1}, 0
    s_mov_b32 m0, s{sLW}
    L_warm:
    buffer_load_dwordx4 v2, s[{sWO}:{sWO+3}], s{sT0} offen lds
    s_add_u32 s{sT0}, s{sT0}, 4096
    s_add_u32 s{sT1}, s{sT1}, 1
    s_waitcnt vmcnt(12)
    s_cmp_lt_u32 s{sT1}, {opts.get("nwarm", 100)}
    s_cbranch_scc1 L_warm
    s_waitcnt vmcnt(0)
    s_branch L_prep
    """)

    AREG = 96
    ACCS = [16, 32, 48, 48]
    BR = 64
    PK = 80
    vXb = [[2, 3, 4, 5], [6, 7, 8, 9], [88, 89, 90, 91]]
    vWb = [10, 11, 92]
    vSA, vSB, vTG, vZ0, vFA = 12, 13, 14, 15, 1
    k("L_compute:")
    k(f"""
    s_mov_b32 s{sROLE}, 0
    {"s_setprio 1" if opts.get("swap") == 1 else ""}
    v_and_b32 v16, 31, v0
    v_lshrrev_b32 v17, 5, v0          ; h
    v_bfe_u32 v18, v0, 1, 3
    v_xor_b32 v18, v18, v17           ; y
    v_lshlrev_b32 v19, 7, v16         ; row*128
    """)
    for s in range(4):
        k(f"v_xor_b32 v20, {2*s}, v18\nv_lshl_add_u32 v{vXb[0][s]}, v20, 4, v19")
        k(f"v_add_u32 v{vXb[1][s]}, {2*SLOT}, v{vXb[0][s]}")
    k(f"""
    v_bfe_u32 v20, v0, 2, 2           ; r
    v_lshl_add_u32 v21, v17, 3, v20   ; 8h + r
    v_lshlrev_b32 v21, 8, v21         ; *256
    v_bfe_u32 v22, v0, 4, 1           ; g&1
    v_bfe_u32 v23, v0, 1, 1           ; c>>1
    v_lshl_add_u32 v22, v22, 1, v23
    v_and_b32 v23, 1, v0
    v_lshl_add_u32 v21, v23, 3, v21
    v_lshl_add_u32 v21, v22, 4, v21
    v_xor_b32 v22, s{sWAVE}, v20
    v_lshl_add_u32 v{vWb[0]}, v22, 6, v21
    v_add_u32 v{vWb[1]}, {2*SLOT}, v{vWb[0]}
    v_lshlrev_b32 v{vSA}, 4, v0               ; lane*16
    v_lshlrev_b32 v{vSB}, 4, v16
    v_lshl_add_u32 v{vSB}, v17, 15, v{vSB}    ; (l&31)*16 + h*32768
    v_mov_b32 v{vZ0}, 0
    s_lshl_b32 s{sT0}, s{sCT}, 2
    s_add_u32 s{sT0}, s{sT0}, s{sWAVE}
    s_lshl_b32 s{sSTO}, s{sT0}, 17
    s_lshl_b32 s{sT1}, s{sR1}, 11
    s_add_u32 s{sSTO}, s{sSTO}, s{sT1}
    ; consumers of this wave's 32 columns: ty = cg/20, c = cg%20 ; heads floor(8c/5) .. floor((8c+12)/5)-1 ; row blocks r>>1 (+1 for K,V)
    s_mul_i32 s{sT1}, s{sT0}, 205
    s_lshr_b32 s{sT1}, s{sT1}, 12             ; ty
    s_mul_i32 s{sT2}, s{sT1}, 20
    s_sub_u32 s{sT2}, s{sT0}, s{sT2}          ; c
    s_mul_i32 s{sT3}, s{sT2}, 1640
    s_lshr_b32 s{sT3}, s{sT3}, 10             ; floor(8c/5)
    s_lshl_b32 s{sT2}, s{sT2}, 3
    s_add_u32 s{sT2}, s{sT2}, 12
    s_mul_i32 s{sT2}, s{sT2}, 205
    s_lshr_b32 s{sT2}, s{sT2}, 10             ; floor((8c+12)/5)
    v_and_b32 v20, 3, v0
    v_add_u32 v20, s{sT3}, v20                ; head
    v_lshrrev_b32 v21, 2, v0                  ; Rsel
    s_lshr_b32 s{sT3}, s{sR1}, 1
    s_min_u32 s{sT1}, s{sT1}, 1
    s_add_u32 s{sT1}, s{sT1}, s{sT3}
    s_min_u32 s{sT1}, s{sT1}, 7
    v_add_u32 v21, s{sT3}, v21
    v_cmp_gt_u32 vcc, s{sT2}, v20
    v_cmp_ge_u32 s[{sT4}:{sT4+1}], s{sT1}, v21
    s_and_b64 s[{sEX}:{sEX+1}], vcc, s[{sT4}:{sT4+1}]
    v_lshl_add_u32 v20, v21, 5, v20
    v_mul_u32_u24 v{vFA}, 384, v20
    v_add_u32 v{vFA}, {CN1_OFF}, v{vFA}
    s_cmp_lt_u32 s{sCT}, 5
    s_cselect_b32 s{sSC}, {hex(f2u(QSCALE))}, 1.0
    s_waitcnt lgkmcnt(0)
    """)
    srd(sWS, 14, WS_SIZE)
    k(f"""
    s_cmp_lt_u32 s{sCT}, 15
    s_cbranch_scc1 L_p1_go
    s_and_b32 s{sT0}, s{sJ}, 1
    s_lshl_b32 s{sT0}, s{sT0}, 3
    s_add_u32 s{sT0}, s{sT0}, s{sXCD}
    s_lshl_b32 s{sT0}, s{sT0}, 2
    s_add_u32 s{sT0}, s{sT0}, s{sWAVE}
    s_mul_i32 s{sT0}, s{sT0}, {20*128}
    s_add_u32 s{sT0}, s{sT0}, {CN1_OFF}
    v_lshlrev_b32 v20, 7, v0
    v_mov_b32 v21, 1
    s_mov_b64 exec, 0xfffff
    buffer_store_dword v{vZ0}, v20, s[{sWS}:{sWS+3}], s{sT0} offen sc1
    s_mov_b64 exec, 1
    s_waitcnt vmcnt(0)
    global_atomic_add v{vZ0}, v21, s[12:13] sc1
    s_mov_b64 exec, -1
    s_branch L_prep
    L_p1_go:
    """)
    def rdA(c, s):
        sl = (c + 3) % NSLOT
        o = (sl & 1) * SLOT + s * 16 * 256
        va = vWb[sl >> 1]
        a = AREG + 4 * (4 * c + s)
        k(f"ds_read_b64_tr_b16 v[{a}:{a+1}], v{va} offset:{o}")
        k(f"ds_read_b64_tr_b16 v[{a+2}:{a+3}], v{va} offset:{o + 4*256}")
    def rdB(c, s, off, f):
        sl = (c + 3) % NSLOT
        b = BR + 4 * f
        k(f"ds_read_b128 v[{b}:{b+3}], v{vXb[sl >> 1][s]} offset:{(sl & 1) * SLOT + off}")
    def mf(acc, ks, f, first):
        a = AREG + 4 * ks; b = BR + 4 * f
        cs = "0" if first else f"v[{acc}:{acc+15}]"
        k(f"v_mfma_f32_32x32x16_bf16 v[{acc}:{acc+15}], v[{a}:{a+3}], v[{b}:{b+3}], {cs}")
    fr = lambda s, g: 3 * (s & 1) + g
    def rd(c, s):
        rdA(c, s)
        for g in range(3): rdB(c, s, 16384 + g * 4096, fr(s, g))
    def mf3(c, s):
        for g in range(3): mf(ACCS[g], 4*c+s, fr(s, g), c == 0 and s == 0)
    PIPE = opts.get("pipe", 1)
    if PIPE:
        k("s_barrier      ; B_0")
        stamp(1)
        rd(0, 0); rd(0, 1)
        for c in range(10):
            if c == 4: k(f"global_load_dword v{vTG}, v{vZ0}, s[12:13] sc1")
            if c == 8:
                readychk("L_rdy1", vTG, vZ0, False)
                k(f"v_mov_b32 v{vTG}, 1")
            for s in range(2):
                k("s_waitcnt lgkmcnt(5)")
                mf3(c, s); rd(c, s + 2)
            k("s_waitcnt lgkmcnt(5)")
            mf3(c, 2)
            k("s_waitcnt lgkmcnt(0)")
            k(f"s_barrier      ; B_{c+1}")
            if c < 9: rd(c + 1, 0)
            else:
                for i in range(3):
                    rdB(10, i, 0, i)
            mf3(c, 3)
            if c < 9: rd(c + 1, 1)
    else:
      for c in range(10):
        k(f"s_barrier      ; B_{c}")
        if c == 0: stamp(1)
        rd(c, 0); rd(c, 1)
        if c == 5: k(f"global_load_dword v{vTG}, v{vZ0}, s[12:13] sc1")
        if c == 9:
            readychk("L_rdy1", vTG, vZ0, False)
            k(f"v_mov_b32 v{vTG}, 1")
        for s in range(4):
            k(f"s_waitcnt lgkmcnt({5 if s < 3 else 0})")
            mf3(c, s)
            if s < 2: rd(c, s + 2)
    stamp(2)
    def ep_pair(c0, c1, q, vaddr, off_s):
        return [f"v_cvt_pk_bf16_f32 v{q}, v{c0}, v{c0+1}",
                f"v_cvt_pk_bf16_f32 v{q+1}, v{c0+2}, v{c0+3}",
                f"v_cvt_pk_bf16_f32 v{q+2}, v{c1}, v{c1+1}",
                f"v_cvt_pk_bf16_f32 v{q+3}, v{c1+2}, v{c1+3}",
                f"s_add_u32 s{sT5}, s{sSTO}, {off_s}",
                "s_nop 0",
                f"v_permlane32_swap_b32 v{q}, v{q+2}",
                f"v_permlane32_swap_b32 v{q+1}, v{q+3}",
                f"buffer_store_dwordx4 v[{q}:{q+3}], v{vaddr}, s[{sWS}:{sWS+3}], s{sT5} offen sc1"]
    def mulq(c):
        return [f"v_mul_f32 v{c+i}, s{sSC}, v{c+i}" for i in range(4)]
    def ep_part0():
        o = []
        for b in range(4):
            o += mulq(ACCS[0] + 4*b) + mulq(ACCS[1] + 4*b)
            o += ep_pair(ACCS[0] + 4*b, ACCS[1] + 4*b, PK + 4*(b & 1), vSA, b * 32768)
        return o
    def ep_part(g):
        acc = ACCS[g]
        o = []
        for b in (0, 2):
            o += mulq(acc + 4*b) + mulq(acc + 4*b + 4)
            o += ep_pair(acc + 4*b, acc + 4*b + 4, PK + 2*b, vSB, b * 32768 + g * 512)
        return o
    def flag(st, vm):
        return [f"s_mov_b64 exec, s[{sEX}:{sEX+1}]", f"s_waitcnt vmcnt({vm})",
                f"buffer_atomic_add v{vTG}, v{vFA}, s[{sWS}:{sWS+3}], 0 offen offset:{st*128} sc1", "s_mov_b64 exec, -1"]
    steps = []
    for c in range(10, 12):
        hf = c - 10
        for p in range(5):
            for s in range(4):
                steps.append((c, hf * 20 + p * 4 + s, s, p * 4096))
    LOOK = 3
    PER = opts.get("per", 3)
    fill = {}
    def spread(instrs, start, per):
        i = start
        while instrs:
            fill.setdefault(i, []).extend(instrs[:per]); instrs = instrs[per:]; i += 1
        return i
    G2T = 88 if NSLOT == 4 else None
    def g2_conv():
        o = []
        for b in range(4):
            c = ACCS[2] + 4 * b
            o += mulq(c) + [f"v_cvt_pk_bf16_f32 v{G2T+2*b}, v{c}, v{c+1}", f"v_cvt_pk_bf16_f32 v{G2T+2*b+1}, v{c+2}, v{c+3}"]
        return o
    def g2_store():
        o = []
        for b in (0, 2):
            q = G2T + 2 * b
            o += [f"s_add_u32 s{sT5}, s{sSTO}, {b*32768 + 2*512}", f"v_permlane32_swap_b32 v{q}, v{q+2}", f"v_permlane32_swap_b32 v{q+1}, v{q+3}",
                  f"buffer_store_dwordx4 v[{q}:{q+3}], v{vSB}, s[{sWS}:{sWS+3}], s{sT5} offen sc1"]
        return o
    e0 = spread(g2_store() + ep_part0(), 0, PER)
    FAT = opts.get("fat", 38)
    assert e0 <= FAT
    fill.setdefault(FAT, []).extend(flag(0, 4))
    if not PIPE:
        k("s_barrier      ; B_10")
        for i in range(LOOK):
            c, ks, s, off = steps[i]
            rdB(c, s, off, i % 4)
    k("s_nop 8" if not PIPE else "s_nop 11")
    for ins in g2_conv(): k(ins)
    for i, (c, ks, s, off) in enumerate(steps):
        n = i + LOOK
        if n < 40:
            cn, ksn, sn, offn = steps[n]
            if cn != steps[n - 1][0]: k(f"s_barrier      ; B_{cn}")
            rdB(cn, sn, offn, n % 4)
        k(f"s_waitcnt lgkmcnt({min(LOOK, 39 - i)})")
        mf(ACCS[3], ks, i % 4, ks == 0)
        for ins in fill.get(i, []): k(ins)
        if i == FAT: stamp(6)
    stamp(14)
    k("s_nop 11")
    for ins in ep_part(3): k(ins)
    for ins in flag(1, 3): k(ins)
    stamp(5)

    vKA1, vKA2, vVA0, vVA1 = 2, 3, 4, 5
    vOA, vOH = 6, 7
    vCW, vCN = 8, 9
    vQA1, vQA2 = 10, 11
    vQ1, vQ2 = 16, 20
    MK, MP, PD = 32, 48, 56
    S = [64, 80]
    P = 96
    KF = [104, 112]
    VF = [120, 128]
    OA = 136
    k("L_prep:")
    k(f"""
    v_and_b32 v25, 31, v0              ; q
    v_lshrrev_b32 v26, 5, v0           ; h
    v_lshlrev_b32 v27, 2, v26
    v_sub_u32 v27, v27, v25            ; 4h - q
    """)
    for i in range(16):
        key = 8 * (i >> 2) + (i & 3)
        k(f"v_add_u32 v{MK+i}, {key-1}, v27")
        k(f"v_ashrrev_i32 v{MK+i}, 31, v{MK+i}")
    k(f"s_mov_b32 s{sT1}, 0xffff")
    for j in range(8):
        k(f"v_bfi_b32 v{MP+j}, s{sT1}, v{MK+2*j}, v{MK+2*j+1}")
    k(f"""
    s_cmp_eq_u32 s{sROLE}, 1
    s_cbranch_scc1 L_nof
    s_cmp_ge_u32 s{sCT}, 15
    s_cbranch_scc1 L_nof
    """)
    for ins in flag(2, 1): k(ins)
    stamp(3)
    k(f"""
    L_nof:
    s_lshl_b32 s{sT0}, s{sWAVE}, 9        ; w*512
    v_lshlrev_b32 v27, 4, v25
    v_add_u32 v27, s{sT0}, v27            ; (32w+q)*16
    v_lshl_add_u32 v{vKA1}, v26, 13, v27
    v_add_u32 v{vKA1}, {LDS_K}, v{vKA1}
    s_lshl_b32 s{sT1}, s{sODD}, 3
    s_add_u32 s{sT2}, s{sT1}, {LDS_K+16384}
    v_add_u32 v{vKA2}, s{sT2}, v27
    s_sub_u32 s{sT2}, {LDS_K+16384+12*16+8}, s{sT1}
    v_mov_b32 v31, s{sT2}
    v_cndmask_b32 v{vKA2}, v{vKA2}, v31, s[{sUP}:{sUP+1}]
    v_lshl_add_u32 v{vCW}, v25, 8, v31
    v_lshl_add_u32 v{vCW}, v26, 4, v{vCW}
    s_sub_u32 s{sT2}, {LDS_V+16384+511*16+8}, s{sT1}
    v_mov_b32 v{vCN}, s{sT2}
    v_lshl_add_u32 v{vQA1}, v26, 12, v27
    v_add_u32 v{vQA1}, {LDS_Q}, v{vQA1}
    s_add_u32 s{sT2}, s{sT1}, {LDS_Q+8192}
    v_add_u32 v{vQA2}, s{sT2}, v27
    s_lshr_b32 s{sT1}, s{sH}, 1
    s_mul_i32 s{sB0}, s{sT1}, 5            ; 5m
    s_mul_i32 s{sT2}, s{sODD}, 3
    s_add_u32 s{sT2}, s{sT2}, s{sB0}       ; blockA
    s_lshl_b32 s{sT3}, s{sRB}, 12          ; 256*RB*16
    s_lshl_b32 s{sT4}, s{sT2}, 15
    s_add_u32 s{sT4}, s{sT4}, s{sT3}
    s_add_u32 s{sT4}, s{sT4}, {O_OFF}
    v_lshl_add_u32 v{vOA}, v26, 15, v27
    v_add_u32 v{vOA}, s{sT4}, v{vOA}
    s_add_u32 s{sT4}, s{sB0}, 2
    s_lshl_b32 s{sT4}, s{sT4}, 15
    s_add_u32 s{sT4}, s{sT4}, s{sT3}
    s_lshl_b32 s{sT5}, s{sODD}, 3
    s_add_u32 s{sT4}, s{sT4}, s{sT5}
    s_add_u32 s{sT4}, s{sT4}, {O_OFF}
    v_add_u32 v{vOH}, s{sT4}, v27
    v_bfe_u32 v30, v0, 4, 1              ; g1
    v_bfe_u32 v29, v0, 1, 1              ; c>>1
    v_cmp_eq_u32 vcc, 1, v30
    v_mov_b32 v28, 2
    v_and_b32 v25, 1, v0                 ; c&1
    v_cndmask_b32 v29, v29, v28, vcc     ; p
    v_and_b32 v30, v25, v30
    v_mov_b32 v28, s{sODD}
    v_cndmask_b32 v25, v25, v28, vcc
    v_bfe_u32 v28, v0, 2, 2              ; r
    v_lshl_add_u32 v28, v26, 2, v28      ; 4h + r
    v_lshlrev_b32 v26, 2, v29            ; p<<2
    v_lshlrev_b32 v27, 13, v29           ; p*8192
    v_lshl_add_u32 v27, v25, 3, v27
    v_add_u32 v27, s{sT0}, v27
    v_add_u32 v27, {LDS_V}, v27
    v_xor_b32 v25, v28, v26
    v_lshl_add_u32 v{vVA0}, v25, 4, v27
    v_or_b32 v28, 8, v28
    v_xor_b32 v25, v28, v26
    v_lshl_add_u32 v{vVA1}, v25, 4, v27
    v_cmp_eq_u32 vcc, 1, v30
    s_cmp_eq_u32 s{sRB}, 0
    s_cselect_b32 s{sNT}, s{sWAVE}, 7
    v_cndmask_b32 v{vVA0}, v{vVA0}, v31, vcc
    v_cndmask_b32 v{vVA1}, v{vVA1}, v31, vcc
    """)
    if opts.get("zrow", 1):
        k(f"""
        v_and_b32 v25, 18, v0
        v_cmp_eq_u32 vcc, 18, v25            ; g1 && c>=2
        v_add_u32 v31, 16, v31
        s_nop 0
        v_cndmask_b32 v{vVA0}, v{vVA0}, v31, vcc
        v_cndmask_b32 v{vVA1}, v{vVA1}, v31, vcc
        """)
    k(f"""
    v_mov_b32 v22, 0x3f80
    v_mov_b32 v23, 0
    v_cndmask_b32 v22, v22, v23, s[{sUP}:{sUP+1}]
    s_cmp_eq_u32 s{sROLE}, 1
    s_cbranch_scc1 L_role_ld
    """)
    vWOA = 200
    k(f"s_lshl_b32 s{sLW}, s{sWAVE}, 10\ns_lshl_b32 s{sT0}, s{sWAVE}, 6\nv_add_u32 v26, s{sT0}, v0\ns_mul_i32 s{sWB}, s{sRB}, 160")
    for i in range(5):
        if i: k(f"v_add_u32 v26, 256, v26")
        k(f"""
        v_mul_u32_u24 v27, 6554, v26
        v_lshrrev_b32 v27, 16, v27        ; rho
        v_mul_u32_u24 v28, 10, v27
        v_sub_u32 v28, v26, v28           ; piece
        v_and_b32 v29, 0x63, v27
        v_bfe_u32 v30, v27, 2, 2          ; g
        v_lshl_add_u32 v29, v30, 3, v29
        v_bfe_u32 v30, v27, 4, 1          ; t
        v_lshl_add_u32 v29, v30, 2, v29   ; k
        v_mul_u32_u24 v29, 1280, v29
        v_lshl_add_u32 v{vWOA+i}, v28, 4, v29
        """)
    srd(sWO, 8, 819200)
    k(f"""
    s_cmp_lt_u32 s{sCT}, 15
    s_cbranch_scc1 L_BD
    """)
    readychk("L_rdy2", vTG, vZ0, True)
    k("s_branch L_BD")

    vP, vZ, vF = 220, 221, 222
    vU = 224
    TY = 80 * 32768
    k(f"""
    L_role_ld:
    v_mov_b32 v{vZ}, 0
    s_lshl_b32 s{sT1}, s{sODD}, 1
    s_add_u32 s{sT1}, s{sT1}, s{sB0}
    s_add_u32 s{sT2}, s{sT1}, 2
    s_lshr_b32 s{sT1}, s{sT1}, 2
    s_lshr_b32 s{sT2}, s{sT2}, 2
    s_sub_u32 s{sT2}, s{sT2}, s{sT1}          ; 0 or 1
    s_cmp_eq_u32 s{sRB}, 0
    s_cselect_b32 s{sNX}, 6, 10
    s_movk_i32 s{sUM}, 0x3ff
    s_cselect_b32 s{sUM}, 0x333, s{sUM}
    s_lshl_b32 s{sNX}, s{sNX}, s{sT2}
    s_and_b32 s{sT0}, s{sWAVE}, 1
    s_lshl_b32 s{sT1}, 0x155, s{sT0}
    s_and_b32 s101, s{sUM}, s{sT1}
    s_cmp_lt_u32 s{sWAVE}, 6
    s_cselect_b32 s{sUM}, s{sUM}, s101
    s_sub_u32 s{sFL}, s{sWAVE}, 4
    s_min_u32 s{sFL}, s{sFL}, 2
    s_lshl_b32 s{sT0}, s{sRB}, 5
    s_add_u32 s{sT0}, s{sT0}, s{sH}
    s_mul_i32 s{sT0}, s{sT0}, 3
    s_add_u32 s{sT0}, s{sT0}, s{sFL}
    s_lshl_b32 s{sT0}, s{sT0}, 7
    s_add_u32 s{sT0}, s{sT0}, {CN1_OFF}
    v_mov_b32 v{vF}, s{sT0}
    s_mul_i32 s{sT0}, s{sODD}, 3
    s_add_u32 s{sT0}, s{sT0}, s{sB0}
    s_lshl_b32 s{sT0}, s{sT0}, 15
    s_add_u32 s{sT1}, s{sB0}, 2
    s_lshl_b32 s{sT1}, s{sT1}, 15
    s_lshl_b32 s{sT2}, s{sRB}, 12
    s_add_u32 s{sT0}, s{sT0}, s{sT2}
    s_add_u32 s{sT1}, s{sT1}, s{sT2}
    v_lshlrev_b32 v219, 4, v0
    v_add_u32 v{vU}, s{sT0}, v219
    v_add_u32 v{vU+1}, 32768, v{vU}
    v_add_u32 v{vU+2}, s{sT1}, v219
    v_xor_b32 v{vU+3}, 64, v{vU+1}
    v_xor_b32 v{vU+4}, 128, v{vU+2}
    s_cmp_ge_u32 s{sCT}, 15
    s_cbranch_scc1 L_ld_idle2
    """)
    srd(sX, 4, 2621440); srd(sW, 6, 2457600)
    for c in range(NCH):
        k(f"s_waitcnt vmcnt({sum(cnt[c+1:])})")
        if c == 9: stamp(15)
        if c == NCH - 1: stamp(14)
        k(f"s_barrier      ; B_{c}")
        if c == 7: k(f"global_load_dword v{vP}, v{vZ}, s[12:13] sc1")
        if len(cnt) < NCH: issue(len(cnt))
    k(f"""
    s_branch L_ld_go
    L_ld_idle2:
    global_load_dword v{vP}, v{vZ}, s[12:13] sc1
    L_ld_go:
    """)
    readychk("L_rdy3", vP, vZ, False)
    k(f"""
    L_fetch:
    s_lshl_b32 s{sSTO}, s{sFL}, 8
    s_add_u32 s{sSTO}, s{sSTO}, 1024
    s_cmp_eq_u32 s{sFL}, 1
    s_cselect_b32 s{sSTO}, 0, s{sSTO}
    s_cselect_b32 s{sT4}, -1, 0
    s_mov_b64 exec, 1
    """)
    gpoll("L_poll1", vP, vF, f"s{sNX}")
    stamp(4)
    k(f"""
    s_mov_b32 exec_lo, -1
    s_mov_b32 exec_hi, s{sT4}
    """)
    for u in (0, 1, 4, 5, 8, 9, 2, 3, 6, 7):
        ty = (u + 2) >> 2; t1 = (u + 2) & 3
        k(f"s_bitcmp1_b32 s{sUM}, {u}\ns_cbranch_scc0 L_skipu{u}")
        for p in range(3):
            ldsb = [LDS_Q + (t1 - 2) * 2048 + p * 4096, LDS_K + t1 * 2048 + p * 8192, LDS_V + t1 * 2048 + p * 8192][ty]
            vr = vU + p if (ty < 2 or p == 0) else vU + 2 + p
            k(f"s_add_u32 m0, s{sSTO}, {ldsb}")
            if p == 0: k(f"s_add_u32 s{sT5}, s{sSTO}, {ty * TY + (t1 - 2) * 2048}")
            else: k("s_nop 0")
            k(f"buffer_load_dwordx4 v{vr}, s[{sWS}:{sWS+3}], s{sT5} offen sc1 lds")
        k(f"L_skipu{u}:")
    stamp(5)
    k(f"""
    s_mov_b64 exec, -1
    s_waitcnt vmcnt(0)
    """)
    stamp(6)
    k(f"""
    s_cmp_lg_u32 s{sWAVE}, 7
    s_cbranch_scc1 L_BD
    ds_write_b32 v{vCN}, v{vZ}
    s_waitcnt lgkmcnt(0)
    L_BD:
    s_barrier
    """)
    stamp(7)

    def LK(kk, buf):
        off = (8 - kk) * 512
        f = KF[buf]
        k(f"ds_read_b128 v[{f}:{f+3}], v{vKA1} offset:{off}")
        k(f"ds_read_b64 v[{f+4}:{f+5}], v{vKA2} offset:{off}")
    def LV(kk, buf):
        off = (8 - kk) * 512
        f = VF[buf]
        for u in range(2):
            for t in range(2):
                k(f"ds_read_b64_tr_b16 v[{f+4*u+2*t}:{f+4*u+2*t+1}], v{[vVA0, vVA1][t]} offset:{off + u*256}")
    def QK(buf, sbuf):
        f = KF[buf]; s = S[sbuf]
        k(f"v_mfma_f32_32x32x16_bf16 v[{s}:{s+15}], v[{f}:{f+3}], v[{vQ1}:{vQ1+3}], 0")
        k(f"v_mfma_f32_32x32x8_bf16 v[{s}:{s+15}], v[{f+4}:{f+5}], v[{vQ2}:{vQ2+1}], v[{s}:{s+15}]")
    def EXP(sbuf, lo, hi):
        s = S[sbuf]
        for i in range(lo, hi): k(f"v_exp_f32 v{s+i}, v{s+i}")
    def CVT(sbuf, lo, hi):
        s = S[sbuf]
        for i in range(lo, hi): k(f"v_cvt_pk_bf16_f32 v{P+i}, v{s+2*i}, v{s+2*i+1}")
    def PV(buf, u, p=P, first=False):
        f = VF[buf] + 4 * u
        cs = "0" if first else f"v[{OA}:{OA+15}]"
        k(f"v_mfma_f32_32x32x16_bf16 v[{OA}:{OA+15}], v[{f}:{f+3}], v[{p+4*u}:{p+4*u+3}], {cs}")
    def wo_group(gi):
        for i in range(5):
            k(f"s_add_u32 m0, s{sLW}, {LDS_WO + (gi*5+i)*4096}")
            if i == 0: k(f"s_add_u32 s{sT5}, s{sWB}, {gi*4*40960}")
            else: k("s_nop 0")
            k(f"buffer_load_dwordx4 v{vWOA+i}, s[{sWO}:{sWO+3}], s{sT5} offen lds")
    def wo_opt(gi):
        if opts.get("nowo"): return
        k(f"s_cmp_eq_u32 s{sROLE}, 1\ns_cbranch_scc1 L_nowo{gi}")
        wo_group(gi)
        k(f"L_nowo{gi}:")

    PR = opts.get("pr", 0)
    PRS = {0: None, 1: [3, 3, 2, 2, 1, 1, 0, 0], 2: [3, 2, 2, 1, 1, 0, 0, 0], 3: [3, 3, 3, 2, 2, 1, 1, 0], 4: [1, 1, 1, 1, 0, 0, 0, 0], 5: [3, 2, 1, 0, 3, 2, 1, 0]}[PR]
    def setpr(st):
        if PRS and (st == 0 or PRS[st] != PRS[st - 1]): k(f"s_setprio {PRS[st]}")
    setpr(0)
    k(f"""
    s_mov_b32 exec_lo, 0x3ffff
    s_mov_b32 exec_hi, 0x3ffff
    ds_write_b64 v{vCW}, v[22:23]
    s_mov_b64 exec, -1
    ds_read_b128 v[{vQ1}:{vQ1+3}], v{vQA1}
    ds_read_b64 v[{vQ2}:{vQ2+1}], v{vQA2}
    """)
    LK(0, 0); LK(8, 1); LV(0, 0); LV(8, 1)
    k(f"""
    s_waitcnt lgkmcnt(12)
    v_cndmask_b32 v{vQ2}, v{vQ2}, 0, s[{sUP}:{sUP+1}]
    v_cndmask_b32 v{vQ2+1}, v{vQ2+1}, 0, s[{sUP}:{sUP+1}]
    s_waitcnt lgkmcnt(10)
    s_cmp_eq_u32 s{sRB}, 0
    """)
    QK(0, 0)
    k("s_cbranch_scc1 L_nofar")
    k("s_waitcnt lgkmcnt(8)")
    QK(1, 1)
    k("L_far_done:")
    LK(1, 0)
    wo_opt(0)
    k("s_nop 7")
    s = S[0]
    for i in range(16): k(f"v_bfi_b32 v{s+i}, v{MK+i}, v{s+i}, v{S[1]+i}")
    k(f"v_max3_f32 v25, v{s}, v{s+1}, v{s+2}")
    k(f"v_max3_f32 v26, v{s+3}, v{s+4}, v{s+5}")
    k(f"v_max3_f32 v25, v25, v{s+6}, v{s+7}")
    k(f"v_max3_f32 v26, v26, v{s+8}, v{s+9}")
    k(f"v_max3_f32 v25, v25, v{s+10}, v{s+11}")
    k(f"v_max3_f32 v26, v26, v{s+12}, v{s+13}")
    k(f"v_max3_f32 v25, v25, v{s+14}, v{s+15}")
    k(f"""
    v_max_f32 v25, v25, v26
    v_mov_b32 v26, v25
    s_nop 1
    v_permlane32_swap_b32 v25, v26
    v_max_f32 v25, v25, v26
    v_and_b32 v25, 0xffff0000, v25
    v_lshrrev_b32 v26, 16, v25
    v_xor_b32 v26, 0x8000, v26
    v_cndmask_b32 v{vQ2}, v{vQ2}, v26, s[{sUP}:{sUP+1}]
    """)
    astamp(5)
    for i in range(4): k(f"v_sub_f32 v{s+i}, v{s+i}, v25")
    k("s_waitcnt lgkmcnt(0)")
    QK(0, 1)
    LK(2, 1)
    for i in range(4, 16): k(f"v_sub_f32 v{s+i}, v{s+i}, v25")
    EXP(0, 0, 8)
    CVT(0, 0, 4)
    for j in range(4): k(f"v_and_b32 v{PD+j}, v{MP+j}, v{P+j}")
    for j in range(4): k(f"v_xor_b32 v{P+j}, v{PD+j}, v{P+j}")
    EXP(0, 8, 10)
    PV(0, 0, PD, first=True)
    EXP(0, 10, 13)
    k(f"s_cmp_eq_u32 s{sRB}, 0\ns_cbranch_scc1 L_nofar1")
    PV(1, 0)
    k("L_nofar1:")
    EXP(0, 13, 16)
    k("s_nop 0")
    CVT(0, 4, 8)
    for j in range(4, 8): k(f"v_and_b32 v{PD+j}, v{MP+j}, v{P+j}")
    for j in range(4, 8): k(f"v_xor_b32 v{P+j}, v{PD+j}, v{P+j}")
    PV(0, 1, PD)
    k(f"s_cbranch_scc1 L_nofar2")
    PV(1, 1)
    k("L_nofar2:")
    LV(1, 0)
    k(f"s_cmp_eq_u32 s{sNT}, 0\ns_cbranch_scc1 L_worest1")
    astamp(1)
    for i in range(7):
        if i == 2: astamp(2)
        if i == 4: astamp(3)
        if i == 6: astamp(14)
        cur = (i + 1) & 1; nxt = i & 1
        setpr(i + 1)
        if i < 6:
            k("s_waitcnt lgkmcnt(4)")
            QK((i + 1) & 1, nxt)
        if i < 5: LK(i + 3, i & 1)
        if i < 4: wo_opt(i + 1)
        EXP(cur, 0, 8)
        CVT(cur, 0, 4)
        EXP(cur, 8, 10)
        k(f"s_waitcnt lgkmcnt({2 if i < 5 else 0})")
        PV(i & 1, 0)
        EXP(cur, 10, 16)
        k("s_nop 0")
        CVT(cur, 4, 8)
        if i < 6: LV(i + 2, (i + 1) & 1)
        else: k("s_nop 1")
        PV(i & 1, 1)
        if i < 6:
            k(f"s_cmp_eq_u32 s{sNT}, {i+1}")
            k(f"s_cbranch_scc1 {'L_worest%d' % (i+2) if i < 3 else 'L_p2_done'}")
    k("L_p2_done:")
    if PRS: k("s_setprio 0" if not opts.get("prend") else f"s_setprio {opts['prend']}")
    astamp(15)
    k(f"""
    s_lshl_b32 s{sT2}, s{sRB}, 5
    s_and_b32 s{sT3}, s{sWAVE}, 3
    s_add_u32 s{sT2}, s{sT2}, s{sT3}
    s_lshl_b32 s{sT2}, s{sT2}, 1
    s_add_u32 s{sT2}, s{sT2}, s{sROLE}
    s_lshl_b32 s{sT2}, s{sT2}, 7
    s_add_u32 s{sFL}, s{sT2}, {CN2_OFF}
    v_mov_b32 v27, {hex(f2u(2.0**60))}
    v_mov_b32 v30, {hex(f2u(2.0**-60))}
    v_mov_b32 v28, 1
    v_lshlrev_b32 v29, 10, v0
    s_nop 0
    v_mov_b32 v25, v{OA+8}
    v_mov_b32 v26, v{OA+8}
    s_nop 1
    v_permlane32_swap_b32 v25, v26
    v_cmp_nlt_f32 vcc, v26, v27
    v_cmp_ngt_f32 s[{sT0}:{sT0+1}], v26, v30
    s_or_b64 vcc, vcc, s[{sT0}:{sT0+1}]
    s_cbranch_vccnz L_slow
    L_p2_norm:
    v_rcp_f32 v26, v26
    s_nop 0
    """)
    for i in range(12): k(f"v_mul_f32 v{OA+i}, v{OA+i}, v26")
    k(f"""
    v_cvt_pk_bf16_f32 v{P}, v{OA}, v{OA+1}
    v_cvt_pk_bf16_f32 v{P+1}, v{OA+2}, v{OA+3}
    v_cvt_pk_bf16_f32 v{P+2}, v{OA+4}, v{OA+5}
    v_cvt_pk_bf16_f32 v{P+3}, v{OA+6}, v{OA+7}
    v_cvt_pk_bf16_f32 v{P+4}, v{OA+8}, v{OA+9}
    v_cvt_pk_bf16_f32 v{P+5}, v{OA+10}, v{OA+11}
    v_permlane32_swap_b32 v{P}, v{P+2}
    v_permlane32_swap_b32 v{P+1}, v{P+3}
    buffer_store_dwordx4 v[{P}:{P+3}], v{vOA}, s[{sWS}:{sWS+3}], 0 offen sc1
    s_mov_b32 exec_hi, 0
    buffer_store_dwordx2 v[{P+4}:{P+5}], v{vOH}, s[{sWS}:{sWS+3}], 0 offen sc1
    """)
    stamp(8)
    k(f"""
    s_movk_i32 exec_lo, 0xff
    s_waitcnt vmcnt(0)
    buffer_atomic_add v28, v29, s[{sWS}:{sWS+3}], s{sFL} offen sc1
    """)
    stamp(9)
    k(f"""
    s_cmp_eq_u32 s{sROLE}, 1
    s_cbranch_scc1 L_fin
    s_mov_b32 exec_lo, 1
    ds_add_u32 v{vCN}, v28
    s_mov_b64 exec, -1
    v_mov_b32 v12, v{vCN}
    s_setprio 0
    """)

    NPRE = 7
    B3 = 16
    A3 = 96
    C3 = 236
    srd(sOUT, 10, 2621440)
    k(f"""
    v_lshrrev_b32 v2, 2, v0            ; 4g + r
    v_mul_u32_u24 v2, 160, v2
    v_and_b32 v3, 3, v0
    v_lshl_add_u32 v2, v3, 3, v2       ; steps 0..9
    v_add_u32 v3, {10*5120}, v2        ; steps 10..19
    v_lshrrev_b32 v4, 4, v0
    v_and_b32 v5, 15, v0
    v_lshlrev_b32 v6, 15, v4
    v_lshl_add_u32 v6, v5, 4, v6
    s_and_b32 s{sT1}, s{sJ}, 3
    s_lshr_b32 s{sT3}, s{sWAVE}, 1
    s_lshl_b32 s{sT2}, s{sT3}, 2
    s_add_u32 s{sT1}, s{sT1}, s{sT2}
    s_lshl_b32 s{sT0}, s{sXCD}, 3
    s_add_u32 s{sT0}, s{sT0}, s{sT1}     ; q tile
    s_lshl_b32 s{sT2}, s{sXCD}, 5
    s_add_u32 s{sT2}, s{sT2}, s{sJ}
    s_lshl_b32 s{sT2}, s{sT2}, 1
    s_add_u32 s{sT2}, s{sT2}, s{sT3}
    s_lshl_b32 s{sT2}, s{sT2}, 7
    s_add_u32 s{sT2}, s{sT2}, {CN2_OFF}
    v_mov_b32 v10, s{sT2}
    s_lshl_b32 s{sT0}, s{sT0}, 5
    s_and_b32 s{sT1}, s{sWAVE}, 1
    s_lshl_b32 s{sT1}, s{sT1}, 4
    s_add_u32 s{sT0}, s{sT0}, s{sT1}     ; row0
    s_lshl_b32 s{sT1}, s{sT0}, 4
    s_add_u32 s{sT1}, s{sT1}, {O_OFF}
    v_add_u32 v7, s{sT0}, v5
    v_mul_u32_u24 v7, 1280, v7
    s_mul_i32 s{sT2}, s{sRB}, 160
    v_add_u32 v7, s{sT2}, v7
    v_lshl_add_u32 v9, v4, 3, v7
    v_and_b32 v11, 1, v4
    v_lshl_add_u32 v7, v11, 5, v7
    v_lshrrev_b32 v11, 1, v4
    v_lshl_add_u32 v7, v11, 4, v7
    """)
    lwait("L_cwo", 11, 12, 0, 4)
    def LA(ks):
        base = A3 + (ks % NPRE) * 20
        va = 2 if ks < 10 else 3
        o = (ks % 10) * 5120
        for tl in range(5):
            for t in range(2):
                a = base + tl * 4 + 2 * t
                k(f"ds_read_b64_tr_b16 v[{a}:{a+1}], v{va} offset:{o + t*16*160 + tl*32}")
    for ks in range(NPRE):
        LA(ks)
        k("s_waitcnt lgkmcnt(5)")
    k("s_mov_b64 exec, 1")
    stamp(4)
    gpoll("L_poll2", 11, 10, 32)
    k("s_mov_b64 exec, -1")
    stamp(11)
    for ks in range(20):
        k(f"buffer_load_dwordx4 v[{B3+4*ks}:{B3+4*ks+3}], v6, s[{sWS}:{sWS+3}], s{sT1} offen sc1")
        if ks < 19: k(f"s_add_u32 s{sT1}, s{sT1}, {4*32768}")
    for ks in range(20):
        lg = 5 if (ks >= 1 and ks - 1 + NPRE < 20) else 0
        k(f"s_waitcnt vmcnt({19-ks}) lgkmcnt({lg})")
        base = A3 + (ks % NPRE) * 20
        for tl in range(5):
            a = base + tl * 4; c = C3 + tl * 4; b = B3 + 4 * ks
            cs = "0" if ks == 0 else f"v[{c}:{c+3}]"
            k(f"v_mfma_f32_16x16x32_bf16 v[{c}:{c+3}], v[{a}:{a+3}], v[{b}:{b+3}], {cs}")
        if ks + NPRE < 20: LA(ks + NPRE)
    stamp(12)
    k("s_nop 7")
    for tl in range(5):
        c = C3 + tl * 4
        q = 16 + (tl >> 1) * 4 + (tl & 1) * 2
        k(f"v_cvt_pk_bf16_f32 v{q}, v{c}, v{c+1}")
        k(f"v_cvt_pk_bf16_f32 v{q+1}, v{c+2}, v{c+3}")
    k(f"""
    v_permlane16_swap_b32 v16, v18
    v_permlane16_swap_b32 v17, v19
    v_permlane16_swap_b32 v20, v22
    v_permlane16_swap_b32 v21, v23
    buffer_store_dwordx4 v[16:19], v7, s[{sOUT}:{sOUT+3}], 0 offen
    buffer_store_dwordx4 v[20:23], v7, s[{sOUT}:{sOUT+3}], 0 offen offset:64
    buffer_store_dwordx2 v[24:25], v9, s[{sOUT}:{sOUT+3}], 0 offen offset:128
    """)
    k("L_fin:")
    if stamps:
        SW = opts.get("sw", 0)
        k(f"""
        s_mov_b64 exec, -1
        s_waitcnt vmcnt(0)
        s_mem{'' if opts.get('cyc') else 'real'}time s[{sST+26}:{sST+27}]
        s_and_b32 s{sT0}, s{sWAVE}, 3
        s_cmp_lg_u32 s{sT0}, {SW}
        s_cbranch_scc1 L_end
        s_waitcnt lgkmcnt(0)
        s_lshl_b32 s{sT0}, s2, 1
        s_lshr_b32 s{sT1}, s{sWAVE}, 2
        s_add_u32 s{sT0}, s{sT0}, s{sT1}
        s_lshl_b32 s{sT0}, s{sT0}, 6
        s_add_u32 s{sT0}, s{sT0}, {STAMP_OFF}
        v_mov_b32 v1, 0
        """)
        for i in range(16): k(f"v_mov_b32 v{4+i}, s{sST+2*i}")
        for i in range(4): k(f"buffer_store_dwordx4 v[{4+4*i}:{7+4*i}], v1, s[{sWS}:{sWS+3}], s{sT0} offen offset:{16*i}")
    k("L_end:")
    k("s_endpgm")

    k("L_nofar:")
    for i in range(16): k(f"v_mov_b32 v{S[1]+i}, {hex(NEG)}")
    k("s_branch L_far_done")
    for g in range(1, 5):
        k(f"L_worest{g}:")
        k(f"s_cmp_eq_u32 s{sROLE}, 1\ns_cbranch_scc1 L_p2_done")
        wo_group(g)
    k("s_branch L_p2_done")

    k("L_slow:")
    s = S[0]
    k(f"""
    v_cndmask_b32 v{vQ2}, v{vQ2}, 0, s[{sUP}:{sUP+1}]
    v_mov_b32 v25, 0xff800000
    v_mov_b32 v27, {hex(NEG)}
    s_mov_b32 s{sT2}, 0               ; pass
    s_add_u32 s{sT4}, s{sNT}, 1
    s_cmp_lg_u32 s{sRB}, 0
    s_cselect_b32 s{sT4}, 9, s{sT4}     ; tiles
    """)
    for i in range(16): k(f"v_mov_b32 v{OA+i}, 0")
    k(f"""
    L_slow_pass:
    s_mov_b32 s{sCNT}, 0
    L_slow_tile:
    s_sub_u32 s{sT3}, 8, s{sCNT}
    s_lshl_b32 s{sT3}, s{sT3}, 9
    v_add_u32 v10, s{sT3}, v{vKA1}
    v_add_u32 v11, s{sT3}, v{vKA2}
    v_add_u32 v12, s{sT3}, v{vVA0}
    v_add_u32 v13, s{sT3}, v{vVA1}
    ds_read_b128 v[{KF[0]}:{KF[0]+3}], v10
    ds_read_b64 v[{KF[0]+4}:{KF[0]+5}], v11
    ds_read_b64_tr_b16 v[{VF[0]}:{VF[0]+1}], v12
    ds_read_b64_tr_b16 v[{VF[0]+2}:{VF[0]+3}], v13
    ds_read_b64_tr_b16 v[{VF[0]+4}:{VF[0]+5}], v12 offset:256
    ds_read_b64_tr_b16 v[{VF[0]+6}:{VF[0]+7}], v13 offset:256
    s_waitcnt lgkmcnt(0)
    """)
    QK(0, 0)
    k(f"""
    s_nop 15
    s_cmp_lg_u32 s{sCNT}, 0
    s_cbranch_scc1 L_slow_nd
    """)
    for i in range(16): k(f"v_bfi_b32 v{s+i}, v{MK+i}, v{s+i}, v27")
    k(f"""
    L_slow_nd:
    s_cmp_lg_u32 s{sCNT}, 8
    s_cbranch_scc1 L_slow_nf
    """)
    for i in range(16): k(f"v_bfi_b32 v{s+i}, v{MK+i}, v27, v{s+i}")
    k(f"""
    L_slow_nf:
    s_cmp_lg_u32 s{sT2}, 0
    s_cbranch_scc1 L_slow_p2
    """)
    for i in range(16): k(f"v_max_f32 v25, v25, v{s+i}")
    k("s_branch L_slow_next")
    k("L_slow_p2:")
    for i in range(16): k(f"v_sub_f32 v{s+i}, v{s+i}, v25")
    EXP(0, 0, 16)
    k("s_nop 0")
    CVT(0, 0, 8)
    k("s_nop 1")
    PV(0, 0); PV(0, 1)
    k(f"""
    s_nop 15
    L_slow_next:
    s_add_u32 s{sCNT}, s{sCNT}, 1
    s_cmp_lt_u32 s{sCNT}, s{sT4}
    s_cbranch_scc1 L_slow_tile
    s_cmp_lg_u32 s{sT2}, 0
    s_cbranch_scc1 L_slow_done
    v_mov_b32 v26, v25
    s_nop 1
    v_permlane32_swap_b32 v25, v26
    v_max_f32 v25, v25, v26
    s_mov_b32 s{sT2}, 1
    s_branch L_slow_pass
    L_slow_done:
    v_mov_b32 v25, v{OA+8}
    v_mov_b32 v26, v{OA+8}
    s_nop 1
    v_permlane32_swap_b32 v25, v26
    s_branch L_p2_norm
    """)
    k("L_code_end:")
    return emit([k], single=True)

if __name__ == "__main__":
    out = sys.argv[1]
    opts = {}
    for a in sys.argv[2:]:
        kx, v = a.split("=")
        opts[kx] = [int(x) for x in v.split(',')] if kx == 'only' else int(v)
    open(out, "w").write(gen(opts))
```

```python
import sys, math, struct
from asmlib import *

def f2u(x): return struct.unpack("<I", struct.pack("<f", x))[0]

QKV_OFF = 0
O_OFF   = 8 << 20
CN1_OFF = 12 << 20
CN2_OFF = CN1_OFF + 768 * 128
STAMP_OFF = 13 << 20
WS_SIZE = 14 << 20
SLOT = 28672
NSLOT = 4
LDS_WO = 0
LDS_K = 102400
LDS_V = LDS_K + 24576
LDS_Q = LDS_V + 24576
LDS_TOTAL = 163840
QSCALE = (20 ** -0.5) * math.log2(math.e)
SPIN_MAX = 400000
NEG = 0xf149f2ca

def gen(opts):
    DEPTH = opts.get("depth", 3)
    NCH = 12
    CODEPF = ""
    if opts.get("codepf"):
        CODEPF = "s_getpc_b64 s[46:47]\nv_lshlrev_b32 v20, 6, v0\ns_lshl_b32 s48, s36, 12\nv_add_u32 v20, s48, v20\nglobal_load_dword v21, v20, s[46:47]\ns_waitcnt vmcnt(0)"
    stamps = opts.get("stamps", False)
    k = K("standalone__sliding_block__prompt_kernel", (256, 1, 1), (512, 1, 1), LDS_TOTAL, vgpr=256, sgpr=102)

    sX, sW, sWO, sOUT, sWS = 16, 20, 24, 28, 32
    sWAVE, sXCD, sJ, sR1, sCT = 36, 37, 38, 39, 40
    sH, sRB, sODD, sTAG = 41, 42, 43, 44
    sLW = 45
    sT0, sT1, sT2, sT3, sT4, sT5 = 46, 47, 48, 49, 50, 51
    sCNT, sFL = 52, 53
    sUP = 54
    sEX = 56
    sNT = 58
    sB0 = 59
    sSTO = 60
    sROLE = 61
    sSC = 62
    sST = 64
    sUM, sNX, sWB = 98, 99, 100
    def astamp(idx):
        if stamps and opts.get("attst"): k(f"s_mem{'' if opts.get('cyc') else 'real'}time s[{sST+2*idx}:{sST+2*idx+1}]")
    def stamp(idx):
        if opts.get("attst") and idx in (1, 2, 3, 14, 15, 5, 6): return
        if stamps and (idx in opts.get("only", range(16)) or idx == 0):
            k(f"s_mem{'' if opts.get('cyc') else 'real'}time s[{sST+2*idx}:{sST+2*idx+1}]")
    def srd(d, lo, size):
        k(f"s_mov_b32 s{d}, s{lo}\ns_mov_b32 s{d+1}, s{lo+1}\ns_mov_b32 s{d+2}, {size}\ns_mov_b32 s{d+3}, 0x20000")
    def readychk(lab, vreg, vz, issue_first):
        k(f"s_mov_b32 s{sCNT}, 0")
        if issue_first: k(f"global_load_dword v{vreg}, v{vz}, s[12:13] sc1")
        k(f"""
        {lab}:
        s_waitcnt vmcnt(0)
        v_readfirstlane_b32 s{sTAG}, v{vreg}
        s_add_u32 s{sCNT}, s{sCNT}, 1
        s_cmp_ge_u32 s{sCNT}, {SPIN_MAX}
        s_cbranch_scc1 {lab}_ok
        s_cmp_ge_u32 s{sTAG}, 64
        s_cbranch_scc1 {lab}_ok
        global_load_dword v{vreg}, v{vz}, s[12:13] sc1
        s_branch {lab}
        {lab}_ok:
        """)
    def gpoll(lab, vreg, vaddr, target):
        k(f"""
        s_mov_b32 s{sCNT}, 0
        {lab}:
        v_mov_b32 v{vreg}, 0
        buffer_atomic_add v{vreg}, v{vaddr}, s[{sWS}:{sWS+3}], 0 offen sc0 sc1
        s_add_u32 s{sCNT}, s{sCNT}, 1
        s_cmp_ge_u32 s{sCNT}, {SPIN_MAX}
        s_waitcnt vmcnt(0)
        s_cbranch_scc1 {lab}_out
        v_cmp_gt_u32 vcc, {target}, v{vreg}
        s_cbranch_vccnz {lab}
        {lab}_out:
        """)
    def lwait(lab, vreg, vaddr, off, target):
        k(f"""
        {lab}:
        ds_read_b32 v{vreg}, v{vaddr} offset:{off}
        s_waitcnt lgkmcnt(0)
        v_cmp_gt_u32 vcc, {target}, v{vreg}
        s_cbranch_vccnz {lab}
        """)

    if stamps:
        for i in range(16): k(f"s_mov_b64 s[{sST+2*i}:{sST+2*i+1}], 0")
    stamp(0)
    k(f"""
    s_cmp_ge_u32 s2, 256
    s_cbranch_scc1 L_end
    s_load_dwordx8 s[4:11], s[0:1], 0
    s_load_dwordx4 s[12:15], s[0:1], 32
    v_lshrrev_b32 v1, 6, v0
    v_and_b32 v0, 63, v0
    v_readfirstlane_b32 s{sWAVE}, v1
    s_and_b32 s{sXCD}, s2, 7
    s_lshr_b32 s{sJ}, s2, 3
    {"s_xor_b32 s%d, s%d, 4" % (sWAVE, sWAVE) if opts.get("swap") else ""}
    s_and_b32 s{sT0}, s{sXCD}, 3
    s_lshl_b32 s{sT0}, s{sT0}, 2
    s_and_b32 s{sT1}, s{sJ}, 3
    s_lshr_b32 s{sT2}, s{sXCD}, 2
    s_lshr_b32 s{sRB}, s{sJ}, 2
    s_lshl_b32 s{sT3}, s{sT2}, 3
    s_add_u32 s{sCT}, s{sT3}, s{sRB}
    s_lshl_b32 s{sT3}, s{sT2}, 1
    s_add_u32 s{sT3}, s{sT3}, s{sT1}
    s_cmp_ge_u32 s{sJ}, 28
    s_cselect_b32 s{sCT}, 7, s{sCT}
    s_cselect_b32 s{sT3}, s{sT3}, s{sT1}
    s_add_u32 s{sR1}, s{sT0}, s{sT3}
    s_cmp_ge_u32 s{sJ}, 30
    s_cselect_b32 s{sCT}, 15, s{sCT}
    s_lshl_b32 s{sH}, s{sXCD}, 2
    s_add_u32 s{sH}, s{sH}, s{sT1}
    s_and_b32 s{sODD}, s{sH}, 1
    s_mov_b32 s{sUP}, 0
    s_mov_b32 s{sUP+1}, -1
    """)
    if opts.get("codepf", 1):
        k(f"""
        s_cmp_lt_u32 s{sJ}, 30
        s_cbranch_scc1 L_nopf
        s_getpc_b64 s[{sT2}:{sT2+1}]
        s_lshl_b32 s{sT0}, s{sWAVE}, 12
        v_lshlrev_b32 v2, 6, v0
        v_add_u32 v2, s{sT0}, v2
        v_min_u32 v2, L_code_end - L_nopf, v2
        global_load_dword v255, v2, s[{sT2}:{sT2+1}]
        L_nopf:
        """)
    k(f"""
    s_cmp_lt_u32 s{sWAVE}, 4
    s_cbranch_scc1 L_compute
    """)
    vLX, vLW = 240, 241
    k(f"""
    s_mov_b32 s{sROLE}, 1
    s_sub_u32 s{sT0}, s{sWAVE}, 4
    v_lshrrev_b32 v2, 3, v0
    v_mul_u32_u24 v2, 1280, v2
    s_and_b32 s{sT1}, s{sT0}, 1
    s_lshl_b32 s{sT1}, s{sT1}, 2
    v_lshrrev_b32 v3, 4, v0
    v_add_u32 v4, s{sT1}, v3
    v_and_b32 v5, 7, v0
    v_xor_b32 v4, v4, v5
    v_lshl_add_u32 v2, v4, 4, v2
    s_mul_i32 s{sT2}, s{sR1}, {128*1280}
    s_mul_i32 s{sT3}, s{sT0}, {8*1280}
    s_add_u32 s{sT2}, s{sT2}, s{sT3}
    v_add_u32 v{vLX}, s{sT2}, v2
    v_mul_u32_u24 v4, 3840, v3
    v_lshlrev_b32 v5, 2, v3
    v_and_b32 v6, 15, v0
    v_xor_b32 v5, v5, v6
    v_lshl_add_u32 v3, v5, 4, v4
    s_lshl_b32 s{sT2}, s{sCT}, 8
    s_mul_i32 s{sT3}, s{sT0}, {4*3840}
    s_add_u32 s{sT2}, s{sT2}, s{sT3}
    v_add_u32 v{vLW}, s{sT2}, v3
    s_lshl_b32 s{sLW}, s{sT0}, 10
    s_and_b32 s{sT1}, s{sJ}, 3
    s_add_u32 s{sT1}, s{sT1}, s{sRB}
    s_and_b32 s{sT1}, s{sT1}, {1 if opts.get('rot') else 0}
    s_mul_i32 s96, s{sT1}, {5*64*3840}
    s_mul_i32 s97, s{sT1}, 640
    s_waitcnt lgkmcnt(0)
    """)
    stamp(1)
    srd(sX, 4, 2621440); srd(sW, 6, 2457600)
    k(f"""
    s_cmp_ge_u32 s{sCT}, 15
    s_cbranch_scc1 L_ld_idle
    """)
    cnt = []
    def issue(c):
        slot = ((c + 3) % NSLOT) * SLOT
        n = 0
        if c < 10:
            for t in range(4):
                k(f"s_add_u32 m0, s{sLW}, {slot + t*4096}")
                k(f"s_{'add' if c < 5 else 'sub'}_u32 s{sT5}, {c*64*3840 + t*16*3840}, s96")
                k(f"buffer_load_dwordx4 v{vLW}, s[{sW}:{sW+3}], s{sT5} offen lds"); n += 1
            for t in range(3):
                k(f"s_add_u32 m0, s{sLW}, {slot + 16384 + t*4096}")
                k(f"s_{'add' if c < 5 else 'sub'}_u32 s{sT5}, {c*128 + t*32*1280}, s97")
                k(f"buffer_load_dwordx4 v{vLX}, s[{sX}:{sX+3}], s{sT5} offen lds"); n += 1
        else:
            hf = c - 10
            for p in range(5):
                k(f"s_add_u32 m0, s{sLW}, {slot + p*4096}")
                k(f"s_{'add' if hf == 0 else 'sub'}_u32 s{sT5}, {3*32*1280 + (hf*5+p)*128}, s97")
                k(f"buffer_load_dwordx4 v{vLX}, s[{sX}:{sX+3}], s{sT5} offen lds"); n += 1
        cnt.append(n)
    for c in range(DEPTH):
        issue(c)
        if c == 0: stamp(2)
    stamp(3)
    srd(sWS, 14, WS_SIZE)
    k("s_branch L_prep")
    k("L_ld_idle:")
    srd(sWS, 14, WS_SIZE); srd(sWO, 8, 819200)
    TP = opts.get("tailpf", 0)
    XP = opts.get("xpf", 0)
    k(f"""
    v_lshlrev_b32 v2, 4, v0
    s_mov_b32 m0, s{sLW}
    s_and_b32 s{sT1}, s{sJ}, 1
    s_lshl_b32 s{sT2}, s{sT1}, 3
    s_add_u32 s{sT2}, s{sT2}, s{sXCD}
    """)
    def warm(lab, srd_, n):
        k(f"""
        s_mov_b32 s{sT3}, 0
        {lab}:
        buffer_load_dwordx4 v2, s[{srd_}:{srd_+3}], s{sT0} offen lds
        s_add_u32 s{sT0}, s{sT0}, 4096
        s_add_u32 s{sT3}, s{sT3}, 1
        {"s_cmp_ge_u32 s%d, 819200" % sT0 if srd_ == sWO else ""}
        {"s_cselect_b32 s%d, s%d, s%d" % (sT0, sLW, sT0) if srd_ == sWO else ""}
        s_waitcnt vmcnt(12)
        s_cmp_lt_u32 s{sT3}, {n}
        s_cbranch_scc1 {lab}
        """)
    if TP:
        k(f"s_mul_i32 s{sT0}, s{sT2}, {4*TP*3840}\ns_add_u32 s{sT0}, s{sT0}, {(640-64*TP)*3840}\ns_add_u32 s{sT0}, s{sT0}, s{sLW}")
        warm("L_tpw", sW, (15 * TP + 3) // 4)
    if XP:
        k(f"s_mul_i32 s{sT0}, s{sT2}, {128*1280}\ns_add_u32 s{sT0}, s{sT0}, {96*1280}\ns_add_u32 s{sT0}, s{sT0}, s{sLW}")
        warm("L_tpx", sX, 10)
    k(f"""
    s_mul_i32 s{sT0}, s{sT1}, 409600
    s_mul_i32 s{sT3}, s{sXCD}, {opts.get("wrot", 49152)}
    s_add_u32 s{sT0}, s{sT0}, s{sT3}
    s_add_u32 s{sT0}, s{sT0}, s{sLW}
    """)
    warm("L_warm", sWO, opts.get("nwarm", 50))
    k(f"""
    s_waitcnt vmcnt(0)
    s_branch L_prep
    """)

    AREG = 96
    ACCS = [16, 32, 48, 48]
    BR = 64
    PK = 80
    vXb = [[2, 3, 4, 5], [6, 7, 8, 9], [88, 89, 90, 91]]
    vWb = [10, 11, 92]
    vSA, vSB, vTG, vZ0, vFA = 12, 13, 14, 15, 1
    k("L_compute:")
    k(f"""
    s_mov_b32 s{sROLE}, 0
    {"s_setprio 1" if opts.get("swap") == 1 else ""}
    v_and_b32 v16, 31, v0
    v_lshrrev_b32 v17, 5, v0          ; h
    v_bfe_u32 v18, v0, 1, 3
    v_xor_b32 v18, v18, v17           ; y
    v_lshlrev_b32 v19, 7, v16         ; row*128
    """)
    for s in range(4):
        k(f"v_xor_b32 v20, {2*s}, v18\nv_lshl_add_u32 v{vXb[0][s]}, v20, 4, v19")
        k(f"v_add_u32 v{vXb[1][s]}, {2*SLOT}, v{vXb[0][s]}")
    k(f"""
    v_bfe_u32 v20, v0, 2, 2           ; r
    v_lshl_add_u32 v21, v17, 3, v20   ; 8h + r
    v_lshlrev_b32 v21, 8, v21         ; *256
    v_bfe_u32 v22, v0, 4, 1           ; g&1
    v_bfe_u32 v23, v0, 1, 1           ; c>>1
    v_lshl_add_u32 v22, v22, 1, v23
    v_and_b32 v23, 1, v0
    v_lshl_add_u32 v21, v23, 3, v21
    v_lshl_add_u32 v21, v22, 4, v21
    v_xor_b32 v22, s{sWAVE}, v20
    v_lshl_add_u32 v{vWb[0]}, v22, 6, v21
    v_add_u32 v{vWb[1]}, {2*SLOT}, v{vWb[0]}
    v_lshlrev_b32 v{vSA}, 4, v0               ; lane*16
    v_lshlrev_b32 v{vSB}, 4, v16
    v_lshl_add_u32 v{vSB}, v17, 15, v{vSB}    ; (l&31)*16 + h*32768
    v_mov_b32 v{vZ0}, 0
    s_lshl_b32 s{sT0}, s{sCT}, 2
    s_add_u32 s{sT0}, s{sT0}, s{sWAVE}
    s_lshl_b32 s{sSTO}, s{sT0}, 17
    s_lshl_b32 s{sT1}, s{sR1}, 11
    s_add_u32 s{sSTO}, s{sSTO}, s{sT1}
    ; consumers of this wave's 32 columns: ty = cg/20, c = cg%20 ; heads floor(8c/5) .. floor((8c+12)/5)-1 ; row blocks r>>1 (+1 for K,V)
    s_mul_i32 s{sT1}, s{sT0}, 205
    s_lshr_b32 s{sT1}, s{sT1}, 12             ; ty
    s_mul_i32 s{sT2}, s{sT1}, 20
    s_sub_u32 s{sT2}, s{sT0}, s{sT2}          ; c
    s_mul_i32 s{sT3}, s{sT2}, 1640
    s_lshr_b32 s{sT3}, s{sT3}, 10             ; floor(8c/5)
    s_lshl_b32 s{sT2}, s{sT2}, 3
    s_add_u32 s{sT2}, s{sT2}, 12
    s_mul_i32 s{sT2}, s{sT2}, 205
    s_lshr_b32 s{sT2}, s{sT2}, 10             ; floor((8c+12)/5)
    v_and_b32 v20, 3, v0
    v_add_u32 v20, s{sT3}, v20                ; head
    v_lshrrev_b32 v21, 2, v0                  ; Rsel
    s_lshr_b32 s{sT3}, s{sR1}, 1
    s_min_u32 s{sT1}, s{sT1}, 1
    s_add_u32 s{sT1}, s{sT1}, s{sT3}
    s_min_u32 s{sT1}, s{sT1}, 7
    v_add_u32 v21, s{sT3}, v21
    v_cmp_gt_u32 vcc, s{sT2}, v20
    v_cmp_ge_u32 s[{sT4}:{sT4+1}], s{sT1}, v21
    s_and_b64 s[{sEX}:{sEX+1}], vcc, s[{sT4}:{sT4+1}]
    v_lshl_add_u32 v20, v21, 5, v20
    v_mul_u32_u24 v{vFA}, 384, v20
    v_add_u32 v{vFA}, {CN1_OFF}, v{vFA}
    s_cmp_lt_u32 s{sCT}, 5
    s_cselect_b32 s{sSC}, {hex(f2u(QSCALE))}, 1.0
    s_waitcnt lgkmcnt(0)
    """)
    srd(sWS, 14, WS_SIZE)
    k(f"""
    s_cmp_lt_u32 s{sCT}, 15
    s_cbranch_scc1 L_p1_go
    s_and_b32 s{sT0}, s{sJ}, 1
    s_lshl_b32 s{sT0}, s{sT0}, 3
    s_add_u32 s{sT0}, s{sT0}, s{sXCD}
    s_lshl_b32 s{sT0}, s{sT0}, 2
    s_add_u32 s{sT0}, s{sT0}, s{sWAVE}
    s_mul_i32 s{sT0}, s{sT0}, {20*128}
    s_add_u32 s{sT0}, s{sT0}, {CN1_OFF}
    v_lshlrev_b32 v20, 7, v0
    v_mov_b32 v21, 1
    s_mov_b64 exec, 0xfffff
    buffer_store_dword v{vZ0}, v20, s[{sWS}:{sWS+3}], s{sT0} offen sc1
    s_mov_b64 exec, 1
    s_waitcnt vmcnt(0)
    global_atomic_add v{vZ0}, v21, s[12:13] sc1
    s_mov_b64 exec, -1
    s_branch L_prep
    L_p1_go:
    """)
    def rdA(c, s):
        sl = (c + 3) % NSLOT
        o = (sl & 1) * SLOT + s * 16 * 256
        va = vWb[sl >> 1]
        a = AREG + 4 * (4 * c + s)
        k(f"ds_read_b64_tr_b16 v[{a}:{a+1}], v{va} offset:{o}")
        k(f"ds_read_b64_tr_b16 v[{a+2}:{a+3}], v{va} offset:{o + 4*256}")
    def rdB(c, s, off, f):
        sl = (c + 3) % NSLOT
        b = BR + 4 * f
        k(f"ds_read_b128 v[{b}:{b+3}], v{vXb[sl >> 1][s]} offset:{(sl & 1) * SLOT + off}")
    def mf(acc, ks, f, first):
        a = AREG + 4 * ks; b = BR + 4 * f
        cs = "0" if first else f"v[{acc}:{acc+15}]"
        k(f"v_mfma_f32_32x32x16_bf16 v[{acc}:{acc+15}], v[{a}:{a+3}], v[{b}:{b+3}], {cs}")
    fr = lambda s, g: 3 * (s & 1) + g
    def rd(c, s):
        rdA(c, s)
        for g in range(3): rdB(c, s, 16384 + g * 4096, fr(s, g))
    def mf3(c, s):
        for g in range(3): mf(ACCS[g], 4*c+s, fr(s, g), c == 0 and s == 0)
    PIPE = opts.get("pipe", 1)
    if PIPE:
        k("s_barrier      ; B_0")
        stamp(1)
        rd(0, 0); rd(0, 1)
        for c in range(10):
            if c == 4: k(f"global_load_dword v{vTG}, v{vZ0}, s[12:13] sc1")
            if c == 8:
                readychk("L_rdy1", vTG, vZ0, False)
                k(f"v_mov_b32 v{vTG}, 1")
            for s in range(2):
                k("s_waitcnt lgkmcnt(5)")
                mf3(c, s); rd(c, s + 2)
            k("s_waitcnt lgkmcnt(5)")
            mf3(c, 2)
            k("s_waitcnt lgkmcnt(0)")
            k(f"s_barrier      ; B_{c+1}")
            if c < 9: rd(c + 1, 0)
            else:
                for i in range(3):
                    rdB(10, i, 0, i)
            mf3(c, 3)
            if c < 9: rd(c + 1, 1)
    else:
      for c in range(10):
        k(f"s_barrier      ; B_{c}")
        if c == 0: stamp(1)
        rd(c, 0); rd(c, 1)
        if c == 5: k(f"global_load_dword v{vTG}, v{vZ0}, s[12:13] sc1")
        if c == 9:
            readychk("L_rdy1", vTG, vZ0, False)
            k(f"v_mov_b32 v{vTG}, 1")
        for s in range(4):
            k(f"s_waitcnt lgkmcnt({5 if s < 3 else 0})")
            mf3(c, s)
            if s < 2: rd(c, s + 2)
    stamp(2)
    def ep_pair(c0, c1, q, vaddr, off_s):
        return [f"v_cvt_pk_bf16_f32 v{q}, v{c0}, v{c0+1}",
                f"v_cvt_pk_bf16_f32 v{q+1}, v{c0+2}, v{c0+3}",
                f"v_cvt_pk_bf16_f32 v{q+2}, v{c1}, v{c1+1}",
                f"v_cvt_pk_bf16_f32 v{q+3}, v{c1+2}, v{c1+3}",
                f"s_add_u32 s{sT5}, s{sSTO}, {off_s}",
                "s_nop 0",
                f"v_permlane32_swap_b32 v{q}, v{q+2}",
                f"v_permlane32_swap_b32 v{q+1}, v{q+3}",
                f"buffer_store_dwordx4 v[{q}:{q+3}], v{vaddr}, s[{sWS}:{sWS+3}], s{sT5} offen sc1"]
    def mulq(c):
        return [f"v_mul_f32 v{c+i}, s{sSC}, v{c+i}" for i in range(4)]
    def ep_part0():
        o = []
        for b in range(4):
            o += mulq(ACCS[0] + 4*b) + mulq(ACCS[1] + 4*b)
            o += ep_pair(ACCS[0] + 4*b, ACCS[1] + 4*b, PK + 4*(b & 1), vSA, b * 32768)
        return o
    def ep_part(g):
        acc = ACCS[g]
        o = []
        for b in (0, 2):
            o += mulq(acc + 4*b) + mulq(acc + 4*b + 4)
            o += ep_pair(acc + 4*b, acc + 4*b + 4, PK + 2*b, vSB, b * 32768 + g * 512)
        return o
    def flag(st, vm):
        return [f"s_mov_b64 exec, s[{sEX}:{sEX+1}]", f"s_waitcnt vmcnt({vm})",
                f"buffer_atomic_add v{vTG}, v{vFA}, s[{sWS}:{sWS+3}], 0 offen offset:{st*128} sc1", "s_mov_b64 exec, -1"]
    steps = []
    for c in range(10, 12):
        hf = c - 10
        for p in range(5):
            for s in range(4):
                steps.append((c, hf * 20 + p * 4 + s, s, p * 4096))
    LOOK = 3
    PER = opts.get("per", 3)
    fill = {}
    def spread(instrs, start, per):
        i = start
        while instrs:
            fill.setdefault(i, []).extend(instrs[:per]); instrs = instrs[per:]; i += 1
        return i
    G2T = 88 if NSLOT == 4 else None
    def g2_conv():
        o = []
        for b in range(4):
            c = ACCS[2] + 4 * b
            o += mulq(c) + [f"v_cvt_pk_bf16_f32 v{G2T+2*b}, v{c}, v{c+1}", f"v_cvt_pk_bf16_f32 v{G2T+2*b+1}, v{c+2}, v{c+3}"]
        return o
    def g2_store():
        o = []
        for b in (0, 2):
            q = G2T + 2 * b
            o += [f"s_add_u32 s{sT5}, s{sSTO}, {b*32768 + 2*512}", f"v_permlane32_swap_b32 v{q}, v{q+2}", f"v_permlane32_swap_b32 v{q+1}, v{q+3}",
                  f"buffer_store_dwordx4 v[{q}:{q+3}], v{vSB}, s[{sWS}:{sWS+3}], s{sT5} offen sc1"]
        return o
    e0 = spread(g2_store() + ep_part0(), 0, PER)
    FAT = opts.get("fat", 38)
    assert e0 <= FAT
    fill.setdefault(FAT, []).extend(flag(0, 4))
    if not PIPE:
        k("s_barrier      ; B_10")
        for i in range(LOOK):
            c, ks, s, off = steps[i]
            rdB(c, s, off, i % 4)
    k("s_nop 8" if not PIPE else "s_nop 11")
    for ins in g2_conv(): k(ins)
    for i, (c, ks, s, off) in enumerate(steps):
        n = i + LOOK
        if n < 40:
            cn, ksn, sn, offn = steps[n]
            if cn != steps[n - 1][0]: k(f"s_barrier      ; B_{cn}")
            rdB(cn, sn, offn, n % 4)
        k(f"s_waitcnt lgkmcnt({min(LOOK, 39 - i)})")
        mf(ACCS[3], ks, i % 4, ks == 0)
        for ins in fill.get(i, []): k(ins)
        if i == FAT: stamp(6)
    stamp(14)
    k("s_nop 11")
    for ins in ep_part(3): k(ins)
    for ins in flag(1, 3): k(ins)
    stamp(5)

    vKA1, vKA2, vVA0, vVA1 = 2, 3, 4, 5
    vOA, vOH = 6, 7
    vCW, vCN = 8, 9
    vQA1, vQA2 = 10, 11
    vQ1, vQ2 = 16, 20
    MK, MP, PD = 32, 48, 56
    S = [64, 80]
    P = 96
    KF = [104, 112]
    VF = [120, 128]
    OA = 136
    k("L_prep:")
    k(f"""
    v_and_b32 v25, 31, v0              ; q
    v_lshrrev_b32 v26, 5, v0           ; h
    v_lshlrev_b32 v27, 2, v26
    v_sub_u32 v27, v27, v25            ; 4h - q
    """)
    for i in range(16):
        key = 8 * (i >> 2) + (i & 3)
        k(f"v_add_u32 v{MK+i}, {key-1}, v27")
        k(f"v_ashrrev_i32 v{MK+i}, 31, v{MK+i}")
    k(f"s_mov_b32 s{sT1}, 0xffff")
    for j in range(8):
        k(f"v_bfi_b32 v{MP+j}, s{sT1}, v{MK+2*j}, v{MK+2*j+1}")
    k(f"""
    s_cmp_eq_u32 s{sROLE}, 1
    s_cbranch_scc1 L_nof
    s_cmp_ge_u32 s{sCT}, 15
    s_cbranch_scc1 L_nof
    """)
    for ins in flag(2, 1): k(ins)
    stamp(3)
    k(f"""
    L_nof:
    s_lshl_b32 s{sT0}, s{sWAVE}, 9        ; w*512
    v_lshlrev_b32 v27, 4, v25
    v_add_u32 v27, s{sT0}, v27            ; (32w+q)*16
    v_lshl_add_u32 v{vKA1}, v26, 13, v27
    v_add_u32 v{vKA1}, {LDS_K}, v{vKA1}
    s_lshl_b32 s{sT1}, s{sODD}, 3
    s_add_u32 s{sT2}, s{sT1}, {LDS_K+16384}
    v_add_u32 v{vKA2}, s{sT2}, v27
    s_sub_u32 s{sT2}, {LDS_K+16384+12*16+8}, s{sT1}
    v_mov_b32 v31, s{sT2}
    v_cndmask_b32 v{vKA2}, v{vKA2}, v31, s[{sUP}:{sUP+1}]
    v_lshl_add_u32 v{vCW}, v25, 8, v31
    v_lshl_add_u32 v{vCW}, v26, 4, v{vCW}
    s_sub_u32 s{sT2}, {LDS_V+16384+511*16+8}, s{sT1}
    v_mov_b32 v{vCN}, s{sT2}
    v_lshl_add_u32 v{vQA1}, v26, 12, v27
    v_add_u32 v{vQA1}, {LDS_Q}, v{vQA1}
    s_add_u32 s{sT2}, s{sT1}, {LDS_Q+8192}
    v_add_u32 v{vQA2}, s{sT2}, v27
    s_lshr_b32 s{sT1}, s{sH}, 1
    s_mul_i32 s{sB0}, s{sT1}, 5            ; 5m
    s_mul_i32 s{sT2}, s{sODD}, 3
    s_add_u32 s{sT2}, s{sT2}, s{sB0}       ; blockA
    s_lshl_b32 s{sT3}, s{sRB}, 12          ; 256*RB*16
    s_lshl_b32 s{sT4}, s{sT2}, 15
    s_add_u32 s{sT4}, s{sT4}, s{sT3}
    s_add_u32 s{sT4}, s{sT4}, {O_OFF}
    v_lshl_add_u32 v{vOA}, v26, 15, v27
    v_add_u32 v{vOA}, s{sT4}, v{vOA}
    s_add_u32 s{sT4}, s{sB0}, 2
    s_lshl_b32 s{sT4}, s{sT4}, 15
    s_add_u32 s{sT4}, s{sT4}, s{sT3}
    s_lshl_b32 s{sT5}, s{sODD}, 3
    s_add_u32 s{sT4}, s{sT4}, s{sT5}
    s_add_u32 s{sT4}, s{sT4}, {O_OFF}
    v_add_u32 v{vOH}, s{sT4}, v27
    v_bfe_u32 v30, v0, 4, 1              ; g1
    v_bfe_u32 v29, v0, 1, 1              ; c>>1
    v_cmp_eq_u32 vcc, 1, v30
    v_mov_b32 v28, 2
    v_and_b32 v25, 1, v0                 ; c&1
    v_cndmask_b32 v29, v29, v28, vcc     ; p
    v_and_b32 v30, v25, v30
    v_mov_b32 v28, s{sODD}
    v_cndmask_b32 v25, v25, v28, vcc
    v_bfe_u32 v28, v0, 2, 2              ; r
    v_lshl_add_u32 v28, v26, 2, v28      ; 4h + r
    v_lshlrev_b32 v26, 2, v29            ; p<<2
    v_lshlrev_b32 v27, 13, v29           ; p*8192
    v_lshl_add_u32 v27, v25, 3, v27
    v_add_u32 v27, s{sT0}, v27
    v_add_u32 v27, {LDS_V}, v27
    v_xor_b32 v25, v28, v26
    v_lshl_add_u32 v{vVA0}, v25, 4, v27
    v_or_b32 v28, 8, v28
    v_xor_b32 v25, v28, v26
    v_lshl_add_u32 v{vVA1}, v25, 4, v27
    v_cmp_eq_u32 vcc, 1, v30
    s_cmp_eq_u32 s{sRB}, 0
    s_cselect_b32 s{sNT}, s{sWAVE}, 7
    v_cndmask_b32 v{vVA0}, v{vVA0}, v31, vcc
    v_cndmask_b32 v{vVA1}, v{vVA1}, v31, vcc
    """)
    if opts.get("zrow", 1):
        k(f"""
        v_and_b32 v25, 18, v0
        v_cmp_eq_u32 vcc, 18, v25            ; g1 && c>=2
        v_add_u32 v31, 16, v31
        s_nop 0
        v_cndmask_b32 v{vVA0}, v{vVA0}, v31, vcc
        v_cndmask_b32 v{vVA1}, v{vVA1}, v31, vcc
        """)
    k(f"""
    v_mov_b32 v22, 0x3f80
    v_mov_b32 v23, 0
    v_cndmask_b32 v22, v22, v23, s[{sUP}:{sUP+1}]
    s_cmp_eq_u32 s{sROLE}, 1
    s_cbranch_scc1 L_role_ld
    """)
    vWOA = 200
    k(f"s_lshl_b32 s{sLW}, s{sWAVE}, 10\ns_lshl_b32 s{sT0}, s{sWAVE}, 6\nv_add_u32 v26, s{sT0}, v0\ns_mul_i32 s{sWB}, s{sRB}, 160")
    for i in range(5):
        if i: k(f"v_add_u32 v26, 256, v26")
        k(f"""
        v_mul_u32_u24 v27, 6554, v26
        v_lshrrev_b32 v27, 16, v27        ; rho
        v_mul_u32_u24 v28, 10, v27
        v_sub_u32 v28, v26, v28           ; piece
        v_and_b32 v29, 0x63, v27
        v_bfe_u32 v30, v27, 2, 2          ; g
        v_lshl_add_u32 v29, v30, 3, v29
        v_bfe_u32 v30, v27, 4, 1          ; t
        v_lshl_add_u32 v29, v30, 2, v29   ; k
        v_mul_u32_u24 v29, 1280, v29
        v_lshl_add_u32 v{vWOA+i}, v28, 4, v29
        """)
    srd(sWO, 8, 819200)
    k(f"""
    s_cmp_lt_u32 s{sCT}, 15
    s_cbranch_scc1 L_BD
    """)
    readychk("L_rdy2", vTG, vZ0, True)
    k("s_branch L_BD")

    vP, vZ, vF = 220, 221, 222
    vU = 224
    TY = 80 * 32768
    k(f"""
    L_role_ld:
    v_mov_b32 v{vZ}, 0
    s_lshl_b32 s{sT1}, s{sODD}, 1
    s_add_u32 s{sT1}, s{sT1}, s{sB0}
    s_add_u32 s{sT2}, s{sT1}, 2
    s_lshr_b32 s{sT1}, s{sT1}, 2
    s_lshr_b32 s{sT2}, s{sT2}, 2
    s_sub_u32 s{sT2}, s{sT2}, s{sT1}          ; 0 or 1
    s_cmp_eq_u32 s{sRB}, 0
    s_cselect_b32 s{sNX}, 6, 10
    s_movk_i32 s{sUM}, 0x3ff
    s_cselect_b32 s{sUM}, 0x333, s{sUM}
    s_lshl_b32 s{sNX}, s{sNX}, s{sT2}
    s_and_b32 s{sT0}, s{sWAVE}, 1
    s_lshl_b32 s{sT1}, 0x155, s{sT0}
    s_and_b32 s101, s{sUM}, s{sT1}
    s_cmp_lt_u32 s{sWAVE}, 6
    s_cselect_b32 s{sUM}, s{sUM}, s101
    s_sub_u32 s{sFL}, s{sWAVE}, 4
    s_min_u32 s{sFL}, s{sFL}, 2
    s_lshl_b32 s{sT0}, s{sRB}, 5
    s_add_u32 s{sT0}, s{sT0}, s{sH}
    s_mul_i32 s{sT0}, s{sT0}, 3
    s_add_u32 s{sT0}, s{sT0}, s{sFL}
    s_lshl_b32 s{sT0}, s{sT0}, 7
    s_add_u32 s{sT0}, s{sT0}, {CN1_OFF}
    v_mov_b32 v{vF}, s{sT0}
    s_mul_i32 s{sT0}, s{sODD}, 3
    s_add_u32 s{sT0}, s{sT0}, s{sB0}
    s_lshl_b32 s{sT0}, s{sT0}, 15
    s_add_u32 s{sT1}, s{sB0}, 2
    s_lshl_b32 s{sT1}, s{sT1}, 15
    s_lshl_b32 s{sT2}, s{sRB}, 12
    s_add_u32 s{sT0}, s{sT0}, s{sT2}
    s_add_u32 s{sT1}, s{sT1}, s{sT2}
    v_lshlrev_b32 v219, 4, v0
    v_add_u32 v{vU}, s{sT0}, v219
    v_add_u32 v{vU+1}, 32768, v{vU}
    v_add_u32 v{vU+2}, s{sT1}, v219
    v_xor_b32 v{vU+3}, 64, v{vU+1}
    v_xor_b32 v{vU+4}, 128, v{vU+2}
    s_cmp_ge_u32 s{sCT}, 15
    s_cbranch_scc1 L_ld_idle2
    """)
    srd(sX, 4, 2621440); srd(sW, 6, 2457600)
    for c in range(NCH):
        k(f"s_waitcnt vmcnt({sum(cnt[c+1:])})")
        if c == 9: stamp(15)
        if c == NCH - 1: stamp(14)
        k(f"s_barrier      ; B_{c}")
        if c == 7: k(f"global_load_dword v{vP}, v{vZ}, s[12:13] sc1")
        if len(cnt) < NCH: issue(len(cnt))
    k(f"""
    s_branch L_ld_go
    L_ld_idle2:
    global_load_dword v{vP}, v{vZ}, s[12:13] sc1
    L_ld_go:
    """)
    readychk("L_rdy3", vP, vZ, False)
    k(f"""
    L_fetch:
    s_lshl_b32 s{sSTO}, s{sFL}, 8
    s_add_u32 s{sSTO}, s{sSTO}, 1024
    s_cmp_eq_u32 s{sFL}, 1
    s_cselect_b32 s{sSTO}, 0, s{sSTO}
    s_cselect_b32 s{sT4}, -1, 0
    s_mov_b64 exec, 1
    """)
    gpoll("L_poll1", vP, vF, f"s{sNX}")
    stamp(4)
    k(f"""
    s_mov_b32 exec_lo, -1
    s_mov_b32 exec_hi, s{sT4}
    """)
    for u in (0, 1, 4, 5, 8, 9, 2, 3, 6, 7):
        ty = (u + 2) >> 2; t1 = (u + 2) & 3
        k(f"s_bitcmp1_b32 s{sUM}, {u}\ns_cbranch_scc0 L_skipu{u}")
        for p in range(3):
            ldsb = [LDS_Q + (t1 - 2) * 2048 + p * 4096, LDS_K + t1 * 2048 + p * 8192, LDS_V + t1 * 2048 + p * 8192][ty]
            vr = vU + p if (ty < 2 or p == 0) else vU + 2 + p
            k(f"s_add_u32 m0, s{sSTO}, {ldsb}")
            if p == 0: k(f"s_add_u32 s{sT5}, s{sSTO}, {ty * TY + (t1 - 2) * 2048}")
            else: k("s_nop 0")
            k(f"buffer_load_dwordx4 v{vr}, s[{sWS}:{sWS+3}], s{sT5} offen sc1 lds")
        k(f"L_skipu{u}:")
    stamp(5)
    k(f"""
    s_mov_b64 exec, -1
    s_waitcnt vmcnt(0)
    """)
    stamp(6)
    k(f"""
    s_cmp_lg_u32 s{sWAVE}, 7
    s_cbranch_scc1 L_BD
    ds_write_b32 v{vCN}, v{vZ}
    s_waitcnt lgkmcnt(0)
    L_BD:
    s_barrier
    """)
    stamp(7)

    def LK(kk, buf):
        off = (8 - kk) * 512
        f = KF[buf]
        k(f"ds_read_b128 v[{f}:{f+3}], v{vKA1} offset:{off}")
        k(f"ds_read_b64 v[{f+4}:{f+5}], v{vKA2} offset:{off}")
    def LV(kk, buf):
        off = (8 - kk) * 512
        f = VF[buf]
        for u in range(2):
            for t in range(2):
                k(f"ds_read_b64_tr_b16 v[{f+4*u+2*t}:{f+4*u+2*t+1}], v{[vVA0, vVA1][t]} offset:{off + u*256}")
    def QK(buf, sbuf):
        f = KF[buf]; s = S[sbuf]
        k(f"v_mfma_f32_32x32x16_bf16 v[{s}:{s+15}], v[{f}:{f+3}], v[{vQ1}:{vQ1+3}], 0")
        k(f"v_mfma_f32_32x32x8_bf16 v[{s}:{s+15}], v[{f+4}:{f+5}], v[{vQ2}:{vQ2+1}], v[{s}:{s+15}]")
    def EXP(sbuf, lo, hi):
        s = S[sbuf]
        for i in range(lo, hi): k(f"v_exp_f32 v{s+i}, v{s+i}")
    def CVT(sbuf, lo, hi):
        s = S[sbuf]
        for i in range(lo, hi): k(f"v_cvt_pk_bf16_f32 v{P+i}, v{s+2*i}, v{s+2*i+1}")
    def PV(buf, u, p=P, first=False):
        f = VF[buf] + 4 * u
        cs = "0" if first else f"v[{OA}:{OA+15}]"
        k(f"v_mfma_f32_32x32x16_bf16 v[{OA}:{OA+15}], v[{f}:{f+3}], v[{p+4*u}:{p+4*u+3}], {cs}")
    def wo_group(gi):
        for i in range(5):
            k(f"s_add_u32 m0, s{sLW}, {LDS_WO + (gi*5+i)*4096}")
            if i == 0: k(f"s_add_u32 s{sT5}, s{sWB}, {gi*4*40960}")
            else: k("s_nop 0")
            k(f"buffer_load_dwordx4 v{vWOA+i}, s[{sWO}:{sWO+3}], s{sT5} offen lds")
    def wo_opt(gi):
        if opts.get("nowo"): return
        k(f"s_cmp_eq_u32 s{sROLE}, 1\ns_cbranch_scc1 L_nowo{gi}")
        wo_group(gi)
        k(f"L_nowo{gi}:")

    PR = opts.get("pr", 0)
    PRS = {0: None, 1: [3, 3, 2, 2, 1, 1, 0, 0], 2: [3, 2, 2, 1, 1, 0, 0, 0], 3: [3, 3, 3, 2, 2, 1, 1, 0], 4: [1, 1, 1, 1, 0, 0, 0, 0], 5: [3, 2, 1, 0, 3, 2, 1, 0]}[PR]
    def setpr(st):
        if PRS and (st == 0 or PRS[st] != PRS[st - 1]): k(f"s_setprio {PRS[st]}")
    setpr(0)
    k(f"""
    s_mov_b32 exec_lo, 0x3ffff
    s_mov_b32 exec_hi, 0x3ffff
    ds_write_b64 v{vCW}, v[22:23]
    s_mov_b64 exec, -1
    ds_read_b128 v[{vQ1}:{vQ1+3}], v{vQA1}
    ds_read_b64 v[{vQ2}:{vQ2+1}], v{vQA2}
    """)
    LK(0, 0); LK(8, 1); LV(0, 0); LV(8, 1)
    k(f"""
    s_waitcnt lgkmcnt(12)
    v_cndmask_b32 v{vQ2}, v{vQ2}, 0, s[{sUP}:{sUP+1}]
    v_cndmask_b32 v{vQ2+1}, v{vQ2+1}, 0, s[{sUP}:{sUP+1}]
    s_waitcnt lgkmcnt(10)
    s_cmp_eq_u32 s{sRB}, 0
    """)
    QK(0, 0)
    k("s_cbranch_scc1 L_nofar")
    k("s_waitcnt lgkmcnt(8)")
    QK(1, 1)
    k("L_far_done:")
    LK(1, 0)
    wo_opt(0)
    k("s_nop 7")
    s = S[0]
    for i in range(16): k(f"v_bfi_b32 v{s+i}, v{MK+i}, v{s+i}, v{S[1]+i}")
    k(f"v_max3_f32 v25, v{s}, v{s+1}, v{s+2}")
    k(f"v_max3_f32 v26, v{s+3}, v{s+4}, v{s+5}")
    k(f"v_max3_f32 v25, v25, v{s+6}, v{s+7}")
    k(f"v_max3_f32 v26, v26, v{s+8}, v{s+9}")
    k(f"v_max3_f32 v25, v25, v{s+10}, v{s+11}")
    k(f"v_max3_f32 v26, v26, v{s+12}, v{s+13}")
    k(f"v_max3_f32 v25, v25, v{s+14}, v{s+15}")
    k(f"""
    v_max_f32 v25, v25, v26
    v_mov_b32 v26, v25
    s_nop 1
    v_permlane32_swap_b32 v25, v26
    v_max_f32 v25, v25, v26
    v_and_b32 v25, 0xffff0000, v25
    v_lshrrev_b32 v26, 16, v25
    v_xor_b32 v26, 0x8000, v26
    v_cndmask_b32 v{vQ2}, v{vQ2}, v26, s[{sUP}:{sUP+1}]
    """)
    astamp(5)
    for i in range(4): k(f"v_sub_f32 v{s+i}, v{s+i}, v25")
    k("s_waitcnt lgkmcnt(0)")
    QK(0, 1)
    LK(2, 1)
    for i in range(4, 16): k(f"v_sub_f32 v{s+i}, v{s+i}, v25")
    EXP(0, 0, 8)
    CVT(0, 0, 4)
    for j in range(4): k(f"v_and_b32 v{PD+j}, v{MP+j}, v{P+j}")
    for j in range(4): k(f"v_xor_b32 v{P+j}, v{PD+j}, v{P+j}")
    EXP(0, 8, 10)
    PV(0, 0, PD, first=True)
    EXP(0, 10, 13)
    k(f"s_cmp_eq_u32 s{sRB}, 0\ns_cbranch_scc1 L_nofar1")
    PV(1, 0)
    k("L_nofar1:")
    EXP(0, 13, 16)
    k("s_nop 0")
    CVT(0, 4, 8)
    for j in range(4, 8): k(f"v_and_b32 v{PD+j}, v{MP+j}, v{P+j}")
    for j in range(4, 8): k(f"v_xor_b32 v{P+j}, v{PD+j}, v{P+j}")
    PV(0, 1, PD)
    k(f"s_cbranch_scc1 L_nofar2")
    PV(1, 1)
    k("L_nofar2:")
    LV(1, 0)
    k(f"s_cmp_eq_u32 s{sNT}, 0\ns_cbranch_scc1 L_worest1")
    astamp(1)
    for i in range(7):
        if i == 2: astamp(2)
        if i == 4: astamp(3)
        if i == 6: astamp(14)
        cur = (i + 1) & 1; nxt = i & 1
        setpr(i + 1)
        if i < 6:
            k("s_waitcnt lgkmcnt(4)")
            QK((i + 1) & 1, nxt)
        if i < 5: LK(i + 3, i & 1)
        if i < 4: wo_opt(i + 1)
        EXP(cur, 0, 8)
        CVT(cur, 0, 4)
        EXP(cur, 8, 10)
        k(f"s_waitcnt lgkmcnt({2 if i < 5 else 0})")
        PV(i & 1, 0)
        EXP(cur, 10, 16)
        k("s_nop 0")
        CVT(cur, 4, 8)
        if i < 6: LV(i + 2, (i + 1) & 1)
        else: k("s_nop 1")
        PV(i & 1, 1)
        if i < 6:
            k(f"s_cmp_eq_u32 s{sNT}, {i+1}")
            k(f"s_cbranch_scc1 {'L_worest%d' % (i+2) if i < 3 else 'L_p2_done'}")
    k("L_p2_done:")
    if PRS: k("s_setprio 0" if not opts.get("prend") else f"s_setprio {opts['prend']}")
    astamp(15)
    k(f"""
    s_lshl_b32 s{sT2}, s{sRB}, 5
    s_and_b32 s{sT3}, s{sWAVE}, 3
    s_add_u32 s{sT2}, s{sT2}, s{sT3}
    s_lshl_b32 s{sT2}, s{sT2}, 1
    s_add_u32 s{sT2}, s{sT2}, s{sROLE}
    s_lshl_b32 s{sT2}, s{sT2}, 7
    s_add_u32 s{sFL}, s{sT2}, {CN2_OFF}
    v_mov_b32 v27, {hex(f2u(2.0**60))}
    v_mov_b32 v30, {hex(f2u(2.0**-60))}
    v_mov_b32 v28, 1
    v_lshlrev_b32 v29, 10, v0
    s_nop 0
    v_mov_b32 v25, v{OA+8}
    v_mov_b32 v26, v{OA+8}
    s_nop 1
    v_permlane32_swap_b32 v25, v26
    v_cmp_nlt_f32 vcc, v26, v27
    v_cmp_ngt_f32 s[{sT0}:{sT0+1}], v26, v30
    s_or_b64 vcc, vcc, s[{sT0}:{sT0+1}]
    s_cbranch_vccnz L_slow
    L_p2_norm:
    v_rcp_f32 v26, v26
    s_nop 0
    """)
    for i in range(12): k(f"v_mul_f32 v{OA+i}, v{OA+i}, v26")
    k(f"""
    v_cvt_pk_bf16_f32 v{P}, v{OA}, v{OA+1}
    v_cvt_pk_bf16_f32 v{P+1}, v{OA+2}, v{OA+3}
    v_cvt_pk_bf16_f32 v{P+2}, v{OA+4}, v{OA+5}
    v_cvt_pk_bf16_f32 v{P+3}, v{OA+6}, v{OA+7}
    v_cvt_pk_bf16_f32 v{P+4}, v{OA+8}, v{OA+9}
    v_cvt_pk_bf16_f32 v{P+5}, v{OA+10}, v{OA+11}
    v_permlane32_swap_b32 v{P}, v{P+2}
    v_permlane32_swap_b32 v{P+1}, v{P+3}
    buffer_store_dwordx4 v[{P}:{P+3}], v{vOA}, s[{sWS}:{sWS+3}], 0 offen sc1
    s_mov_b32 exec_hi, 0
    buffer_store_dwordx2 v[{P+4}:{P+5}], v{vOH}, s[{sWS}:{sWS+3}], 0 offen sc1
    """)
    stamp(8)
    k(f"""
    s_movk_i32 exec_lo, 0xff
    s_waitcnt vmcnt(0)
    buffer_atomic_add v28, v29, s[{sWS}:{sWS+3}], s{sFL} offen sc1
    """)
    stamp(9)
    k(f"""
    s_cmp_eq_u32 s{sROLE}, 1
    s_cbranch_scc1 L_fin
    s_mov_b32 exec_lo, 1
    ds_add_u32 v{vCN}, v28
    s_mov_b64 exec, -1
    v_mov_b32 v12, v{vCN}
    s_setprio 0
    """)

    NPRE = 7
    B3 = 16
    A3 = 96
    C3 = 236
    srd(sOUT, 10, 2621440)
    k(f"""
    v_lshrrev_b32 v2, 2, v0            ; 4g + r
    v_mul_u32_u24 v2, 160, v2
    v_and_b32 v3, 3, v0
    v_lshl_add_u32 v2, v3, 3, v2       ; steps 0..9
    v_add_u32 v3, {10*5120}, v2        ; steps 10..19
    v_lshrrev_b32 v4, 4, v0
    v_and_b32 v5, 15, v0
    v_lshlrev_b32 v6, 15, v4
    v_lshl_add_u32 v6, v5, 4, v6
    s_and_b32 s{sT1}, s{sJ}, 3
    s_lshr_b32 s{sT3}, s{sWAVE}, 1
    s_lshl_b32 s{sT2}, s{sT3}, 2
    s_add_u32 s{sT1}, s{sT1}, s{sT2}
    s_lshl_b32 s{sT0}, s{sXCD}, 3
    s_add_u32 s{sT0}, s{sT0}, s{sT1}     ; q tile
    s_lshl_b32 s{sT2}, s{sXCD}, 5
    s_add_u32 s{sT2}, s{sT2}, s{sJ}
    s_lshl_b32 s{sT2}, s{sT2}, 1
    s_add_u32 s{sT2}, s{sT2}, s{sT3}
    s_lshl_b32 s{sT2}, s{sT2}, 7
    s_add_u32 s{sT2}, s{sT2}, {CN2_OFF}
    v_mov_b32 v10, s{sT2}
    s_lshl_b32 s{sT0}, s{sT0}, 5
    s_and_b32 s{sT1}, s{sWAVE}, 1
    s_lshl_b32 s{sT1}, s{sT1}, 4
    s_add_u32 s{sT0}, s{sT0}, s{sT1}     ; row0
    s_lshl_b32 s{sT1}, s{sT0}, 4
    s_add_u32 s{sT1}, s{sT1}, {O_OFF}
    v_add_u32 v7, s{sT0}, v5
    v_mul_u32_u24 v7, 1280, v7
    s_mul_i32 s{sT2}, s{sRB}, 160
    v_add_u32 v7, s{sT2}, v7
    v_lshl_add_u32 v9, v4, 3, v7
    v_and_b32 v11, 1, v4
    v_lshl_add_u32 v7, v11, 5, v7
    v_lshrrev_b32 v11, 1, v4
    v_lshl_add_u32 v7, v11, 4, v7
    """)
    lwait("L_cwo", 11, 12, 0, 4)
    def LA(ks):
        base = A3 + (ks % NPRE) * 20
        va = 2 if ks < 10 else 3
        o = (ks % 10) * 5120
        for tl in range(5):
            for t in range(2):
                a = base + tl * 4 + 2 * t
                k(f"ds_read_b64_tr_b16 v[{a}:{a+1}], v{va} offset:{o + t*16*160 + tl*32}")
    for ks in range(NPRE):
        LA(ks)
        k("s_waitcnt lgkmcnt(5)")
    k("s_mov_b64 exec, 1")
    stamp(4)
    gpoll("L_poll2", 11, 10, 32)
    k("s_mov_b64 exec, -1")
    stamp(11)
    for ks in range(20):
        k(f"buffer_load_dwordx4 v[{B3+4*ks}:{B3+4*ks+3}], v6, s[{sWS}:{sWS+3}], s{sT1} offen sc1")
        if ks < 19: k(f"s_add_u32 s{sT1}, s{sT1}, {4*32768}")
    for ks in range(20):
        lg = 5 if (ks >= 1 and ks - 1 + NPRE < 20) else 0
        k(f"s_waitcnt vmcnt({19-ks}) lgkmcnt({lg})")
        base = A3 + (ks % NPRE) * 20
        for tl in range(5):
            a = base + tl * 4; c = C3 + tl * 4; b = B3 + 4 * ks
            cs = "0" if ks == 0 else f"v[{c}:{c+3}]"
            k(f"v_mfma_f32_16x16x32_bf16 v[{c}:{c+3}], v[{a}:{a+3}], v[{b}:{b+3}], {cs}")
        if ks + NPRE < 20: LA(ks + NPRE)
    stamp(12)
    k("s_nop 7")
    for tl in range(5):
        c = C3 + tl * 4
        q = 16 + (tl >> 1) * 4 + (tl & 1) * 2
        k(f"v_cvt_pk_bf16_f32 v{q}, v{c}, v{c+1}")
        k(f"v_cvt_pk_bf16_f32 v{q+1}, v{c+2}, v{c+3}")
    k(f"""
    v_permlane16_swap_b32 v16, v18
    v_permlane16_swap_b32 v17, v19
    v_permlane16_swap_b32 v20, v22
    v_permlane16_swap_b32 v21, v23
    buffer_store_dwordx4 v[16:19], v7, s[{sOUT}:{sOUT+3}], 0 offen
    buffer_store_dwordx4 v[20:23], v7, s[{sOUT}:{sOUT+3}], 0 offen offset:64
    buffer_store_dwordx2 v[24:25], v9, s[{sOUT}:{sOUT+3}], 0 offen offset:128
    """)
    k("L_fin:")
    if stamps:
        SW = opts.get("sw", 0)
        k(f"""
        s_mov_b64 exec, -1
        s_waitcnt vmcnt(0)
        s_mem{'' if opts.get('cyc') else 'real'}time s[{sST+26}:{sST+27}]
        s_and_b32 s{sT0}, s{sWAVE}, 3
        s_cmp_lg_u32 s{sT0}, {SW}
        s_cbranch_scc1 L_end
        s_waitcnt lgkmcnt(0)
        s_lshl_b32 s{sT0}, s2, 1
        s_lshr_b32 s{sT1}, s{sWAVE}, 2
        s_add_u32 s{sT0}, s{sT0}, s{sT1}
        s_lshl_b32 s{sT0}, s{sT0}, 6
        s_add_u32 s{sT0}, s{sT0}, {STAMP_OFF}
        v_mov_b32 v1, 0
        """)
        for i in range(16): k(f"v_mov_b32 v{4+i}, s{sST+2*i}")
        for i in range(4): k(f"buffer_store_dwordx4 v[{4+4*i}:{7+4*i}], v1, s[{sWS}:{sWS+3}], s{sT0} offen offset:{16*i}")
    k("L_end:")
    k("s_endpgm")

    k("L_nofar:")
    for i in range(16): k(f"v_mov_b32 v{S[1]+i}, {hex(NEG)}")
    k("s_branch L_far_done")
    for g in range(1, 5):
        k(f"L_worest{g}:")
        k(f"s_cmp_eq_u32 s{sROLE}, 1\ns_cbranch_scc1 L_p2_done")
        wo_group(g)
    k("s_branch L_p2_done")

    k("L_slow:")
    s = S[0]
    k(f"""
    v_cndmask_b32 v{vQ2}, v{vQ2}, 0, s[{sUP}:{sUP+1}]
    v_mov_b32 v25, 0xff800000
    v_mov_b32 v27, {hex(NEG)}
    s_mov_b32 s{sT2}, 0               ; pass
    s_add_u32 s{sT4}, s{sNT}, 1
    s_cmp_lg_u32 s{sRB}, 0
    s_cselect_b32 s{sT4}, 9, s{sT4}     ; tiles
    """)
    for i in range(16): k(f"v_mov_b32 v{OA+i}, 0")
    k(f"""
    L_slow_pass:
    s_mov_b32 s{sCNT}, 0
    L_slow_tile:
    s_sub_u32 s{sT3}, 8, s{sCNT}
    s_lshl_b32 s{sT3}, s{sT3}, 9
    v_add_u32 v10, s{sT3}, v{vKA1}
    v_add_u32 v11, s{sT3}, v{vKA2}
    v_add_u32 v12, s{sT3}, v{vVA0}
    v_add_u32 v13, s{sT3}, v{vVA1}
    ds_read_b128 v[{KF[0]}:{KF[0]+3}], v10
    ds_read_b64 v[{KF[0]+4}:{KF[0]+5}], v11
    ds_read_b64_tr_b16 v[{VF[0]}:{VF[0]+1}], v12
    ds_read_b64_tr_b16 v[{VF[0]+2}:{VF[0]+3}], v13
    ds_read_b64_tr_b16 v[{VF[0]+4}:{VF[0]+5}], v12 offset:256
    ds_read_b64_tr_b16 v[{VF[0]+6}:{VF[0]+7}], v13 offset:256
    s_waitcnt lgkmcnt(0)
    """)
    QK(0, 0)
    k(f"""
    s_nop 15
    s_cmp_lg_u32 s{sCNT}, 0
    s_cbranch_scc1 L_slow_nd
    """)
    for i in range(16): k(f"v_bfi_b32 v{s+i}, v{MK+i}, v{s+i}, v27")
    k(f"""
    L_slow_nd:
    s_cmp_lg_u32 s{sCNT}, 8
    s_cbranch_scc1 L_slow_nf
    """)
    for i in range(16): k(f"v_bfi_b32 v{s+i}, v{MK+i}, v27, v{s+i}")
    k(f"""
    L_slow_nf:
    s_cmp_lg_u32 s{sT2}, 0
    s_cbranch_scc1 L_slow_p2
    """)
    for i in range(16): k(f"v_max_f32 v25, v25, v{s+i}")
    k("s_branch L_slow_next")
    k("L_slow_p2:")
    for i in range(16): k(f"v_sub_f32 v{s+i}, v{s+i}, v25")
    EXP(0, 0, 16)
    k("s_nop 0")
    CVT(0, 0, 8)
    k("s_nop 1")
    PV(0, 0); PV(0, 1)
    k(f"""
    s_nop 15
    L_slow_next:
    s_add_u32 s{sCNT}, s{sCNT}, 1
    s_cmp_lt_u32 s{sCNT}, s{sT4}
    s_cbranch_scc1 L_slow_tile
    s_cmp_lg_u32 s{sT2}, 0
    s_cbranch_scc1 L_slow_done
    v_mov_b32 v26, v25
    s_nop 1
    v_permlane32_swap_b32 v25, v26
    v_max_f32 v25, v25, v26
    s_mov_b32 s{sT2}, 1
    s_branch L_slow_pass
    L_slow_done:
    v_mov_b32 v25, v{OA+8}
    v_mov_b32 v26, v{OA+8}
    s_nop 1
    v_permlane32_swap_b32 v25, v26
    s_branch L_p2_norm
    """)
    k("L_code_end:")
    return emit([k], single=True)

if __name__ == "__main__":
    out = sys.argv[1]
    opts = {}
    for a in sys.argv[2:]:
        kx, v = a.split("=")
        opts[kx] = [int(x) for x in v.split(',')] if kx == 'only' else int(v)
    open(out, "w").write(gen(opts))
```

```python
import sys, math, struct
from asmlib import *

def f2u(x): return struct.unpack("<I", struct.pack("<f", x))[0]

QKV_OFF = 0
O_OFF   = 8 << 20
CN1_OFF = 12 << 20
CN2_OFF = CN1_OFF + 768 * 128
STAMP_OFF = 13 << 20
WS_SIZE = 14 << 20
SLOT = 28672
NSLOT = 4
LDS_WO = 0
LDS_K = 102400
LDS_V = LDS_K + 24576
LDS_Q = LDS_V + 24576
LDS_TOTAL = 163840
QSCALE = (20 ** -0.5) * math.log2(math.e)
SPIN_MAX = 400000
NEG = 0xf149f2ca

def gen(opts):
    DEPTH = opts.get("depth", 3)
    NCH = 12
    CODEPF = ""
    if opts.get("codepf"):
        CODEPF = "s_getpc_b64 s[46:47]\nv_lshlrev_b32 v20, 6, v0\ns_lshl_b32 s48, s36, 12\nv_add_u32 v20, s48, v20\nglobal_load_dword v21, v20, s[46:47]\ns_waitcnt vmcnt(0)"
    stamps = opts.get("stamps", False)
    k = K("standalone__sliding_block__prompt_kernel", (256, 1, 1), (512, 1, 1), LDS_TOTAL, vgpr=256, sgpr=102)

    sX, sW, sWO, sOUT, sWS = 16, 20, 24, 28, 32
    sWAVE, sXCD, sJ, sR1, sCT = 36, 37, 38, 39, 40
    sH, sRB, sODD, sTAG = 41, 42, 43, 44
    sLW = 45
    sT0, sT1, sT2, sT3, sT4, sT5 = 46, 47, 48, 49, 50, 51
    sCNT, sFL = 52, 53
    sUP = 54
    sEX = 56
    sNT = 58
    sB0 = 59
    sSTO = 60
    sROLE = 61
    sSC = 62
    sST = 64
    sUM, sNX, sWB = 98, 99, 100
    def astamp(idx):
        if stamps and opts.get("attst"): k(f"s_mem{'' if opts.get('cyc') else 'real'}time s[{sST+2*idx}:{sST+2*idx+1}]")
    def stamp(idx):
        if opts.get("attst") and idx in (1, 2, 3, 14, 15, 5, 6): return
        if stamps and (idx in opts.get("only", range(16)) or idx == 0):
            k(f"s_mem{'' if opts.get('cyc') else 'real'}time s[{sST+2*idx}:{sST+2*idx+1}]")
    def srd(d, lo, size):
        k(f"s_mov_b32 s{d}, s{lo}\ns_mov_b32 s{d+1}, s{lo+1}\ns_mov_b32 s{d+2}, {size}\ns_mov_b32 s{d+3}, 0x20000")
    def readychk(lab, vreg, vz, issue_first):
        k(f"s_mov_b32 s{sCNT}, 0")
        if issue_first: k(f"global_load_dword v{vreg}, v{vz}, s[12:13] sc1")
        k(f"""
        {lab}:
        s_waitcnt vmcnt(0)
        v_readfirstlane_b32 s{sTAG}, v{vreg}
        s_add_u32 s{sCNT}, s{sCNT}, 1
        s_cmp_ge_u32 s{sCNT}, {SPIN_MAX}
        s_cbranch_scc1 {lab}_ok
        s_cmp_ge_u32 s{sTAG}, 64
        s_cbranch_scc1 {lab}_ok
        global_load_dword v{vreg}, v{vz}, s[12:13] sc1
        s_branch {lab}
        {lab}_ok:
        """)
    def gpoll(lab, vreg, vaddr, target):
        k(f"""
        s_mov_b32 s{sCNT}, 0
        {lab}:
        v_mov_b32 v{vreg}, 0
        buffer_atomic_add v{vreg}, v{vaddr}, s[{sWS}:{sWS+3}], 0 offen sc0 sc1
        s_add_u32 s{sCNT}, s{sCNT}, 1
        s_cmp_ge_u32 s{sCNT}, {SPIN_MAX}
        s_waitcnt vmcnt(0)
        s_cbranch_scc1 {lab}_out
        v_cmp_gt_u32 vcc, {target}, v{vreg}
        s_cbranch_vccnz {lab}
        {lab}_out:
        """)
    def lwait(lab, vreg, vaddr, off, target):
        k(f"""
        {lab}:
        ds_read_b32 v{vreg}, v{vaddr} offset:{off}
        s_waitcnt lgkmcnt(0)
        v_cmp_gt_u32 vcc, {target}, v{vreg}
        s_cbranch_vccnz {lab}
        """)

    if stamps:
        for i in range(16): k(f"s_mov_b64 s[{sST+2*i}:{sST+2*i+1}], 0")
    stamp(0)
    k(f"""
    s_cmp_ge_u32 s2, 256
    s_cbranch_scc1 L_end
    s_load_dwordx8 s[4:11], s[0:1], 0
    s_load_dwordx4 s[12:15], s[0:1], 32
    v_lshrrev_b32 v1, 6, v0
    v_and_b32 v0, 63, v0
    v_readfirstlane_b32 s{sWAVE}, v1
    s_and_b32 s{sXCD}, s2, 7
    s_lshr_b32 s{sJ}, s2, 3
    {"s_xor_b32 s%d, s%d, 4" % (sWAVE, sWAVE) if opts.get("swap") else ""}
    s_and_b32 s{sT0}, s{sXCD}, 3
    s_lshl_b32 s{sT0}, s{sT0}, 2
    s_and_b32 s{sT1}, s{sJ}, 3
    s_lshr_b32 s{sT2}, s{sXCD}, 2
    s_lshr_b32 s{sRB}, s{sJ}, 2
    s_lshl_b32 s{sT3}, s{sT2}, 3
    s_add_u32 s{sCT}, s{sT3}, s{sRB}
    s_lshl_b32 s{sT3}, s{sT2}, 1
    s_add_u32 s{sT3}, s{sT3}, s{sT1}
    s_cmp_ge_u32 s{sJ}, 28
    s_cselect_b32 s{sCT}, 7, s{sCT}
    s_cselect_b32 s{sT3}, s{sT3}, s{sT1}
    s_add_u32 s{sR1}, s{sT0}, s{sT3}
    s_cmp_ge_u32 s{sJ}, 30
    s_cselect_b32 s{sCT}, 15, s{sCT}
    s_lshl_b32 s{sH}, s{sXCD}, 2
    s_add_u32 s{sH}, s{sH}, s{sT1}
    s_and_b32 s{sODD}, s{sH}, 1
    s_mov_b32 s{sUP}, 0
    s_mov_b32 s{sUP+1}, -1
    """)
    if opts.get("codepf", 1):
        k(f"""
        s_cmp_lt_u32 s{sJ}, 30
        s_cbranch_scc1 L_nopf
        s_getpc_b64 s[{sT2}:{sT2+1}]
        s_lshl_b32 s{sT0}, s{sWAVE}, 12
        v_lshlrev_b32 v2, 6, v0
        v_add_u32 v2, s{sT0}, v2
        v_min_u32 v2, L_code_end - L_nopf, v2
        global_load_dword v255, v2, s[{sT2}:{sT2+1}]
        L_nopf:
        """)
    k(f"""
    s_cmp_lt_u32 s{sWAVE}, 4
    s_cbranch_scc1 L_compute
    """)
    vLX, vLW = 240, 241
    k(f"""
    s_mov_b32 s{sROLE}, 1
    s_sub_u32 s{sT0}, s{sWAVE}, 4
    v_lshrrev_b32 v2, 3, v0
    v_mul_u32_u24 v2, 1280, v2
    s_and_b32 s{sT1}, s{sT0}, 1
    s_lshl_b32 s{sT1}, s{sT1}, 2
    v_lshrrev_b32 v3, 4, v0
    v_add_u32 v4, s{sT1}, v3
    v_and_b32 v5, 7, v0
    v_xor_b32 v4, v4, v5
    v_lshl_add_u32 v2, v4, 4, v2
    s_mul_i32 s{sT2}, s{sR1}, {128*1280}
    s_mul_i32 s{sT3}, s{sT0}, {8*1280}
    s_add_u32 s{sT2}, s{sT2}, s{sT3}
    v_add_u32 v{vLX}, s{sT2}, v2
    v_mul_u32_u24 v4, 3840, v3
    v_lshlrev_b32 v5, 2, v3
    v_and_b32 v6, 15, v0
    v_xor_b32 v5, v5, v6
    v_lshl_add_u32 v3, v5, 4, v4
    s_lshl_b32 s{sT2}, s{sCT}, 8
    s_mul_i32 s{sT3}, s{sT0}, {4*3840}
    s_add_u32 s{sT2}, s{sT2}, s{sT3}
    v_add_u32 v{vLW}, s{sT2}, v3
    s_lshl_b32 s{sLW}, s{sT0}, 10
    s_and_b32 s{sT1}, s{sJ}, 3
    s_add_u32 s{sT1}, s{sT1}, s{sRB}
    s_and_b32 s{sT1}, s{sT1}, {1 if opts.get('rot') else 0}
    s_mul_i32 s96, s{sT1}, {5*64*3840}
    s_mul_i32 s97, s{sT1}, 640
    s_waitcnt lgkmcnt(0)
    """)
    stamp(1)
    srd(sX, 4, 2621440); srd(sW, 6, 2457600)
    k(f"""
    s_cmp_ge_u32 s{sCT}, 15
    s_cbranch_scc1 L_ld_idle
    """)
    cnt = []
    def issue(c):
        slot = ((c + 3) % NSLOT) * SLOT
        n = 0
        if c < 10:
            for t in range(4):
                k(f"s_add_u32 m0, s{sLW}, {slot + t*4096}")
                k(f"s_{'add' if c < 5 else 'sub'}_u32 s{sT5}, {c*64*3840 + t*16*3840}, s96")
                k(f"buffer_load_dwordx4 v{vLW}, s[{sW}:{sW+3}], s{sT5} offen lds"); n += 1
            for t in range(3):
                k(f"s_add_u32 m0, s{sLW}, {slot + 16384 + t*4096}")
                k(f"s_{'add' if c < 5 else 'sub'}_u32 s{sT5}, {c*128 + t*32*1280}, s97")
                k(f"buffer_load_dwordx4 v{vLX}, s[{sX}:{sX+3}], s{sT5} offen lds"); n += 1
        else:
            hf = c - 10
            for p in range(5):
                k(f"s_add_u32 m0, s{sLW}, {slot + p*4096}")
                k(f"s_{'add' if hf == 0 else 'sub'}_u32 s{sT5}, {3*32*1280 + (hf*5+p)*128}, s97")
                k(f"buffer_load_dwordx4 v{vLX}, s[{sX}:{sX+3}], s{sT5} offen lds"); n += 1
        cnt.append(n)
    for c in range(DEPTH):
        issue(c)
        if c == 0: stamp(2)
    stamp(3)
    srd(sWS, 14, WS_SIZE)
    k("s_branch L_prep")
    k("L_ld_idle:")
    srd(sWS, 14, WS_SIZE); srd(sWO, 8, 819200)
    TP = opts.get("tailpf", 0)
    XP = opts.get("xpf", 0)
    k(f"""
    v_lshlrev_b32 v2, 4, v0
    s_mov_b32 m0, s{sLW}
    s_and_b32 s{sT1}, s{sJ}, 1
    s_lshl_b32 s{sT2}, s{sT1}, 3
    s_add_u32 s{sT2}, s{sT2}, s{sXCD}
    """)
    def warm(lab, srd_, n):
        k(f"""
        s_mov_b32 s{sT3}, 0
        {lab}:
        buffer_load_dwordx4 v2, s[{srd_}:{srd_+3}], s{sT0} offen lds
        s_add_u32 s{sT0}, s{sT0}, 4096
        s_add_u32 s{sT3}, s{sT3}, 1
        {"s_cmp_ge_u32 s%d, 819200" % sT0 if srd_ == sWO else ""}
        {"s_cselect_b32 s%d, s%d, s%d" % (sT0, sLW, sT0) if srd_ == sWO else ""}
        s_waitcnt vmcnt(12)
        s_cmp_lt_u32 s{sT3}, {n}
        s_cbranch_scc1 {lab}
        """)
    if TP:
        k(f"s_mul_i32 s{sT0}, s{sT2}, {4*TP*3840}\ns_add_u32 s{sT0}, s{sT0}, {(640-64*TP)*3840}\ns_add_u32 s{sT0}, s{sT0}, s{sLW}")
        warm("L_tpw", sW, (15 * TP + 3) // 4)
    if XP:
        k(f"s_mul_i32 s{sT0}, s{sT2}, {128*1280}\ns_add_u32 s{sT0}, s{sT0}, {96*1280}\ns_add_u32 s{sT0}, s{sT0}, s{sLW}")
        warm("L_tpx", sX, 10)
    k(f"""
    s_mul_i32 s{sT0}, s{sT1}, 409600
    s_mul_i32 s{sT3}, s{sXCD}, {opts.get("wrot", 49152)}
    s_add_u32 s{sT0}, s{sT0}, s{sT3}
    s_add_u32 s{sT0}, s{sT0}, s{sLW}
    """)
    if opts.get("sparse"):
        k(f"""
        v_lshlrev_b32 v2, 7, v0
        s_mul_i32 s{sT0}, s{sT1}, 409600
        s_mul_i32 s{sT3}, s{sXCD}, 49152
        s_add_u32 s{sT0}, s{sT0}, s{sT3}
        s_lshl_b32 s{sT3}, s{sLW}, 3
        s_add_u32 s{sT0}, s{sT0}, s{sT3}
        s_mov_b32 s{sT4}, 0
        L_warm:
        buffer_load_dword v254, v2, s[{sWO}:{sWO+3}], s{sT0} offen {"nt" if opts.get("sparse") == 2 else ""}
        s_add_u32 s{sT0}, s{sT0}, 32768
        s_sub_u32 s{sT5}, s{sT0}, 819200
        s_cmp_ge_u32 s{sT0}, 819200
        s_cselect_b32 s{sT0}, s{sT5}, s{sT0}
        s_add_u32 s{sT4}, s{sT4}, 1
        s_cmp_lt_u32 s{sT4}, {opts.get("nwarm", 13)}
        s_cbranch_scc1 L_warm
        """)
    else:
        warm("L_warm", sWO, opts.get("nwarm", 50))
    k(f"""
    s_waitcnt vmcnt(0)
    s_branch L_prep
    """)

    AREG = 96
    ACCS = [16, 32, 48, 48]
    BR = 64
    PK = 80
    vXb = [[2, 3, 4, 5], [6, 7, 8, 9], [88, 89, 90, 91]]
    vWb = [10, 11, 92]
    vSA, vSB, vTG, vZ0, vFA = 12, 13, 14, 15, 1
    k("L_compute:")
    k(f"""
    s_mov_b32 s{sROLE}, 0
    {"s_setprio 1" if opts.get("swap") == 1 else ""}
    v_and_b32 v16, 31, v0
    v_lshrrev_b32 v17, 5, v0          ; h
    v_bfe_u32 v18, v0, 1, 3
    v_xor_b32 v18, v18, v17           ; y
    v_lshlrev_b32 v19, 7, v16         ; row*128
    """)
    for s in range(4):
        k(f"v_xor_b32 v20, {2*s}, v18\nv_lshl_add_u32 v{vXb[0][s]}, v20, 4, v19")
        k(f"v_add_u32 v{vXb[1][s]}, {2*SLOT}, v{vXb[0][s]}")
    k(f"""
    v_bfe_u32 v20, v0, 2, 2           ; r
    v_lshl_add_u32 v21, v17, 3, v20   ; 8h + r
    v_lshlrev_b32 v21, 8, v21         ; *256
    v_bfe_u32 v22, v0, 4, 1           ; g&1
    v_bfe_u32 v23, v0, 1, 1           ; c>>1
    v_lshl_add_u32 v22, v22, 1, v23
    v_and_b32 v23, 1, v0
    v_lshl_add_u32 v21, v23, 3, v21
    v_lshl_add_u32 v21, v22, 4, v21
    v_xor_b32 v22, s{sWAVE}, v20
    v_lshl_add_u32 v{vWb[0]}, v22, 6, v21
    v_add_u32 v{vWb[1]}, {2*SLOT}, v{vWb[0]}
    v_lshlrev_b32 v{vSA}, 4, v0               ; lane*16
    v_lshlrev_b32 v{vSB}, 4, v16
    v_lshl_add_u32 v{vSB}, v17, 15, v{vSB}    ; (l&31)*16 + h*32768
    v_mov_b32 v{vZ0}, 0
    s_lshl_b32 s{sT0}, s{sCT}, 2
    s_add_u32 s{sT0}, s{sT0}, s{sWAVE}
    s_lshl_b32 s{sSTO}, s{sT0}, 17
    s_lshl_b32 s{sT1}, s{sR1}, 11
    s_add_u32 s{sSTO}, s{sSTO}, s{sT1}
    ; consumers of this wave's 32 columns: ty = cg/20, c = cg%20 ; heads floor(8c/5) .. floor((8c+12)/5)-1 ; row blocks r>>1 (+1 for K,V)
    s_mul_i32 s{sT1}, s{sT0}, 205
    s_lshr_b32 s{sT1}, s{sT1}, 12             ; ty
    s_mul_i32 s{sT2}, s{sT1}, 20
    s_sub_u32 s{sT2}, s{sT0}, s{sT2}          ; c
    s_mul_i32 s{sT3}, s{sT2}, 1640
    s_lshr_b32 s{sT3}, s{sT3}, 10             ; floor(8c/5)
    s_lshl_b32 s{sT2}, s{sT2}, 3
    s_add_u32 s{sT2}, s{sT2}, 12
    s_mul_i32 s{sT2}, s{sT2}, 205
    s_lshr_b32 s{sT2}, s{sT2}, 10             ; floor((8c+12)/5)
    v_and_b32 v20, 3, v0
    v_add_u32 v20, s{sT3}, v20                ; head
    v_lshrrev_b32 v21, 2, v0                  ; Rsel
    s_lshr_b32 s{sT3}, s{sR1}, 1
    s_min_u32 s{sT1}, s{sT1}, 1
    s_add_u32 s{sT1}, s{sT1}, s{sT3}
    s_min_u32 s{sT1}, s{sT1}, 7
    v_add_u32 v21, s{sT3}, v21
    v_cmp_gt_u32 vcc, s{sT2}, v20
    v_cmp_ge_u32 s[{sT4}:{sT4+1}], s{sT1}, v21
    s_and_b64 s[{sEX}:{sEX+1}], vcc, s[{sT4}:{sT4+1}]
    v_lshl_add_u32 v20, v21, 5, v20
    v_mul_u32_u24 v{vFA}, 384, v20
    v_add_u32 v{vFA}, {CN1_OFF}, v{vFA}
    s_cmp_lt_u32 s{sCT}, 5
    s_cselect_b32 s{sSC}, {hex(f2u(QSCALE))}, 1.0
    s_waitcnt lgkmcnt(0)
    """)
    srd(sWS, 14, WS_SIZE)
    k(f"""
    s_cmp_lt_u32 s{sCT}, 15
    s_cbranch_scc1 L_p1_go
    s_and_b32 s{sT0}, s{sJ}, 1
    s_lshl_b32 s{sT0}, s{sT0}, 3
    s_add_u32 s{sT0}, s{sT0}, s{sXCD}
    s_lshl_b32 s{sT0}, s{sT0}, 2
    s_add_u32 s{sT0}, s{sT0}, s{sWAVE}
    s_mul_i32 s{sT0}, s{sT0}, {20*128}
    s_add_u32 s{sT0}, s{sT0}, {CN1_OFF}
    v_lshlrev_b32 v20, 7, v0
    v_mov_b32 v21, 1
    s_mov_b64 exec, 0xfffff
    buffer_store_dword v{vZ0}, v20, s[{sWS}:{sWS+3}], s{sT0} offen sc1
    s_mov_b64 exec, 1
    s_waitcnt vmcnt(0)
    global_atomic_add v{vZ0}, v21, s[12:13] sc1
    s_mov_b64 exec, -1
    s_branch L_prep
    L_p1_go:
    """)
    def rdA(c, s):
        sl = (c + 3) % NSLOT
        o = (sl & 1) * SLOT + s * 16 * 256
        va = vWb[sl >> 1]
        a = AREG + 4 * (4 * c + s)
        k(f"ds_read_b64_tr_b16 v[{a}:{a+1}], v{va} offset:{o}")
        k(f"ds_read_b64_tr_b16 v[{a+2}:{a+3}], v{va} offset:{o + 4*256}")
    def rdB(c, s, off, f):
        sl = (c + 3) % NSLOT
        b = BR + 4 * f
        k(f"ds_read_b128 v[{b}:{b+3}], v{vXb[sl >> 1][s]} offset:{(sl & 1) * SLOT + off}")
    def mf(acc, ks, f, first):
        a = AREG + 4 * ks; b = BR + 4 * f
        cs = "0" if first else f"v[{acc}:{acc+15}]"
        k(f"v_mfma_f32_32x32x16_bf16 v[{acc}:{acc+15}], v[{a}:{a+3}], v[{b}:{b+3}], {cs}")
    fr = lambda s, g: 3 * (s & 1) + g
    def rd(c, s):
        rdA(c, s)
        for g in range(3): rdB(c, s, 16384 + g * 4096, fr(s, g))
    def mf3(c, s):
        for g in range(3): mf(ACCS[g], 4*c+s, fr(s, g), c == 0 and s == 0)
    PIPE = opts.get("pipe", 1)
    if PIPE:
        k("s_barrier      ; B_0")
        stamp(1)
        rd(0, 0); rd(0, 1)
        for c in range(10):
            if c == 4: k(f"global_load_dword v{vTG}, v{vZ0}, s[12:13] sc1")
            if c == 8:
                readychk("L_rdy1", vTG, vZ0, False)
                k(f"v_mov_b32 v{vTG}, 1")
            for s in range(2):
                k("s_waitcnt lgkmcnt(5)")
                mf3(c, s); rd(c, s + 2)
            k("s_waitcnt lgkmcnt(5)")
            mf3(c, 2)
            k("s_waitcnt lgkmcnt(0)")
            k(f"s_barrier      ; B_{c+1}")
            if c < 9: rd(c + 1, 0)
            else:
                for i in range(3):
                    rdB(10, i, 0, i)
            mf3(c, 3)
            if c < 9: rd(c + 1, 1)
    else:
      for c in range(10):
        k(f"s_barrier      ; B_{c}")
        if c == 0: stamp(1)
        rd(c, 0); rd(c, 1)
        if c == 5: k(f"global_load_dword v{vTG}, v{vZ0}, s[12:13] sc1")
        if c == 9:
            readychk("L_rdy1", vTG, vZ0, False)
            k(f"v_mov_b32 v{vTG}, 1")
        for s in range(4):
            k(f"s_waitcnt lgkmcnt({5 if s < 3 else 0})")
            mf3(c, s)
            if s < 2: rd(c, s + 2)
    stamp(2)
    def ep_pair(c0, c1, q, vaddr, off_s):
        return [f"v_cvt_pk_bf16_f32 v{q}, v{c0}, v{c0+1}",
                f"v_cvt_pk_bf16_f32 v{q+1}, v{c0+2}, v{c0+3}",
                f"v_cvt_pk_bf16_f32 v{q+2}, v{c1}, v{c1+1}",
                f"v_cvt_pk_bf16_f32 v{q+3}, v{c1+2}, v{c1+3}",
                f"s_add_u32 s{sT5}, s{sSTO}, {off_s}",
                "s_nop 0",
                f"v_permlane32_swap_b32 v{q}, v{q+2}",
                f"v_permlane32_swap_b32 v{q+1}, v{q+3}",
                f"buffer_store_dwordx4 v[{q}:{q+3}], v{vaddr}, s[{sWS}:{sWS+3}], s{sT5} offen sc1"]
    def mulq(c):
        return [f"v_mul_f32 v{c+i}, s{sSC}, v{c+i}" for i in range(4)]
    def ep_part0():
        o = []
        for b in range(4):
            o += mulq(ACCS[0] + 4*b) + mulq(ACCS[1] + 4*b)
            o += ep_pair(ACCS[0] + 4*b, ACCS[1] + 4*b, PK + 4*(b & 1), vSA, b * 32768)
        return o
    def ep_part(g):
        acc = ACCS[g]
        o = []
        for b in (0, 2):
            o += mulq(acc + 4*b) + mulq(acc + 4*b + 4)
            o += ep_pair(acc + 4*b, acc + 4*b + 4, PK + 2*b, vSB, b * 32768 + g * 512)
        return o
    def flag(st, vm):
        return [f"s_mov_b64 exec, s[{sEX}:{sEX+1}]", f"s_waitcnt vmcnt({vm})",
                f"buffer_atomic_add v{vTG}, v{vFA}, s[{sWS}:{sWS+3}], 0 offen offset:{st*128} sc1", "s_mov_b64 exec, -1"]
    steps = []
    for c in range(10, 12):
        hf = c - 10
        for p in range(5):
            for s in range(4):
                steps.append((c, hf * 20 + p * 4 + s, s, p * 4096))
    LOOK = 3
    PER = opts.get("per", 3)
    fill = {}
    def spread(instrs, start, per):
        i = start
        while instrs:
            fill.setdefault(i, []).extend(instrs[:per]); instrs = instrs[per:]; i += 1
        return i
    G2T = 88 if NSLOT == 4 else None
    def g2_conv():
        o = []
        for b in range(4):
            c = ACCS[2] + 4 * b
            o += mulq(c) + [f"v_cvt_pk_bf16_f32 v{G2T+2*b}, v{c}, v{c+1}", f"v_cvt_pk_bf16_f32 v{G2T+2*b+1}, v{c+2}, v{c+3}"]
        return o
    def g2_store():
        o = []
        for b in (0, 2):
            q = G2T + 2 * b
            o += [f"s_add_u32 s{sT5}, s{sSTO}, {b*32768 + 2*512}", f"v_permlane32_swap_b32 v{q}, v{q+2}", f"v_permlane32_swap_b32 v{q+1}, v{q+3}",
                  f"buffer_store_dwordx4 v[{q}:{q+3}], v{vSB}, s[{sWS}:{sWS+3}], s{sT5} offen sc1"]
        return o
    e0 = spread(g2_store() + ep_part0(), 0, PER)
    FAT = opts.get("fat", 38)
    assert e0 <= FAT
    fill.setdefault(FAT, []).extend(flag(0, 4))
    if not PIPE:
        k("s_barrier      ; B_10")
        for i in range(LOOK):
            c, ks, s, off = steps[i]
            rdB(c, s, off, i % 4)
    k("s_nop 8" if not PIPE else "s_nop 11")
    for ins in g2_conv(): k(ins)
    for i, (c, ks, s, off) in enumerate(steps):
        n = i + LOOK
        if n < 40:
            cn, ksn, sn, offn = steps[n]
            if cn != steps[n - 1][0]: k(f"s_barrier      ; B_{cn}")
            rdB(cn, sn, offn, n % 4)
        k(f"s_waitcnt lgkmcnt({min(LOOK, 39 - i)})")
        mf(ACCS[3], ks, i % 4, ks == 0)
        for ins in fill.get(i, []): k(ins)
        if i == FAT: stamp(6)
    stamp(14)
    k("s_nop 11")
    for ins in ep_part(3): k(ins)
    for ins in flag(1, 3): k(ins)
    stamp(5)

    vKA1, vKA2, vVA0, vVA1 = 2, 3, 4, 5
    vOA, vOH = 6, 7
    vCW, vCN = 8, 9
    vQA1, vQA2 = 10, 11
    vQ1, vQ2 = 16, 20
    MK, MP, PD = 32, 48, 56
    S = [64, 80]
    P = 96
    KF = [104, 112]
    VF = [120, 128]
    OA = 136
    k("L_prep:")
    k(f"""
    v_and_b32 v25, 31, v0              ; q
    v_lshrrev_b32 v26, 5, v0           ; h
    v_lshlrev_b32 v27, 2, v26
    v_sub_u32 v27, v27, v25            ; 4h - q
    """)
    for i in range(16):
        key = 8 * (i >> 2) + (i & 3)
        k(f"v_add_u32 v{MK+i}, {key-1}, v27")
        k(f"v_ashrrev_i32 v{MK+i}, 31, v{MK+i}")
    k(f"s_mov_b32 s{sT1}, 0xffff")
    for j in range(8):
        k(f"v_bfi_b32 v{MP+j}, s{sT1}, v{MK+2*j}, v{MK+2*j+1}")
    k(f"""
    s_cmp_eq_u32 s{sROLE}, 1
    s_cbranch_scc1 L_nof
    s_cmp_ge_u32 s{sCT}, 15
    s_cbranch_scc1 L_nof
    """)
    for ins in flag(2, 1): k(ins)
    stamp(3)
    k(f"""
    L_nof:
    s_lshl_b32 s{sT0}, s{sWAVE}, 9        ; w*512
    v_lshlrev_b32 v27, 4, v25
    v_add_u32 v27, s{sT0}, v27            ; (32w+q)*16
    v_lshl_add_u32 v{vKA1}, v26, 13, v27
    v_add_u32 v{vKA1}, {LDS_K}, v{vKA1}
    s_lshl_b32 s{sT1}, s{sODD}, 3
    s_add_u32 s{sT2}, s{sT1}, {LDS_K+16384}
    v_add_u32 v{vKA2}, s{sT2}, v27
    s_sub_u32 s{sT2}, {LDS_K+16384+12*16+8}, s{sT1}
    v_mov_b32 v31, s{sT2}
    v_cndmask_b32 v{vKA2}, v{vKA2}, v31, s[{sUP}:{sUP+1}]
    v_lshl_add_u32 v{vCW}, v25, 8, v31
    v_lshl_add_u32 v{vCW}, v26, 4, v{vCW}
    s_sub_u32 s{sT2}, {LDS_V+16384+511*16+8}, s{sT1}
    v_mov_b32 v{vCN}, s{sT2}
    v_lshl_add_u32 v{vQA1}, v26, 12, v27
    v_add_u32 v{vQA1}, {LDS_Q}, v{vQA1}
    s_add_u32 s{sT2}, s{sT1}, {LDS_Q+8192}
    v_add_u32 v{vQA2}, s{sT2}, v27
    s_lshr_b32 s{sT1}, s{sH}, 1
    s_mul_i32 s{sB0}, s{sT1}, 5            ; 5m
    s_mul_i32 s{sT2}, s{sODD}, 3
    s_add_u32 s{sT2}, s{sT2}, s{sB0}       ; blockA
    s_lshl_b32 s{sT3}, s{sRB}, 12          ; 256*RB*16
    s_lshl_b32 s{sT4}, s{sT2}, 15
    s_add_u32 s{sT4}, s{sT4}, s{sT3}
    s_add_u32 s{sT4}, s{sT4}, {O_OFF}
    v_lshl_add_u32 v{vOA}, v26, 15, v27
    v_add_u32 v{vOA}, s{sT4}, v{vOA}
    s_add_u32 s{sT4}, s{sB0}, 2
    s_lshl_b32 s{sT4}, s{sT4}, 15
    s_add_u32 s{sT4}, s{sT4}, s{sT3}
    s_lshl_b32 s{sT5}, s{sODD}, 3
    s_add_u32 s{sT4}, s{sT4}, s{sT5}
    s_add_u32 s{sT4}, s{sT4}, {O_OFF}
    v_add_u32 v{vOH}, s{sT4}, v27
    v_bfe_u32 v30, v0, 4, 1              ; g1
    v_bfe_u32 v29, v0, 1, 1              ; c>>1
    v_cmp_eq_u32 vcc, 1, v30
    v_mov_b32 v28, 2
    v_and_b32 v25, 1, v0                 ; c&1
    v_cndmask_b32 v29, v29, v28, vcc     ; p
    v_and_b32 v30, v25, v30
    v_mov_b32 v28, s{sODD}
    v_cndmask_b32 v25, v25, v28, vcc
    v_bfe_u32 v28, v0, 2, 2              ; r
    v_lshl_add_u32 v28, v26, 2, v28      ; 4h + r
    v_lshlrev_b32 v26, 2, v29            ; p<<2
    v_lshlrev_b32 v27, 13, v29           ; p*8192
    v_lshl_add_u32 v27, v25, 3, v27
    v_add_u32 v27, s{sT0}, v27
    v_add_u32 v27, {LDS_V}, v27
    v_xor_b32 v25, v28, v26
    v_lshl_add_u32 v{vVA0}, v25, 4, v27
    v_or_b32 v28, 8, v28
    v_xor_b32 v25, v28, v26
    v_lshl_add_u32 v{vVA1}, v25, 4, v27
    v_cmp_eq_u32 vcc, 1, v30
    s_cmp_eq_u32 s{sRB}, 0
    s_cselect_b32 s{sNT}, s{sWAVE}, 7
    v_cndmask_b32 v{vVA0}, v{vVA0}, v31, vcc
    v_cndmask_b32 v{vVA1}, v{vVA1}, v31, vcc
    """)
    if opts.get("zrow", 1):
        k(f"""
        v_and_b32 v25, 18, v0
        v_cmp_eq_u32 vcc, 18, v25            ; g1 && c>=2
        v_add_u32 v31, 16, v31
        s_nop 0
        v_cndmask_b32 v{vVA0}, v{vVA0}, v31, vcc
        v_cndmask_b32 v{vVA1}, v{vVA1}, v31, vcc
        """)
    k(f"""
    v_mov_b32 v22, 0x3f80
    v_mov_b32 v23, 0
    v_cndmask_b32 v22, v22, v23, s[{sUP}:{sUP+1}]
    s_cmp_eq_u32 s{sROLE}, 1
    s_cbranch_scc1 L_role_ld
    """)
    vWOA = 200
    k(f"s_lshl_b32 s{sLW}, s{sWAVE}, 10\ns_lshl_b32 s{sT0}, s{sWAVE}, 6\nv_add_u32 v26, s{sT0}, v0\ns_mul_i32 s{sWB}, s{sRB}, 160")
    for i in range(5):
        if i: k(f"v_add_u32 v26, 256, v26")
        k(f"""
        v_mul_u32_u24 v27, 6554, v26
        v_lshrrev_b32 v27, 16, v27        ; rho
        v_mul_u32_u24 v28, 10, v27
        v_sub_u32 v28, v26, v28           ; piece
        v_and_b32 v29, 0x63, v27
        v_bfe_u32 v30, v27, 2, 2          ; g
        v_lshl_add_u32 v29, v30, 3, v29
        v_bfe_u32 v30, v27, 4, 1          ; t
        v_lshl_add_u32 v29, v30, 2, v29   ; k
        v_mul_u32_u24 v29, 1280, v29
        v_lshl_add_u32 v{vWOA+i}, v28, 4, v29
        """)
    srd(sWO, 8, 819200)
    k(f"""
    s_cmp_lt_u32 s{sCT}, 15
    s_cbranch_scc1 L_BD
    """)
    readychk("L_rdy2", vTG, vZ0, True)
    k("s_branch L_BD")

    vP, vZ, vF = 220, 221, 222
    vU = 224
    TY = 80 * 32768
    k(f"""
    L_role_ld:
    v_mov_b32 v{vZ}, 0
    s_lshl_b32 s{sT1}, s{sODD}, 1
    s_add_u32 s{sT1}, s{sT1}, s{sB0}
    s_add_u32 s{sT2}, s{sT1}, 2
    s_lshr_b32 s{sT1}, s{sT1}, 2
    s_lshr_b32 s{sT2}, s{sT2}, 2
    s_sub_u32 s{sT2}, s{sT2}, s{sT1}          ; 0 or 1
    s_cmp_eq_u32 s{sRB}, 0
    s_cselect_b32 s{sNX}, 6, 10
    s_movk_i32 s{sUM}, 0x3ff
    s_cselect_b32 s{sUM}, 0x333, s{sUM}
    s_lshl_b32 s{sNX}, s{sNX}, s{sT2}
    s_and_b32 s{sT0}, s{sWAVE}, 1
    s_lshl_b32 s{sT1}, 0x155, s{sT0}
    s_and_b32 s101, s{sUM}, s{sT1}
    s_cmp_lt_u32 s{sWAVE}, 6
    s_cselect_b32 s{sUM}, s{sUM}, s101
    s_sub_u32 s{sFL}, s{sWAVE}, 4
    s_min_u32 s{sFL}, s{sFL}, 2
    s_lshl_b32 s{sT0}, s{sRB}, 5
    s_add_u32 s{sT0}, s{sT0}, s{sH}
    s_mul_i32 s{sT0}, s{sT0}, 3
    s_add_u32 s{sT0}, s{sT0}, s{sFL}
    s_lshl_b32 s{sT0}, s{sT0}, 7
    s_add_u32 s{sT0}, s{sT0}, {CN1_OFF}
    v_mov_b32 v{vF}, s{sT0}
    s_mul_i32 s{sT0}, s{sODD}, 3
    s_add_u32 s{sT0}, s{sT0}, s{sB0}
    s_lshl_b32 s{sT0}, s{sT0}, 15
    s_add_u32 s{sT1}, s{sB0}, 2
    s_lshl_b32 s{sT1}, s{sT1}, 15
    s_lshl_b32 s{sT2}, s{sRB}, 12
    s_add_u32 s{sT0}, s{sT0}, s{sT2}
    s_add_u32 s{sT1}, s{sT1}, s{sT2}
    v_lshlrev_b32 v219, 4, v0
    v_add_u32 v{vU}, s{sT0}, v219
    v_add_u32 v{vU+1}, 32768, v{vU}
    v_add_u32 v{vU+2}, s{sT1}, v219
    v_xor_b32 v{vU+3}, 64, v{vU+1}
    v_xor_b32 v{vU+4}, 128, v{vU+2}
    s_cmp_ge_u32 s{sCT}, 15
    s_cbranch_scc1 L_ld_idle2
    """)
    srd(sX, 4, 2621440); srd(sW, 6, 2457600)
    for c in range(NCH):
        k(f"s_waitcnt vmcnt({sum(cnt[c+1:])})")
        if c == 9: stamp(15)
        if c == NCH - 1: stamp(14)
        k(f"s_barrier      ; B_{c}")
        if c == 7: k(f"global_load_dword v{vP}, v{vZ}, s[12:13] sc1")
        if len(cnt) < NCH: issue(len(cnt))
    k(f"""
    s_branch L_ld_go
    L_ld_idle2:
    global_load_dword v{vP}, v{vZ}, s[12:13] sc1
    L_ld_go:
    """)
    readychk("L_rdy3", vP, vZ, False)
    k(f"""
    L_fetch:
    s_lshl_b32 s{sSTO}, s{sFL}, 8
    s_add_u32 s{sSTO}, s{sSTO}, 1024
    s_cmp_eq_u32 s{sFL}, 1
    s_cselect_b32 s{sSTO}, 0, s{sSTO}
    s_cselect_b32 s{sT4}, -1, 0
    s_mov_b64 exec, 1
    """)
    gpoll("L_poll1", vP, vF, f"s{sNX}")
    stamp(4)
    k(f"""
    s_mov_b32 exec_lo, -1
    s_mov_b32 exec_hi, s{sT4}
    """)
    for u in (0, 1, 4, 5, 8, 9, 2, 3, 6, 7):
        ty = (u + 2) >> 2; t1 = (u + 2) & 3
        k(f"s_bitcmp1_b32 s{sUM}, {u}\ns_cbranch_scc0 L_skipu{u}")
        for p in range(3):
            ldsb = [LDS_Q + (t1 - 2) * 2048 + p * 4096, LDS_K + t1 * 2048 + p * 8192, LDS_V + t1 * 2048 + p * 8192][ty]
            vr = vU + p if (ty < 2 or p == 0) else vU + 2 + p
            k(f"s_add_u32 m0, s{sSTO}, {ldsb}")
            if p == 0: k(f"s_add_u32 s{sT5}, s{sSTO}, {ty * TY + (t1 - 2) * 2048}")
            else: k("s_nop 0")
            k(f"buffer_load_dwordx4 v{vr}, s[{sWS}:{sWS+3}], s{sT5} offen sc1 lds")
        k(f"L_skipu{u}:")
    stamp(5)
    k(f"""
    s_mov_b64 exec, -1
    s_waitcnt vmcnt(0)
    """)
    stamp(6)
    k(f"""
    s_cmp_lg_u32 s{sWAVE}, 7
    s_cbranch_scc1 L_BD
    ds_write_b32 v{vCN}, v{vZ}
    s_waitcnt lgkmcnt(0)
    L_BD:
    s_barrier
    """)
    stamp(7)

    def LK(kk, buf):
        off = (8 - kk) * 512
        f = KF[buf]
        k(f"ds_read_b128 v[{f}:{f+3}], v{vKA1} offset:{off}")
        k(f"ds_read_b64 v[{f+4}:{f+5}], v{vKA2} offset:{off}")
    def LV(kk, buf):
        off = (8 - kk) * 512
        f = VF[buf]
        for u in range(2):
            for t in range(2):
                k(f"ds_read_b64_tr_b16 v[{f+4*u+2*t}:{f+4*u+2*t+1}], v{[vVA0, vVA1][t]} offset:{off + u*256}")
    def QK(buf, sbuf):
        f = KF[buf]; s = S[sbuf]
        k(f"v_mfma_f32_32x32x16_bf16 v[{s}:{s+15}], v[{f}:{f+3}], v[{vQ1}:{vQ1+3}], 0")
        k(f"v_mfma_f32_32x32x8_bf16 v[{s}:{s+15}], v[{f+4}:{f+5}], v[{vQ2}:{vQ2+1}], v[{s}:{s+15}]")
    def EXP(sbuf, lo, hi):
        s = S[sbuf]
        for i in range(lo, hi): k(f"v_exp_f32 v{s+i}, v{s+i}")
    def CVT(sbuf, lo, hi):
        s = S[sbuf]
        for i in range(lo, hi): k(f"v_cvt_pk_bf16_f32 v{P+i}, v{s+2*i}, v{s+2*i+1}")
    def PV(buf, u, p=P, first=False):
        f = VF[buf] + 4 * u
        cs = "0" if first else f"v[{OA}:{OA+15}]"
        k(f"v_mfma_f32_32x32x16_bf16 v[{OA}:{OA+15}], v[{f}:{f+3}], v[{p+4*u}:{p+4*u+3}], {cs}")
    def wo_group(gi):
        for i in range(5):
            k(f"s_add_u32 m0, s{sLW}, {LDS_WO + (gi*5+i)*4096}")
            if i == 0: k(f"s_add_u32 s{sT5}, s{sWB}, {gi*4*40960}")
            else: k("s_nop 0")
            k(f"buffer_load_dwordx4 v{vWOA+i}, s[{sWO}:{sWO+3}], s{sT5} offen lds")
    def wo_opt(gi):
        if opts.get("nowo"): return
        k(f"s_cmp_eq_u32 s{sROLE}, 1\ns_cbranch_scc1 L_nowo{gi}")
        wo_group(gi)
        k(f"L_nowo{gi}:")

    PR = opts.get("pr", 0)
    PRS = {0: None, 1: [3, 3, 2, 2, 1, 1, 0, 0], 2: [3, 2, 2, 1, 1, 0, 0, 0], 3: [3, 3, 3, 2, 2, 1, 1, 0], 4: [1, 1, 1, 1, 0, 0, 0, 0], 5: [3, 2, 1, 0, 3, 2, 1, 0]}[PR]
    def setpr(st):
        if PRS and (st == 0 or PRS[st] != PRS[st - 1]): k(f"s_setprio {PRS[st]}")
    setpr(0)
    k(f"""
    s_mov_b32 exec_lo, 0x3ffff
    s_mov_b32 exec_hi, 0x3ffff
    ds_write_b64 v{vCW}, v[22:23]
    s_mov_b64 exec, -1
    ds_read_b128 v[{vQ1}:{vQ1+3}], v{vQA1}
    ds_read_b64 v[{vQ2}:{vQ2+1}], v{vQA2}
    """)
    LK(0, 0); LK(8, 1); LV(0, 0); LV(8, 1)
    k(f"""
    s_waitcnt lgkmcnt(12)
    v_cndmask_b32 v{vQ2}, v{vQ2}, 0, s[{sUP}:{sUP+1}]
    v_cndmask_b32 v{vQ2+1}, v{vQ2+1}, 0, s[{sUP}:{sUP+1}]
    s_waitcnt lgkmcnt(10)
    s_cmp_eq_u32 s{sRB}, 0
    """)
    QK(0, 0)
    k("s_cbranch_scc1 L_nofar")
    k("s_waitcnt lgkmcnt(8)")
    QK(1, 1)
    k("L_far_done:")
    LK(1, 0)
    wo_opt(0)
    k("s_nop 7")
    s = S[0]
    for i in range(16): k(f"v_bfi_b32 v{s+i}, v{MK+i}, v{s+i}, v{S[1]+i}")
    k(f"v_max3_f32 v25, v{s}, v{s+1}, v{s+2}")
    k(f"v_max3_f32 v26, v{s+3}, v{s+4}, v{s+5}")
    k(f"v_max3_f32 v25, v25, v{s+6}, v{s+7}")
    k(f"v_max3_f32 v26, v26, v{s+8}, v{s+9}")
    k(f"v_max3_f32 v25, v25, v{s+10}, v{s+11}")
    k(f"v_max3_f32 v26, v26, v{s+12}, v{s+13}")
    k(f"v_max3_f32 v25, v25, v{s+14}, v{s+15}")
    k(f"""
    v_max_f32 v25, v25, v26
    v_mov_b32 v26, v25
    s_nop 1
    v_permlane32_swap_b32 v25, v26
    v_max_f32 v25, v25, v26
    v_and_b32 v25, 0xffff0000, v25
    v_lshrrev_b32 v26, 16, v25
    v_xor_b32 v26, 0x8000, v26
    v_cndmask_b32 v{vQ2}, v{vQ2}, v26, s[{sUP}:{sUP+1}]
    """)
    astamp(5)
    for i in range(4): k(f"v_sub_f32 v{s+i}, v{s+i}, v25")
    k("s_waitcnt lgkmcnt(0)")
    QK(0, 1)
    LK(2, 1)
    for i in range(4, 16): k(f"v_sub_f32 v{s+i}, v{s+i}, v25")
    EXP(0, 0, 8)
    CVT(0, 0, 4)
    for j in range(4): k(f"v_and_b32 v{PD+j}, v{MP+j}, v{P+j}")
    for j in range(4): k(f"v_xor_b32 v{P+j}, v{PD+j}, v{P+j}")
    EXP(0, 8, 10)
    PV(0, 0, PD, first=True)
    EXP(0, 10, 13)
    k(f"s_cmp_eq_u32 s{sRB}, 0\ns_cbranch_scc1 L_nofar1")
    PV(1, 0)
    k("L_nofar1:")
    EXP(0, 13, 16)
    k("s_nop 0")
    CVT(0, 4, 8)
    for j in range(4, 8): k(f"v_and_b32 v{PD+j}, v{MP+j}, v{P+j}")
    for j in range(4, 8): k(f"v_xor_b32 v{P+j}, v{PD+j}, v{P+j}")
    PV(0, 1, PD)
    k(f"s_cbranch_scc1 L_nofar2")
    PV(1, 1)
    k("L_nofar2:")
    LV(1, 0)
    k(f"s_cmp_eq_u32 s{sNT}, 0\ns_cbranch_scc1 L_worest1")
    astamp(1)
    for i in range(7):
        if i == 2: astamp(2)
        if i == 4: astamp(3)
        if i == 6: astamp(14)
        cur = (i + 1) & 1; nxt = i & 1
        setpr(i + 1)
        if i < 6:
            k("s_waitcnt lgkmcnt(4)")
            QK((i + 1) & 1, nxt)
        if i < 5: LK(i + 3, i & 1)
        if i < 4: wo_opt(i + 1)
        EXP(cur, 0, 8)
        CVT(cur, 0, 4)
        EXP(cur, 8, 10)
        k(f"s_waitcnt lgkmcnt({2 if i < 5 else 0})")
        PV(i & 1, 0)
        EXP(cur, 10, 16)
        k("s_nop 0")
        CVT(cur, 4, 8)
        if i < 6: LV(i + 2, (i + 1) & 1)
        else: k("s_nop 1")
        PV(i & 1, 1)
        if i < 6:
            k(f"s_cmp_eq_u32 s{sNT}, {i+1}")
            k(f"s_cbranch_scc1 {'L_worest%d' % (i+2) if i < 3 else 'L_p2_done'}")
    k("L_p2_done:")
    if PRS: k("s_setprio 0" if not opts.get("prend") else f"s_setprio {opts['prend']}")
    astamp(15)
    k(f"""
    s_lshl_b32 s{sT2}, s{sRB}, 5
    s_and_b32 s{sT3}, s{sWAVE}, 3
    s_add_u32 s{sT2}, s{sT2}, s{sT3}
    s_lshl_b32 s{sT2}, s{sT2}, 1
    s_add_u32 s{sT2}, s{sT2}, s{sROLE}
    s_lshl_b32 s{sT2}, s{sT2}, 7
    s_add_u32 s{sFL}, s{sT2}, {CN2_OFF}
    v_mov_b32 v27, {hex(f2u(2.0**60))}
    v_mov_b32 v30, {hex(f2u(2.0**-60))}
    v_mov_b32 v28, 1
    v_lshlrev_b32 v29, 10, v0
    s_nop 0
    v_mov_b32 v25, v{OA+8}
    v_mov_b32 v26, v{OA+8}
    s_nop 1
    v_permlane32_swap_b32 v25, v26
    v_cmp_nlt_f32 vcc, v26, v27
    v_cmp_ngt_f32 s[{sT0}:{sT0+1}], v26, v30
    s_or_b64 vcc, vcc, s[{sT0}:{sT0+1}]
    s_cbranch_vccnz L_slow
    L_p2_norm:
    v_rcp_f32 v26, v26
    s_nop 0
    """)
    for i in range(12): k(f"v_mul_f32 v{OA+i}, v{OA+i}, v26")
    k(f"""
    v_cvt_pk_bf16_f32 v{P}, v{OA}, v{OA+1}
    v_cvt_pk_bf16_f32 v{P+1}, v{OA+2}, v{OA+3}
    v_cvt_pk_bf16_f32 v{P+2}, v{OA+4}, v{OA+5}
    v_cvt_pk_bf16_f32 v{P+3}, v{OA+6}, v{OA+7}
    v_cvt_pk_bf16_f32 v{P+4}, v{OA+8}, v{OA+9}
    v_cvt_pk_bf16_f32 v{P+5}, v{OA+10}, v{OA+11}
    v_permlane32_swap_b32 v{P}, v{P+2}
    v_permlane32_swap_b32 v{P+1}, v{P+3}
    buffer_store_dwordx4 v[{P}:{P+3}], v{vOA}, s[{sWS}:{sWS+3}], 0 offen sc1
    s_mov_b32 exec_hi, 0
    buffer_store_dwordx2 v[{P+4}:{P+5}], v{vOH}, s[{sWS}:{sWS+3}], 0 offen sc1
    """)
    stamp(8)
    k(f"""
    s_movk_i32 exec_lo, 0xff
    s_waitcnt vmcnt(0)
    buffer_atomic_add v28, v29, s[{sWS}:{sWS+3}], s{sFL} offen sc1
    """)
    stamp(9)
    k(f"""
    s_cmp_eq_u32 s{sROLE}, 1
    s_cbranch_scc1 L_fin
    s_mov_b32 exec_lo, 1
    ds_add_u32 v{vCN}, v28
    s_mov_b64 exec, -1
    v_mov_b32 v12, v{vCN}
    s_setprio 0
    """)

    NPRE = 7
    B3 = 16
    A3 = 96
    C3 = 236
    srd(sOUT, 10, 2621440)
    k(f"""
    v_lshrrev_b32 v2, 2, v0            ; 4g + r
    v_mul_u32_u24 v2, 160, v2
    v_and_b32 v3, 3, v0
    v_lshl_add_u32 v2, v3, 3, v2       ; steps 0..9
    v_add_u32 v3, {10*5120}, v2        ; steps 10..19
    v_lshrrev_b32 v4, 4, v0
    v_and_b32 v5, 15, v0
    v_lshlrev_b32 v6, 15, v4
    v_lshl_add_u32 v6, v5, 4, v6
    s_and_b32 s{sT1}, s{sJ}, 3
    s_lshr_b32 s{sT3}, s{sWAVE}, 1
    s_lshl_b32 s{sT2}, s{sT3}, 2
    s_add_u32 s{sT1}, s{sT1}, s{sT2}
    s_lshl_b32 s{sT0}, s{sXCD}, 3
    s_add_u32 s{sT0}, s{sT0}, s{sT1}     ; q tile
    s_lshl_b32 s{sT2}, s{sXCD}, 5
    s_add_u32 s{sT2}, s{sT2}, s{sJ}
    s_lshl_b32 s{sT2}, s{sT2}, 1
    s_add_u32 s{sT2}, s{sT2}, s{sT3}
    s_lshl_b32 s{sT2}, s{sT2}, 7
    s_add_u32 s{sT2}, s{sT2}, {CN2_OFF}
    v_mov_b32 v10, s{sT2}
    s_lshl_b32 s{sT0}, s{sT0}, 5
    s_and_b32 s{sT1}, s{sWAVE}, 1
    s_lshl_b32 s{sT1}, s{sT1}, 4
    s_add_u32 s{sT0}, s{sT0}, s{sT1}     ; row0
    s_lshl_b32 s{sT1}, s{sT0}, 4
    s_add_u32 s{sT1}, s{sT1}, {O_OFF}
    v_add_u32 v7, s{sT0}, v5
    v_mul_u32_u24 v7, 1280, v7
    s_mul_i32 s{sT2}, s{sRB}, 160
    v_add_u32 v7, s{sT2}, v7
    v_lshl_add_u32 v9, v4, 3, v7
    v_and_b32 v11, 1, v4
    v_lshl_add_u32 v7, v11, 5, v7
    v_lshrrev_b32 v11, 1, v4
    v_lshl_add_u32 v7, v11, 4, v7
    """)
    lwait("L_cwo", 11, 12, 0, 4)
    def LA(ks):
        base = A3 + (ks % NPRE) * 20
        va = 2 if ks < 10 else 3
        o = (ks % 10) * 5120
        for tl in range(5):
            for t in range(2):
                a = base + tl * 4 + 2 * t
                k(f"ds_read_b64_tr_b16 v[{a}:{a+1}], v{va} offset:{o + t*16*160 + tl*32}")
    for ks in range(NPRE):
        LA(ks)
        k("s_waitcnt lgkmcnt(5)")
    k("s_mov_b64 exec, 1")
    stamp(4)
    gpoll("L_poll2", 11, 10, 32)
    k("s_mov_b64 exec, -1")
    stamp(11)
    for ks in range(20):
        k(f"buffer_load_dwordx4 v[{B3+4*ks}:{B3+4*ks+3}], v6, s[{sWS}:{sWS+3}], s{sT1} offen sc1")
        if ks < 19: k(f"s_add_u32 s{sT1}, s{sT1}, {4*32768}")
    for ks in range(20):
        lg = 5 if (ks >= 1 and ks - 1 + NPRE < 20) else 0
        k(f"s_waitcnt vmcnt({19-ks}) lgkmcnt({lg})")
        base = A3 + (ks % NPRE) * 20
        for tl in range(5):
            a = base + tl * 4; c = C3 + tl * 4; b = B3 + 4 * ks
            cs = "0" if ks == 0 else f"v[{c}:{c+3}]"
            k(f"v_mfma_f32_16x16x32_bf16 v[{c}:{c+3}], v[{a}:{a+3}], v[{b}:{b+3}], {cs}")
        if ks + NPRE < 20: LA(ks + NPRE)
    stamp(12)
    k("s_nop 7")
    for tl in range(5):
        c = C3 + tl * 4
        q = 16 + (tl >> 1) * 4 + (tl & 1) * 2
        k(f"v_cvt_pk_bf16_f32 v{q}, v{c}, v{c+1}")
        k(f"v_cvt_pk_bf16_f32 v{q+1}, v{c+2}, v{c+3}")
    k(f"""
    v_permlane16_swap_b32 v16, v18
    v_permlane16_swap_b32 v17, v19
    v_permlane16_swap_b32 v20, v22
    v_permlane16_swap_b32 v21, v23
    buffer_store_dwordx4 v[16:19], v7, s[{sOUT}:{sOUT+3}], 0 offen
    buffer_store_dwordx4 v[20:23], v7, s[{sOUT}:{sOUT+3}], 0 offen offset:64
    buffer_store_dwordx2 v[24:25], v9, s[{sOUT}:{sOUT+3}], 0 offen offset:128
    """)
    k("L_fin:")
    if stamps:
        SW = opts.get("sw", 0)
        k(f"""
        s_mov_b64 exec, -1
        s_waitcnt vmcnt(0)
        s_mem{'' if opts.get('cyc') else 'real'}time s[{sST+26}:{sST+27}]
        s_and_b32 s{sT0}, s{sWAVE}, 3
        s_cmp_lg_u32 s{sT0}, {SW}
        s_cbranch_scc1 L_end
        s_waitcnt lgkmcnt(0)
        s_lshl_b32 s{sT0}, s2, 1
        s_lshr_b32 s{sT1}, s{sWAVE}, 2
        s_add_u32 s{sT0}, s{sT0}, s{sT1}
        s_lshl_b32 s{sT0}, s{sT0}, 6
        s_add_u32 s{sT0}, s{sT0}, {STAMP_OFF}
        v_mov_b32 v1, 0
        """)
        for i in range(16): k(f"v_mov_b32 v{4+i}, s{sST+2*i}")
        for i in range(4): k(f"buffer_store_dwordx4 v[{4+4*i}:{7+4*i}], v1, s[{sWS}:{sWS+3}], s{sT0} offen offset:{16*i}")
    k("L_end:")
    k("s_endpgm")

    k("L_nofar:")
    for i in range(16): k(f"v_mov_b32 v{S[1]+i}, {hex(NEG)}")
    k("s_branch L_far_done")
    for g in range(1, 5):
        k(f"L_worest{g}:")
        k(f"s_cmp_eq_u32 s{sROLE}, 1\ns_cbranch_scc1 L_p2_done")
        wo_group(g)
    k("s_branch L_p2_done")

    k("L_slow:")
    s = S[0]
    k(f"""
    v_cndmask_b32 v{vQ2}, v{vQ2}, 0, s[{sUP}:{sUP+1}]
    v_mov_b32 v25, 0xff800000
    v_mov_b32 v27, {hex(NEG)}
    s_mov_b32 s{sT2}, 0               ; pass
    s_add_u32 s{sT4}, s{sNT}, 1
    s_cmp_lg_u32 s{sRB}, 0
    s_cselect_b32 s{sT4}, 9, s{sT4}     ; tiles
    """)
    for i in range(16): k(f"v_mov_b32 v{OA+i}, 0")
    k(f"""
    L_slow_pass:
    s_mov_b32 s{sCNT}, 0
    L_slow_tile:
    s_sub_u32 s{sT3}, 8, s{sCNT}
    s_lshl_b32 s{sT3}, s{sT3}, 9
    v_add_u32 v10, s{sT3}, v{vKA1}
    v_add_u32 v11, s{sT3}, v{vKA2}
    v_add_u32 v12, s{sT3}, v{vVA0}
    v_add_u32 v13, s{sT3}, v{vVA1}
    ds_read_b128 v[{KF[0]}:{KF[0]+3}], v10
    ds_read_b64 v[{KF[0]+4}:{KF[0]+5}], v11
    ds_read_b64_tr_b16 v[{VF[0]}:{VF[0]+1}], v12
    ds_read_b64_tr_b16 v[{VF[0]+2}:{VF[0]+3}], v13
    ds_read_b64_tr_b16 v[{VF[0]+4}:{VF[0]+5}], v12 offset:256
    ds_read_b64_tr_b16 v[{VF[0]+6}:{VF[0]+7}], v13 offset:256
    s_waitcnt lgkmcnt(0)
    """)
    QK(0, 0)
    k(f"""
    s_nop 15
    s_cmp_lg_u32 s{sCNT}, 0
    s_cbranch_scc1 L_slow_nd
    """)
    for i in range(16): k(f"v_bfi_b32 v{s+i}, v{MK+i}, v{s+i}, v27")
    k(f"""
    L_slow_nd:
    s_cmp_lg_u32 s{sCNT}, 8
    s_cbranch_scc1 L_slow_nf
    """)
    for i in range(16): k(f"v_bfi_b32 v{s+i}, v{MK+i}, v27, v{s+i}")
    k(f"""
    L_slow_nf:
    s_cmp_lg_u32 s{sT2}, 0
    s_cbranch_scc1 L_slow_p2
    """)
    for i in range(16): k(f"v_max_f32 v25, v25, v{s+i}")
    k("s_branch L_slow_next")
    k("L_slow_p2:")
    for i in range(16): k(f"v_sub_f32 v{s+i}, v{s+i}, v25")
    EXP(0, 0, 16)
    k("s_nop 0")
    CVT(0, 0, 8)
    k("s_nop 1")
    PV(0, 0); PV(0, 1)
    k(f"""
    s_nop 15
    L_slow_next:
    s_add_u32 s{sCNT}, s{sCNT}, 1
    s_cmp_lt_u32 s{sCNT}, s{sT4}
    s_cbranch_scc1 L_slow_tile
    s_cmp_lg_u32 s{sT2}, 0
    s_cbranch_scc1 L_slow_done
    v_mov_b32 v26, v25
    s_nop 1
    v_permlane32_swap_b32 v25, v26
    v_max_f32 v25, v25, v26
    s_mov_b32 s{sT2}, 1
    s_branch L_slow_pass
    L_slow_done:
    v_mov_b32 v25, v{OA+8}
    v_mov_b32 v26, v{OA+8}
    s_nop 1
    v_permlane32_swap_b32 v25, v26
    s_branch L_p2_norm
    """)
    k("L_code_end:")
    return emit([k], single=True)

if __name__ == "__main__":
    out = sys.argv[1]
    opts = {}
    for a in sys.argv[2:]:
        kx, v = a.split("=")
        opts[kx] = [int(x) for x in v.split(',')] if kx == 'only' else int(v)
    open(out, "w").write(gen(opts))
```

```python
import sys, math, struct
from asmlib import *

def f2u(x): return struct.unpack("<I", struct.pack("<f", x))[0]

QKV_OFF = 0
O_OFF   = 8 << 20
CN1_OFF = 12 << 20
CN2_OFF = CN1_OFF + 768 * 128
STAMP_OFF = 13 << 20
WS_SIZE = 14 << 20
SLOT = 28672
NSLOT = 4
LDS_WO = 0
LDS_K = 102400
LDS_V = LDS_K + 24576
LDS_Q = LDS_V + 24576
LDS_TOTAL = 163840
QSCALE = (20 ** -0.5) * math.log2(math.e)
SPIN_MAX = 400000
NEG = 0xf149f2ca

def gen(opts):
    DEPTH = opts.get("depth", 3)
    NCH = 12
    CODEPF = ""
    if opts.get("codepf"):
        CODEPF = "s_getpc_b64 s[46:47]\nv_lshlrev_b32 v20, 6, v0\ns_lshl_b32 s48, s36, 12\nv_add_u32 v20, s48, v20\nglobal_load_dword v21, v20, s[46:47]\ns_waitcnt vmcnt(0)"
    stamps = opts.get("stamps", False)
    k = K("standalone__sliding_block__prompt_kernel", (256, 1, 1), (512, 1, 1), LDS_TOTAL, vgpr=256, sgpr=102)

    sX, sW, sWO, sOUT, sWS = 16, 20, 24, 28, 32
    sWAVE, sXCD, sJ, sR1, sCT = 36, 37, 38, 39, 40
    sH, sRB, sODD, sTAG = 41, 42, 43, 44
    sLW = 45
    sT0, sT1, sT2, sT3, sT4, sT5 = 46, 47, 48, 49, 50, 51
    sCNT, sFL = 52, 53
    sUP = 54
    sEX = 56
    sNT = 58
    sB0 = 59
    sSTO = 60
    sROLE = 61
    sSC = 62
    sST = 64
    sUM, sNX, sWB = 98, 99, 100
    def astamp(idx):
        if stamps and opts.get("attst"): k(f"s_mem{'' if opts.get('cyc') else 'real'}time s[{sST+2*idx}:{sST+2*idx+1}]")
    def stamp(idx, role=None):
        if opts.get("padat") == idx and (role is None or role == opts.get("padrole", role)):
            k("s_memrealtime s[94:95]")
        if opts.get("attst") and idx in (1, 2, 3, 14, 15, 5, 6): return
        if stamps and (idx in opts.get("only", range(16)) or idx == 0):
            k(f"s_mem{'' if opts.get('cyc') else 'real'}time s[{sST+2*idx}:{sST+2*idx+1}]")
    def srd(d, lo, size):
        k(f"s_mov_b32 s{d}, s{lo}\ns_mov_b32 s{d+1}, s{lo+1}\ns_mov_b32 s{d+2}, {size}\ns_mov_b32 s{d+3}, 0x20000")
    def readychk(lab, vreg, vz, issue_first):
        k(f"s_mov_b32 s{sCNT}, 0")
        if issue_first: k(f"global_load_dword v{vreg}, v{vz}, s[12:13] sc1")
        k(f"""
        {lab}:
        s_waitcnt vmcnt(0)
        v_readfirstlane_b32 s{sTAG}, v{vreg}
        s_add_u32 s{sCNT}, s{sCNT}, 1
        s_cmp_ge_u32 s{sCNT}, {SPIN_MAX}
        s_cbranch_scc1 {lab}_ok
        s_cmp_ge_u32 s{sTAG}, 64
        s_cbranch_scc1 {lab}_ok
        global_load_dword v{vreg}, v{vz}, s[12:13] sc1
        s_branch {lab}
        {lab}_ok:
        """)
    def gpoll(lab, vreg, vaddr, target):
        k(f"""
        s_mov_b32 s{sCNT}, 0
        {lab}:
        v_mov_b32 v{vreg}, 0
        buffer_atomic_add v{vreg}, v{vaddr}, s[{sWS}:{sWS+3}], 0 offen sc0 sc1
        s_add_u32 s{sCNT}, s{sCNT}, 1
        s_cmp_ge_u32 s{sCNT}, {SPIN_MAX}
        s_waitcnt vmcnt(0)
        s_cbranch_scc1 {lab}_out
        v_cmp_gt_u32 vcc, {target}, v{vreg}
        s_cbranch_vccnz {lab}
        {lab}_out:
        """)
    def lwait(lab, vreg, vaddr, off, target):
        k(f"""
        {lab}:
        ds_read_b32 v{vreg}, v{vaddr} offset:{off}
        s_waitcnt lgkmcnt(0)
        v_cmp_gt_u32 vcc, {target}, v{vreg}
        s_cbranch_vccnz {lab}
        """)

    if stamps:
        for i in range(16): k(f"s_mov_b64 s[{sST+2*i}:{sST+2*i+1}], 0")
    if "padat" in opts: k("s_mov_b64 s[94:95], 0")
    stamp(0)
    k(f"""
    s_cmp_ge_u32 s2, 256
    s_cbranch_scc1 L_end
    s_load_dwordx8 s[4:11], s[0:1], 0
    s_load_dwordx4 s[12:15], s[0:1], 32
    v_lshrrev_b32 v1, 6, v0
    v_and_b32 v0, 63, v0
    v_readfirstlane_b32 s{sWAVE}, v1
    s_and_b32 s{sXCD}, s2, 7
    s_lshr_b32 s{sJ}, s2, 3
    {"s_xor_b32 s%d, s%d, 4" % (sWAVE, sWAVE) if opts.get("swap") else ""}
    s_and_b32 s{sT0}, s{sXCD}, 3
    s_lshl_b32 s{sT0}, s{sT0}, 2
    s_and_b32 s{sT1}, s{sJ}, 3
    s_lshr_b32 s{sT2}, s{sXCD}, 2
    s_lshr_b32 s{sRB}, s{sJ}, 2
    s_lshl_b32 s{sT3}, s{sT2}, 3
    s_add_u32 s{sCT}, s{sT3}, s{sRB}
    s_lshl_b32 s{sT3}, s{sT2}, 1
    s_add_u32 s{sT3}, s{sT3}, s{sT1}
    s_cmp_ge_u32 s{sJ}, 28
    s_cselect_b32 s{sCT}, 7, s{sCT}
    s_cselect_b32 s{sT3}, s{sT3}, s{sT1}
    s_add_u32 s{sR1}, s{sT0}, s{sT3}
    s_cmp_ge_u32 s{sJ}, 30
    s_cselect_b32 s{sCT}, 15, s{sCT}
    s_lshl_b32 s{sH}, s{sXCD}, 2
    s_add_u32 s{sH}, s{sH}, s{sT1}
    s_and_b32 s{sODD}, s{sH}, 1
    s_mov_b32 s{sUP}, 0
    s_mov_b32 s{sUP+1}, -1
    """)
    if opts.get("codepf", 1):
        k(f"""
        s_cmp_lt_u32 s{sJ}, 30
        s_cbranch_scc1 L_nopf
        s_getpc_b64 s[{sT2}:{sT2+1}]
        s_lshl_b32 s{sT0}, s{sWAVE}, 12
        v_lshlrev_b32 v2, 6, v0
        v_add_u32 v2, s{sT0}, v2
        v_min_u32 v2, L_code_end - L_nopf, v2
        global_load_dword v255, v2, s[{sT2}:{sT2+1}]
        L_nopf:
        """)
    k(f"""
    s_cmp_lt_u32 s{sWAVE}, 4
    s_cbranch_scc1 L_compute
    """)
    vLX, vLW = 240, 241
    k(f"""
    s_mov_b32 s{sROLE}, 1
    s_sub_u32 s{sT0}, s{sWAVE}, 4
    v_lshrrev_b32 v2, 3, v0
    v_mul_u32_u24 v2, 1280, v2
    s_and_b32 s{sT1}, s{sT0}, 1
    s_lshl_b32 s{sT1}, s{sT1}, 2
    v_lshrrev_b32 v3, 4, v0
    v_add_u32 v4, s{sT1}, v3
    v_and_b32 v5, 7, v0
    v_xor_b32 v4, v4, v5
    v_lshl_add_u32 v2, v4, 4, v2
    s_mul_i32 s{sT2}, s{sR1}, {128*1280}
    s_mul_i32 s{sT3}, s{sT0}, {8*1280}
    s_add_u32 s{sT2}, s{sT2}, s{sT3}
    v_add_u32 v{vLX}, s{sT2}, v2
    v_mul_u32_u24 v4, 3840, v3
    v_lshlrev_b32 v5, 2, v3
    v_and_b32 v6, 15, v0
    v_xor_b32 v5, v5, v6
    v_lshl_add_u32 v3, v5, 4, v4
    s_lshl_b32 s{sT2}, s{sCT}, 8
    s_mul_i32 s{sT3}, s{sT0}, {4*3840}
    s_add_u32 s{sT2}, s{sT2}, s{sT3}
    v_add_u32 v{vLW}, s{sT2}, v3
    s_lshl_b32 s{sLW}, s{sT0}, 10
    s_and_b32 s{sT1}, s{sJ}, 3
    s_add_u32 s{sT1}, s{sT1}, s{sRB}
    s_and_b32 s{sT1}, s{sT1}, {1 if opts.get('rot') else 0}
    s_mul_i32 s96, s{sT1}, {5*64*3840}
    s_mul_i32 s97, s{sT1}, 640
    s_waitcnt lgkmcnt(0)
    """)
    stamp(1)
    srd(sX, 4, 2621440); srd(sW, 6, 2457600)
    k(f"""
    s_cmp_ge_u32 s{sCT}, 15
    s_cbranch_scc1 L_ld_idle
    """)
    cnt = []
    def issue(c):
        slot = ((c + 3) % NSLOT) * SLOT
        n = 0
        if c < 10:
            for t in range(4):
                k(f"s_add_u32 m0, s{sLW}, {slot + t*4096}")
                k(f"s_{'add' if c < 5 else 'sub'}_u32 s{sT5}, {c*64*3840 + t*16*3840}, s96")
                k(f"buffer_load_dwordx4 v{vLW}, s[{sW}:{sW+3}], s{sT5} offen lds"); n += 1
            for t in range(3):
                k(f"s_add_u32 m0, s{sLW}, {slot + 16384 + t*4096}")
                k(f"s_{'add' if c < 5 else 'sub'}_u32 s{sT5}, {c*128 + t*32*1280}, s97")
                k(f"buffer_load_dwordx4 v{vLX}, s[{sX}:{sX+3}], s{sT5} offen lds"); n += 1
        else:
            hf = c - 10
            for p in range(5):
                k(f"s_add_u32 m0, s{sLW}, {slot + p*4096}")
                k(f"s_{'add' if hf == 0 else 'sub'}_u32 s{sT5}, {3*32*1280 + (hf*5+p)*128}, s97")
                k(f"buffer_load_dwordx4 v{vLX}, s[{sX}:{sX+3}], s{sT5} offen lds"); n += 1
        cnt.append(n)
    for c in range(DEPTH):
        issue(c)
        if c == 0: stamp(2)
    stamp(3)
    srd(sWS, 14, WS_SIZE)
    k("s_branch L_prep")
    k("L_ld_idle:")
    srd(sWS, 14, WS_SIZE); srd(sWO, 8, 819200)
    TP = opts.get("tailpf", 0)
    XP = opts.get("xpf", 0)
    k(f"""
    v_lshlrev_b32 v2, 4, v0
    s_mov_b32 m0, s{sLW}
    s_and_b32 s{sT1}, s{sJ}, 1
    s_lshl_b32 s{sT2}, s{sT1}, 3
    s_add_u32 s{sT2}, s{sT2}, s{sXCD}
    """)
    def warm(lab, srd_, n):
        k(f"""
        s_mov_b32 s{sT3}, 0
        {lab}:
        buffer_load_dwordx4 v2, s[{srd_}:{srd_+3}], s{sT0} offen lds
        s_add_u32 s{sT0}, s{sT0}, 4096
        s_add_u32 s{sT3}, s{sT3}, 1
        {"s_cmp_ge_u32 s%d, 819200" % sT0 if srd_ == sWO else ""}
        {"s_cselect_b32 s%d, s%d, s%d" % (sT0, sLW, sT0) if srd_ == sWO else ""}
        s_waitcnt vmcnt(12)
        s_cmp_lt_u32 s{sT3}, {n}
        s_cbranch_scc1 {lab}
        """)
    if TP:
        k(f"s_mul_i32 s{sT0}, s{sT2}, {4*TP*3840}\ns_add_u32 s{sT0}, s{sT0}, {(640-64*TP)*3840}\ns_add_u32 s{sT0}, s{sT0}, s{sLW}")
        warm("L_tpw", sW, (15 * TP + 3) // 4)
    if XP:
        k(f"s_mul_i32 s{sT0}, s{sT2}, {128*1280}\ns_add_u32 s{sT0}, s{sT0}, {96*1280}\ns_add_u32 s{sT0}, s{sT0}, s{sLW}")
        warm("L_tpx", sX, 10)
    k(f"""
    s_mul_i32 s{sT0}, s{sT1}, 409600
    s_mul_i32 s{sT3}, s{sXCD}, {opts.get("wrot", 49152)}
    s_add_u32 s{sT0}, s{sT0}, s{sT3}
    s_add_u32 s{sT0}, s{sT0}, s{sLW}
    """)
    if opts.get("sparse"):
        k(f"""
        v_lshlrev_b32 v2, 7, v0
        s_mul_i32 s{sT0}, s{sT1}, 409600
        s_mul_i32 s{sT3}, s{sXCD}, 49152
        s_add_u32 s{sT0}, s{sT0}, s{sT3}
        s_lshl_b32 s{sT3}, s{sLW}, 3
        s_add_u32 s{sT0}, s{sT0}, s{sT3}
        s_mov_b32 s{sT4}, 0
        L_warm:
        buffer_load_dword v254, v2, s[{sWO}:{sWO+3}], s{sT0} offen {"nt" if opts.get("sparse") == 2 else ""}
        s_add_u32 s{sT0}, s{sT0}, 32768
        s_sub_u32 s{sT5}, s{sT0}, 819200
        s_cmp_ge_u32 s{sT0}, 819200
        s_cselect_b32 s{sT0}, s{sT5}, s{sT0}
        s_add_u32 s{sT4}, s{sT4}, 1
        s_cmp_lt_u32 s{sT4}, {opts.get("nwarm", 13)}
        s_cbranch_scc1 L_warm
        """)
    else:
        warm("L_warm", sWO, opts.get("nwarm", 24))
    k(f"""
    s_waitcnt vmcnt(0)
    s_branch L_prep
    """)

    AREG = 96
    ACCS = [16, 32, 48, 48]
    BR = 64
    PK = 80
    vXb = [[2, 3, 4, 5], [6, 7, 8, 9], [88, 89, 90, 91]]
    vWb = [10, 11, 92]
    vSA, vSB, vTG, vZ0, vFA = 12, 13, 14, 15, 1
    k("L_compute:")
    k(f"""
    s_mov_b32 s{sROLE}, 0
    {"s_setprio 1" if opts.get("swap") == 1 else ""}
    v_and_b32 v16, 31, v0
    v_lshrrev_b32 v17, 5, v0          ; h
    v_bfe_u32 v18, v0, 1, 3
    v_xor_b32 v18, v18, v17           ; y
    v_lshlrev_b32 v19, 7, v16         ; row*128
    """)
    for s in range(4):
        k(f"v_xor_b32 v20, {2*s}, v18\nv_lshl_add_u32 v{vXb[0][s]}, v20, 4, v19")
        k(f"v_add_u32 v{vXb[1][s]}, {2*SLOT}, v{vXb[0][s]}")
    k(f"""
    v_bfe_u32 v20, v0, 2, 2           ; r
    v_lshl_add_u32 v21, v17, 3, v20   ; 8h + r
    v_lshlrev_b32 v21, 8, v21         ; *256
    v_bfe_u32 v22, v0, 4, 1           ; g&1
    v_bfe_u32 v23, v0, 1, 1           ; c>>1
    v_lshl_add_u32 v22, v22, 1, v23
    v_and_b32 v23, 1, v0
    v_lshl_add_u32 v21, v23, 3, v21
    v_lshl_add_u32 v21, v22, 4, v21
    v_xor_b32 v22, s{sWAVE}, v20
    v_lshl_add_u32 v{vWb[0]}, v22, 6, v21
    v_add_u32 v{vWb[1]}, {2*SLOT}, v{vWb[0]}
    v_lshlrev_b32 v{vSA}, 4, v0               ; lane*16
    v_lshlrev_b32 v{vSB}, 4, v16
    v_lshl_add_u32 v{vSB}, v17, 15, v{vSB}    ; (l&31)*16 + h*32768
    v_mov_b32 v{vZ0}, 0
    s_lshl_b32 s{sT0}, s{sCT}, 2
    s_add_u32 s{sT0}, s{sT0}, s{sWAVE}
    s_lshl_b32 s{sSTO}, s{sT0}, 17
    s_lshl_b32 s{sT1}, s{sR1}, 11
    s_add_u32 s{sSTO}, s{sSTO}, s{sT1}
    ; consumers of this wave's 32 columns: ty = cg/20, c = cg%20 ; heads floor(8c/5) .. floor((8c+12)/5)-1 ; row blocks r>>1 (+1 for K,V)
    s_mul_i32 s{sT1}, s{sT0}, 205
    s_lshr_b32 s{sT1}, s{sT1}, 12             ; ty
    s_mul_i32 s{sT2}, s{sT1}, 20
    s_sub_u32 s{sT2}, s{sT0}, s{sT2}          ; c
    s_mul_i32 s{sT3}, s{sT2}, 1640
    s_lshr_b32 s{sT3}, s{sT3}, 10             ; floor(8c/5)
    s_lshl_b32 s{sT2}, s{sT2}, 3
    s_add_u32 s{sT2}, s{sT2}, 12
    s_mul_i32 s{sT2}, s{sT2}, 205
    s_lshr_b32 s{sT2}, s{sT2}, 10             ; floor((8c+12)/5)
    v_and_b32 v20, 3, v0
    v_add_u32 v20, s{sT3}, v20                ; head
    v_lshrrev_b32 v21, 2, v0                  ; Rsel
    s_lshr_b32 s{sT3}, s{sR1}, 1
    s_min_u32 s{sT1}, s{sT1}, 1
    s_add_u32 s{sT1}, s{sT1}, s{sT3}
    s_min_u32 s{sT1}, s{sT1}, 7
    v_add_u32 v21, s{sT3}, v21
    v_cmp_gt_u32 vcc, s{sT2}, v20
    v_cmp_ge_u32 s[{sT4}:{sT4+1}], s{sT1}, v21
    s_and_b64 s[{sEX}:{sEX+1}], vcc, s[{sT4}:{sT4+1}]
    v_lshl_add_u32 v20, v21, 5, v20
    v_mul_u32_u24 v{vFA}, 384, v20
    v_add_u32 v{vFA}, {CN1_OFF}, v{vFA}
    s_cmp_lt_u32 s{sCT}, 5
    s_cselect_b32 s{sSC}, {hex(f2u(QSCALE))}, 1.0
    s_waitcnt lgkmcnt(0)
    """)
    MP_ = opts.get("mpf", 0)
    if MP_:
        W0 = opts.get("mpw0", 192)
        wper = ((640 - W0) * 3840 // 256 + 127) // 128 * 128
        srd(sX, 4, 2621440); srd(sW, 6, 2457600)
        k(f"""
        s_lshl_b32 s{sT0}, s{sWAVE}, 10
        s_mul_i32 s{sT1}, s2, 10240
        s_add_u32 s{sT1}, s{sT1}, s{sT0}
        s_mul_i32 s{sT2}, s2, {wper}
        s_add_u32 s{sT2}, s{sT2}, {W0*3840}
        s_add_u32 s{sT2}, s{sT2}, s{sT0}
        """)
        if MP_ & 2:
            for i in range((wper + 4095) // 4096):
                k(f"buffer_load_dwordx4 v[64:67], v{vSA}, s[{sW}:{sW+3}], s{sT2} offen\ns_add_u32 s{sT2}, s{sT2}, 4096")
        if MP_ & 1:
            for i in range(3):
                if i == 2: k(f"s_cmp_ge_u32 s{sWAVE}, 2\ns_cbranch_scc1 L_mpf_done")
                k(f"buffer_load_dwordx4 v[64:67], v{vSA}, s[{sX}:{sX+3}], s{sT1} offen\ns_add_u32 s{sT1}, s{sT1}, 4096")
        k("L_mpf_done:")
    srd(sWS, 14, WS_SIZE)
    k(f"""
    s_cmp_lt_u32 s{sCT}, 15
    s_cbranch_scc1 L_p1_go
    s_and_b32 s{sT0}, s{sJ}, 1
    s_lshl_b32 s{sT0}, s{sT0}, 3
    s_add_u32 s{sT0}, s{sT0}, s{sXCD}
    s_lshl_b32 s{sT0}, s{sT0}, 2
    s_add_u32 s{sT0}, s{sT0}, s{sWAVE}
    s_mul_i32 s{sT0}, s{sT0}, {20*128}
    s_add_u32 s{sT0}, s{sT0}, {CN1_OFF}
    v_lshlrev_b32 v20, 7, v0
    v_mov_b32 v21, 1
    s_mov_b64 exec, 0xfffff
    buffer_store_dword v{vZ0}, v20, s[{sWS}:{sWS+3}], s{sT0} offen sc1
    s_mov_b64 exec, 1
    s_waitcnt vmcnt(0)
    global_atomic_add v{vZ0}, v21, s[12:13] sc1
    s_mov_b64 exec, -1
    s_branch L_prep
    L_p1_go:
    """)
    def rdA(c, s):
        sl = (c + 3) % NSLOT
        o = (sl & 1) * SLOT + s * 16 * 256
        va = vWb[sl >> 1]
        a = AREG + 4 * (4 * c + s)
        k(f"ds_read_b64_tr_b16 v[{a}:{a+1}], v{va} offset:{o}")
        k(f"ds_read_b64_tr_b16 v[{a+2}:{a+3}], v{va} offset:{o + 4*256}")
    def rdB(c, s, off, f):
        sl = (c + 3) % NSLOT
        b = BR + 4 * f
        k(f"ds_read_b128 v[{b}:{b+3}], v{vXb[sl >> 1][s]} offset:{(sl & 1) * SLOT + off}")
    def mf(acc, ks, f, first):
        a = AREG + 4 * ks; b = BR + 4 * f
        cs = "0" if first else f"v[{acc}:{acc+15}]"
        k(f"v_mfma_f32_32x32x16_bf16 v[{acc}:{acc+15}], v[{a}:{a+3}], v[{b}:{b+3}], {cs}")
    fr = lambda s, g: 3 * (s & 1) + g
    def rd(c, s):
        rdA(c, s)
        for g in range(3): rdB(c, s, 16384 + g * 4096, fr(s, g))
    def mf3(c, s):
        for g in range(3): mf(ACCS[g], 4*c+s, fr(s, g), c == 0 and s == 0)
    PIPE = opts.get("pipe", 1)
    if PIPE:
        if MP_: k("s_waitcnt vmcnt(0)")
        k("s_barrier      ; B_0")
        stamp(1)
        rd(0, 0); rd(0, 1)
        for c in range(10):
            if c == 4: k(f"global_load_dword v{vTG}, v{vZ0}, s[12:13] sc1")
            if c == 8:
                readychk("L_rdy1", vTG, vZ0, False)
                k(f"v_mov_b32 v{vTG}, 1")
            for s in range(2):
                k("s_waitcnt lgkmcnt(5)")
                mf3(c, s); rd(c, s + 2)
            k("s_waitcnt lgkmcnt(5)")
            mf3(c, 2)
            k("s_waitcnt lgkmcnt(0)")
            k(f"s_barrier      ; B_{c+1}")
            if c < 9: rd(c + 1, 0)
            else:
                for i in range(3):
                    rdB(10, i, 0, i)
            mf3(c, 3)
            if c < 9: rd(c + 1, 1)
    else:
      for c in range(10):
        k(f"s_barrier      ; B_{c}")
        if c == 0: stamp(1)
        rd(c, 0); rd(c, 1)
        if c == 5: k(f"global_load_dword v{vTG}, v{vZ0}, s[12:13] sc1")
        if c == 9:
            readychk("L_rdy1", vTG, vZ0, False)
            k(f"v_mov_b32 v{vTG}, 1")
        for s in range(4):
            k(f"s_waitcnt lgkmcnt({5 if s < 3 else 0})")
            mf3(c, s)
            if s < 2: rd(c, s + 2)
    stamp(2)
    def ep_pair(c0, c1, q, vaddr, off_s):
        return [f"v_cvt_pk_bf16_f32 v{q}, v{c0}, v{c0+1}",
                f"v_cvt_pk_bf16_f32 v{q+1}, v{c0+2}, v{c0+3}",
                f"v_cvt_pk_bf16_f32 v{q+2}, v{c1}, v{c1+1}",
                f"v_cvt_pk_bf16_f32 v{q+3}, v{c1+2}, v{c1+3}",
                f"s_add_u32 s{sT5}, s{sSTO}, {off_s}",
                "s_nop 0",
                f"v_permlane32_swap_b32 v{q}, v{q+2}",
                f"v_permlane32_swap_b32 v{q+1}, v{q+3}",
                f"buffer_store_dwordx4 v[{q}:{q+3}], v{vaddr}, s[{sWS}:{sWS+3}], s{sT5} offen sc1"]
    def mulq(c):
        return [f"v_mul_f32 v{c+i}, s{sSC}, v{c+i}" for i in range(4)]
    def ep_part0():
        o = []
        for b in range(4):
            o += mulq(ACCS[0] + 4*b) + mulq(ACCS[1] + 4*b)
            o += ep_pair(ACCS[0] + 4*b, ACCS[1] + 4*b, PK + 4*(b & 1), vSA, b * 32768)
        return o
    def ep_part(g):
        acc = ACCS[g]
        o = []
        for b in (0, 2):
            o += mulq(acc + 4*b) + mulq(acc + 4*b + 4)
            o += ep_pair(acc + 4*b, acc + 4*b + 4, PK + 2*b, vSB, b * 32768 + g * 512)
        return o
    def flag(st, vm):
        return [f"s_mov_b64 exec, s[{sEX}:{sEX+1}]", f"s_waitcnt vmcnt({vm})",
                f"buffer_atomic_add v{vTG}, v{vFA}, s[{sWS}:{sWS+3}], 0 offen offset:{st*128} sc1", "s_mov_b64 exec, -1"]
    steps = []
    for c in range(10, 12):
        hf = c - 10
        for p in range(5):
            for s in range(4):
                steps.append((c, hf * 20 + p * 4 + s, s, p * 4096))
    LOOK = 3
    PER = opts.get("per", 3)
    fill = {}
    def spread(instrs, start, per):
        i = start
        while instrs:
            fill.setdefault(i, []).extend(instrs[:per]); instrs = instrs[per:]; i += 1
        return i
    G2T = 88 if NSLOT == 4 else None
    def g2_conv():
        o = []
        for b in range(4):
            c = ACCS[2] + 4 * b
            o += mulq(c) + [f"v_cvt_pk_bf16_f32 v{G2T+2*b}, v{c}, v{c+1}", f"v_cvt_pk_bf16_f32 v{G2T+2*b+1}, v{c+2}, v{c+3}"]
        return o
    def g2_store():
        o = []
        for b in (0, 2):
            q = G2T + 2 * b
            o += [f"s_add_u32 s{sT5}, s{sSTO}, {b*32768 + 2*512}", f"v_permlane32_swap_b32 v{q}, v{q+2}", f"v_permlane32_swap_b32 v{q+1}, v{q+3}",
                  f"buffer_store_dwordx4 v[{q}:{q+3}], v{vSB}, s[{sWS}:{sWS+3}], s{sT5} offen sc1"]
        return o
    e0 = spread(g2_store() + ep_part0(), 0, PER)
    FAT = opts.get("fat", 38)
    assert e0 <= FAT
    fill.setdefault(FAT, []).extend(flag(0, 4))
    if not PIPE:
        k("s_barrier      ; B_10")
        for i in range(LOOK):
            c, ks, s, off = steps[i]
            rdB(c, s, off, i % 4)
    k("s_nop 8" if not PIPE else "s_nop 11")
    for ins in g2_conv(): k(ins)
    for i, (c, ks, s, off) in enumerate(steps):
        n = i + LOOK
        if n < 40:
            cn, ksn, sn, offn = steps[n]
            if cn != steps[n - 1][0]: k(f"s_barrier      ; B_{cn}")
            rdB(cn, sn, offn, n % 4)
        k(f"s_waitcnt lgkmcnt({min(LOOK, 39 - i)})")
        mf(ACCS[3], ks, i % 4, ks == 0)
        for ins in fill.get(i, []): k(ins)
        if i == FAT: stamp(6)
    stamp(14)
    k("s_nop 11")
    for ins in ep_part(3): k(ins)
    for ins in flag(1, 3): k(ins)
    stamp(5)

    vKA1, vKA2, vVA0, vVA1 = 2, 3, 4, 5
    vOA, vOH = 6, 7
    vCW, vCN = 8, 9
    vQA1, vQA2 = 10, 11
    vQ1, vQ2 = 16, 20
    MK, MP, PD = 32, 48, 56
    S = [64, 80]
    P = 96
    KF = [104, 112]
    VF = [120, 128]
    OA = 136
    k("L_prep:")
    k(f"""
    v_and_b32 v25, 31, v0              ; q
    v_lshrrev_b32 v26, 5, v0           ; h
    v_lshlrev_b32 v27, 2, v26
    v_sub_u32 v27, v27, v25            ; 4h - q
    """)
    for i in range(16):
        key = 8 * (i >> 2) + (i & 3)
        k(f"v_add_u32 v{MK+i}, {key-1}, v27")
        k(f"v_ashrrev_i32 v{MK+i}, 31, v{MK+i}")
    k(f"s_mov_b32 s{sT1}, 0xffff")
    for j in range(8):
        k(f"v_bfi_b32 v{MP+j}, s{sT1}, v{MK+2*j}, v{MK+2*j+1}")
    k(f"""
    s_cmp_eq_u32 s{sROLE}, 1
    s_cbranch_scc1 L_nof
    s_cmp_ge_u32 s{sCT}, 15
    s_cbranch_scc1 L_nof
    """)
    for ins in flag(2, 1): k(ins)
    stamp(3)
    k(f"""
    L_nof:
    s_lshl_b32 s{sT0}, s{sWAVE}, 9        ; w*512
    v_lshlrev_b32 v27, 4, v25
    v_add_u32 v27, s{sT0}, v27            ; (32w+q)*16
    v_lshl_add_u32 v{vKA1}, v26, 13, v27
    v_add_u32 v{vKA1}, {LDS_K}, v{vKA1}
    s_lshl_b32 s{sT1}, s{sODD}, 3
    s_add_u32 s{sT2}, s{sT1}, {LDS_K+16384}
    v_add_u32 v{vKA2}, s{sT2}, v27
    s_sub_u32 s{sT2}, {LDS_K+16384+12*16+8}, s{sT1}
    v_mov_b32 v31, s{sT2}
    v_cndmask_b32 v{vKA2}, v{vKA2}, v31, s[{sUP}:{sUP+1}]
    v_lshl_add_u32 v{vCW}, v25, 8, v31
    v_lshl_add_u32 v{vCW}, v26, 4, v{vCW}
    s_sub_u32 s{sT2}, {LDS_V+16384+511*16+8}, s{sT1}
    v_mov_b32 v{vCN}, s{sT2}
    v_lshl_add_u32 v{vQA1}, v26, 12, v27
    v_add_u32 v{vQA1}, {LDS_Q}, v{vQA1}
    s_add_u32 s{sT2}, s{sT1}, {LDS_Q+8192}
    v_add_u32 v{vQA2}, s{sT2}, v27
    s_lshr_b32 s{sT1}, s{sH}, 1
    s_mul_i32 s{sB0}, s{sT1}, 5            ; 5m
    s_mul_i32 s{sT2}, s{sODD}, 3
    s_add_u32 s{sT2}, s{sT2}, s{sB0}       ; blockA
    s_lshl_b32 s{sT3}, s{sRB}, 12          ; 256*RB*16
    s_lshl_b32 s{sT4}, s{sT2}, 15
    s_add_u32 s{sT4}, s{sT4}, s{sT3}
    s_add_u32 s{sT4}, s{sT4}, {O_OFF}
    v_lshl_add_u32 v{vOA}, v26, 15, v27
    v_add_u32 v{vOA}, s{sT4}, v{vOA}
    s_add_u32 s{sT4}, s{sB0}, 2
    s_lshl_b32 s{sT4}, s{sT4}, 15
    s_add_u32 s{sT4}, s{sT4}, s{sT3}
    s_lshl_b32 s{sT5}, s{sODD}, 3
    s_add_u32 s{sT4}, s{sT4}, s{sT5}
    s_add_u32 s{sT4}, s{sT4}, {O_OFF}
    v_add_u32 v{vOH}, s{sT4}, v27
    v_bfe_u32 v30, v0, 4, 1              ; g1
    v_bfe_u32 v29, v0, 1, 1              ; c>>1
    v_cmp_eq_u32 vcc, 1, v30
    v_mov_b32 v28, 2
    v_and_b32 v25, 1, v0                 ; c&1
    v_cndmask_b32 v29, v29, v28, vcc     ; p
    v_and_b32 v30, v25, v30
    v_mov_b32 v28, s{sODD}
    v_cndmask_b32 v25, v25, v28, vcc
    v_bfe_u32 v28, v0, 2, 2              ; r
    v_lshl_add_u32 v28, v26, 2, v28      ; 4h + r
    v_lshlrev_b32 v26, 2, v29            ; p<<2
    v_lshlrev_b32 v27, 13, v29           ; p*8192
    v_lshl_add_u32 v27, v25, 3, v27
    v_add_u32 v27, s{sT0}, v27
    v_add_u32 v27, {LDS_V}, v27
    v_xor_b32 v25, v28, v26
    v_lshl_add_u32 v{vVA0}, v25, 4, v27
    v_or_b32 v28, 8, v28
    v_xor_b32 v25, v28, v26
    v_lshl_add_u32 v{vVA1}, v25, 4, v27
    v_cmp_eq_u32 vcc, 1, v30
    s_cmp_eq_u32 s{sRB}, 0
    s_cselect_b32 s{sNT}, s{sWAVE}, 7
    v_cndmask_b32 v{vVA0}, v{vVA0}, v31, vcc
    v_cndmask_b32 v{vVA1}, v{vVA1}, v31, vcc
    """)
    if opts.get("zrow", 1):
        k(f"""
        v_and_b32 v25, 18, v0
        v_cmp_eq_u32 vcc, 18, v25            ; g1 && c>=2
        v_add_u32 v31, 16, v31
        s_nop 0
        v_cndmask_b32 v{vVA0}, v{vVA0}, v31, vcc
        v_cndmask_b32 v{vVA1}, v{vVA1}, v31, vcc
        """)
    k(f"""
    v_mov_b32 v22, 0x3f80
    v_mov_b32 v23, 0
    v_cndmask_b32 v22, v22, v23, s[{sUP}:{sUP+1}]
    s_cmp_eq_u32 s{sROLE}, 1
    s_cbranch_scc1 L_role_ld
    """)
    vWOA = 200
    k(f"s_lshl_b32 s{sLW}, s{sWAVE}, 10\ns_lshl_b32 s{sT0}, s{sWAVE}, 6\nv_add_u32 v26, s{sT0}, v0\ns_mul_i32 s{sWB}, s{sRB}, 160")
    for i in range(5):
        if i: k(f"v_add_u32 v26, 256, v26")
        k(f"""
        v_mul_u32_u24 v27, 6554, v26
        v_lshrrev_b32 v27, 16, v27        ; rho
        v_mul_u32_u24 v28, 10, v27
        v_sub_u32 v28, v26, v28           ; piece
        v_and_b32 v29, 0x63, v27
        v_bfe_u32 v30, v27, 2, 2          ; g
        v_lshl_add_u32 v29, v30, 3, v29
        v_bfe_u32 v30, v27, 4, 1          ; t
        v_lshl_add_u32 v29, v30, 2, v29   ; k
        v_mul_u32_u24 v29, 1280, v29
        v_lshl_add_u32 v{vWOA+i}, v28, 4, v29
        """)
    srd(sWO, 8, 819200)
    k(f"""
    s_cmp_lt_u32 s{sCT}, 15
    s_cbranch_scc1 L_BD
    """)
    readychk("L_rdy2", vTG, vZ0, True)
    k("s_branch L_BD")

    vP, vZ, vF = 220, 221, 222
    vU = 224
    TY = 80 * 32768
    k(f"""
    L_role_ld:
    v_mov_b32 v{vZ}, 0
    s_lshl_b32 s{sT1}, s{sODD}, 1
    s_add_u32 s{sT1}, s{sT1}, s{sB0}
    s_add_u32 s{sT2}, s{sT1}, 2
    s_lshr_b32 s{sT1}, s{sT1}, 2
    s_lshr_b32 s{sT2}, s{sT2}, 2
    s_sub_u32 s{sT2}, s{sT2}, s{sT1}          ; 0 or 1
    s_cmp_eq_u32 s{sRB}, 0
    s_cselect_b32 s{sNX}, 6, 10
    s_movk_i32 s{sUM}, 0x3ff
    s_cselect_b32 s{sUM}, 0x333, s{sUM}
    s_lshl_b32 s{sNX}, s{sNX}, s{sT2}
    s_and_b32 s{sT0}, s{sWAVE}, 1
    s_lshl_b32 s{sT1}, 0x155, s{sT0}
    s_and_b32 s101, s{sUM}, s{sT1}
    s_cmp_lt_u32 s{sWAVE}, 6
    s_cselect_b32 s{sUM}, s{sUM}, s101
    s_sub_u32 s{sFL}, s{sWAVE}, 4
    s_min_u32 s{sFL}, s{sFL}, 2
    s_lshl_b32 s{sT0}, s{sRB}, 5
    s_add_u32 s{sT0}, s{sT0}, s{sH}
    s_mul_i32 s{sT0}, s{sT0}, 3
    s_add_u32 s{sT0}, s{sT0}, s{sFL}
    s_lshl_b32 s{sT0}, s{sT0}, 7
    s_add_u32 s{sT0}, s{sT0}, {CN1_OFF}
    v_mov_b32 v{vF}, s{sT0}
    s_mul_i32 s{sT0}, s{sODD}, 3
    s_add_u32 s{sT0}, s{sT0}, s{sB0}
    s_lshl_b32 s{sT0}, s{sT0}, 15
    s_add_u32 s{sT1}, s{sB0}, 2
    s_lshl_b32 s{sT1}, s{sT1}, 15
    s_lshl_b32 s{sT2}, s{sRB}, 12
    s_add_u32 s{sT0}, s{sT0}, s{sT2}
    s_add_u32 s{sT1}, s{sT1}, s{sT2}
    v_lshlrev_b32 v219, 4, v0
    v_add_u32 v{vU}, s{sT0}, v219
    v_add_u32 v{vU+1}, 32768, v{vU}
    v_add_u32 v{vU+2}, s{sT1}, v219
    v_xor_b32 v{vU+3}, 64, v{vU+1}
    v_xor_b32 v{vU+4}, 128, v{vU+2}
    s_cmp_ge_u32 s{sCT}, 15
    s_cbranch_scc1 L_ld_idle2
    """)
    srd(sX, 4, 2621440); srd(sW, 6, 2457600)
    for c in range(NCH):
        k(f"s_waitcnt vmcnt({sum(cnt[c+1:])})")
        if c == 9: stamp(15)
        if c == NCH - 1: stamp(14)
        k(f"s_barrier      ; B_{c}")
        if c == 7: k(f"global_load_dword v{vP}, v{vZ}, s[12:13] sc1")
        if len(cnt) < NCH: issue(len(cnt))
    k(f"""
    s_branch L_ld_go
    L_ld_idle2:
    global_load_dword v{vP}, v{vZ}, s[12:13] sc1
    L_ld_go:
    """)
    readychk("L_rdy3", vP, vZ, False)
    k(f"""
    L_fetch:
    s_lshl_b32 s{sSTO}, s{sFL}, 8
    s_add_u32 s{sSTO}, s{sSTO}, 1024
    s_cmp_eq_u32 s{sFL}, 1
    s_cselect_b32 s{sSTO}, 0, s{sSTO}
    s_cselect_b32 s{sT4}, -1, 0
    s_mov_b64 exec, 1
    """)
    gpoll("L_poll1", vP, vF, f"s{sNX}")
    stamp(4)
    k(f"""
    s_mov_b32 exec_lo, -1
    s_mov_b32 exec_hi, s{sT4}
    """)
    for u in (0, 1, 4, 5, 8, 9, 2, 3, 6, 7):
        ty = (u + 2) >> 2; t1 = (u + 2) & 3
        k(f"s_bitcmp1_b32 s{sUM}, {u}\ns_cbranch_scc0 L_skipu{u}")
        for p in range(3):
            ldsb = [LDS_Q + (t1 - 2) * 2048 + p * 4096, LDS_K + t1 * 2048 + p * 8192, LDS_V + t1 * 2048 + p * 8192][ty]
            vr = vU + p if (ty < 2 or p == 0) else vU + 2 + p
            k(f"s_add_u32 m0, s{sSTO}, {ldsb}")
            if p == 0: k(f"s_add_u32 s{sT5}, s{sSTO}, {ty * TY + (t1 - 2) * 2048}")
            else: k("s_nop 0")
            k(f"buffer_load_dwordx4 v{vr}, s[{sWS}:{sWS+3}], s{sT5} offen sc1 lds")
        k(f"L_skipu{u}:")
    stamp(5)
    k(f"""
    s_mov_b64 exec, -1
    s_waitcnt vmcnt(0)
    """)
    stamp(6)
    k(f"""
    s_cmp_lg_u32 s{sWAVE}, 7
    s_cbranch_scc1 L_BD
    ds_write_b32 v{vCN}, v{vZ}
    s_waitcnt lgkmcnt(0)
    L_BD:
    s_barrier
    """)
    stamp(7)

    def LK(kk, buf):
        off = (8 - kk) * 512
        f = KF[buf]
        k(f"ds_read_b128 v[{f}:{f+3}], v{vKA1} offset:{off}")
        k(f"ds_read_b64 v[{f+4}:{f+5}], v{vKA2} offset:{off}")
    def LV(kk, buf):
        off = (8 - kk) * 512
        f = VF[buf]
        for u in range(2):
            for t in range(2):
                k(f"ds_read_b64_tr_b16 v[{f+4*u+2*t}:{f+4*u+2*t+1}], v{[vVA0, vVA1][t]} offset:{off + u*256}")
    def QK(buf, sbuf):
        f = KF[buf]; s = S[sbuf]
        k(f"v_mfma_f32_32x32x16_bf16 v[{s}:{s+15}], v[{f}:{f+3}], v[{vQ1}:{vQ1+3}], 0")
        k(f"v_mfma_f32_32x32x8_bf16 v[{s}:{s+15}], v[{f+4}:{f+5}], v[{vQ2}:{vQ2+1}], v[{s}:{s+15}]")
    def EXP(sbuf, lo, hi):
        s = S[sbuf]
        for i in range(lo, hi): k(f"v_exp_f32 v{s+i}, v{s+i}")
    def CVT(sbuf, lo, hi):
        s = S[sbuf]
        for i in range(lo, hi): k(f"v_cvt_pk_bf16_f32 v{P+i}, v{s+2*i}, v{s+2*i+1}")
    def PV(buf, u, p=P, first=False):
        f = VF[buf] + 4 * u
        cs = "0" if first else f"v[{OA}:{OA+15}]"
        k(f"v_mfma_f32_32x32x16_bf16 v[{OA}:{OA+15}], v[{f}:{f+3}], v[{p+4*u}:{p+4*u+3}], {cs}")
    def wo_group(gi):
        for i in range(5):
            k(f"s_add_u32 m0, s{sLW}, {LDS_WO + (gi*5+i)*4096}")
            if i == 0: k(f"s_add_u32 s{sT5}, s{sWB}, {gi*4*40960}")
            else: k("s_nop 0")
            k(f"buffer_load_dwordx4 v{vWOA+i}, s[{sWO}:{sWO+3}], s{sT5} offen lds")
    def wo_opt(gi):
        if opts.get("nowo"): return
        k(f"s_cmp_eq_u32 s{sROLE}, 1\ns_cbranch_scc1 L_nowo{gi}")
        wo_group(gi)
        k(f"L_nowo{gi}:")

    PR = opts.get("pr", 0)
    PRS = {0: None, 1: [3, 3, 2, 2, 1, 1, 0, 0], 2: [3, 2, 2, 1, 1, 0, 0, 0], 3: [3, 3, 3, 2, 2, 1, 1, 0], 4: [1, 1, 1, 1, 0, 0, 0, 0], 5: [3, 2, 1, 0, 3, 2, 1, 0]}[PR]
    def setpr(st):
        if PRS and (st == 0 or PRS[st] != PRS[st - 1]): k(f"s_setprio {PRS[st]}")
    setpr(0)
    k(f"""
    s_mov_b32 exec_lo, 0x3ffff
    s_mov_b32 exec_hi, 0x3ffff
    ds_write_b64 v{vCW}, v[22:23]
    s_mov_b64 exec, -1
    ds_read_b128 v[{vQ1}:{vQ1+3}], v{vQA1}
    ds_read_b64 v[{vQ2}:{vQ2+1}], v{vQA2}
    """)
    LK(0, 0); LK(8, 1); LV(0, 0); LV(8, 1)
    k(f"""
    s_waitcnt lgkmcnt(12)
    v_cndmask_b32 v{vQ2}, v{vQ2}, 0, s[{sUP}:{sUP+1}]
    v_cndmask_b32 v{vQ2+1}, v{vQ2+1}, 0, s[{sUP}:{sUP+1}]
    s_waitcnt lgkmcnt(10)
    s_cmp_eq_u32 s{sRB}, 0
    """)
    QK(0, 0)
    k("s_cbranch_scc1 L_nofar")
    k("s_waitcnt lgkmcnt(8)")
    QK(1, 1)
    k("L_far_done:")
    LK(1, 0)
    wo_opt(0)
    k("s_nop 7")
    s = S[0]
    for i in range(16): k(f"v_bfi_b32 v{s+i}, v{MK+i}, v{s+i}, v{S[1]+i}")
    k(f"v_max3_f32 v25, v{s}, v{s+1}, v{s+2}")
    k(f"v_max3_f32 v26, v{s+3}, v{s+4}, v{s+5}")
    k(f"v_max3_f32 v25, v25, v{s+6}, v{s+7}")
    k(f"v_max3_f32 v26, v26, v{s+8}, v{s+9}")
    k(f"v_max3_f32 v25, v25, v{s+10}, v{s+11}")
    k(f"v_max3_f32 v26, v26, v{s+12}, v{s+13}")
    k(f"v_max3_f32 v25, v25, v{s+14}, v{s+15}")
    k(f"""
    v_max_f32 v25, v25, v26
    v_mov_b32 v26, v25
    s_nop 1
    v_permlane32_swap_b32 v25, v26
    v_max_f32 v25, v25, v26
    v_and_b32 v25, 0xffff0000, v25
    v_lshrrev_b32 v26, 16, v25
    v_xor_b32 v26, 0x8000, v26
    v_cndmask_b32 v{vQ2}, v{vQ2}, v26, s[{sUP}:{sUP+1}]
    """)
    astamp(5)
    for i in range(4): k(f"v_sub_f32 v{s+i}, v{s+i}, v25")
    k("s_waitcnt lgkmcnt(0)")
    QK(0, 1)
    LK(2, 1)
    for i in range(4, 16): k(f"v_sub_f32 v{s+i}, v{s+i}, v25")
    EXP(0, 0, 8)
    CVT(0, 0, 4)
    for j in range(4): k(f"v_and_b32 v{PD+j}, v{MP+j}, v{P+j}")
    for j in range(4): k(f"v_xor_b32 v{P+j}, v{PD+j}, v{P+j}")
    EXP(0, 8, 10)
    PV(0, 0, PD, first=True)
    EXP(0, 10, 13)
    k(f"s_cmp_eq_u32 s{sRB}, 0\ns_cbranch_scc1 L_nofar1")
    PV(1, 0)
    k("L_nofar1:")
    EXP(0, 13, 16)
    k("s_nop 0")
    CVT(0, 4, 8)
    for j in range(4, 8): k(f"v_and_b32 v{PD+j}, v{MP+j}, v{P+j}")
    for j in range(4, 8): k(f"v_xor_b32 v{P+j}, v{PD+j}, v{P+j}")
    PV(0, 1, PD)
    k(f"s_cbranch_scc1 L_nofar2")
    PV(1, 1)
    k("L_nofar2:")
    LV(1, 0)
    k(f"s_cmp_eq_u32 s{sNT}, 0\ns_cbranch_scc1 L_worest1")
    astamp(1)
    for i in range(7):
        if i == 2: astamp(2)
        if i == 4: astamp(3)
        if i == 6: astamp(14)
        cur = (i + 1) & 1; nxt = i & 1
        setpr(i + 1)
        if i < 6:
            k("s_waitcnt lgkmcnt(4)")
            QK((i + 1) & 1, nxt)
        if i < 5: LK(i + 3, i & 1)
        if i < 4: wo_opt(i + 1)
        EXP(cur, 0, 8)
        CVT(cur, 0, 4)
        EXP(cur, 8, 10)
        k(f"s_waitcnt lgkmcnt({2 if i < 5 else 0})")
        PV(i & 1, 0)
        EXP(cur, 10, 16)
        k("s_nop 0")
        CVT(cur, 4, 8)
        if i < 6: LV(i + 2, (i + 1) & 1)
        else: k("s_nop 1")
        PV(i & 1, 1)
        if i < 6:
            k(f"s_cmp_eq_u32 s{sNT}, {i+1}")
            k(f"s_cbranch_scc1 {'L_worest%d' % (i+2) if i < 3 else 'L_p2_done'}")
    k("L_p2_done:")
    if PRS: k("s_setprio 0" if not opts.get("prend") else f"s_setprio {opts['prend']}")
    astamp(15)
    k(f"""
    s_lshl_b32 s{sT2}, s{sRB}, 5
    s_and_b32 s{sT3}, s{sWAVE}, 3
    s_add_u32 s{sT2}, s{sT2}, s{sT3}
    s_lshl_b32 s{sT2}, s{sT2}, 1
    s_add_u32 s{sT2}, s{sT2}, s{sROLE}
    s_lshl_b32 s{sT2}, s{sT2}, 7
    s_add_u32 s{sFL}, s{sT2}, {CN2_OFF}
    v_mov_b32 v27, {hex(f2u(2.0**60))}
    v_mov_b32 v30, {hex(f2u(2.0**-60))}
    v_mov_b32 v28, 1
    v_lshlrev_b32 v29, 10, v0
    s_nop 0
    v_mov_b32 v25, v{OA+8}
    v_mov_b32 v26, v{OA+8}
    s_nop 1
    v_permlane32_swap_b32 v25, v26
    v_cmp_nlt_f32 vcc, v26, v27
    v_cmp_ngt_f32 s[{sT0}:{sT0+1}], v26, v30
    s_or_b64 vcc, vcc, s[{sT0}:{sT0+1}]
    s_cbranch_vccnz L_slow
    L_p2_norm:
    v_rcp_f32 v26, v26
    s_nop 0
    """)
    for i in range(12): k(f"v_mul_f32 v{OA+i}, v{OA+i}, v26")
    k(f"""
    v_cvt_pk_bf16_f32 v{P}, v{OA}, v{OA+1}
    v_cvt_pk_bf16_f32 v{P+1}, v{OA+2}, v{OA+3}
    v_cvt_pk_bf16_f32 v{P+2}, v{OA+4}, v{OA+5}
    v_cvt_pk_bf16_f32 v{P+3}, v{OA+6}, v{OA+7}
    v_cvt_pk_bf16_f32 v{P+4}, v{OA+8}, v{OA+9}
    v_cvt_pk_bf16_f32 v{P+5}, v{OA+10}, v{OA+11}
    v_permlane32_swap_b32 v{P}, v{P+2}
    v_permlane32_swap_b32 v{P+1}, v{P+3}
    buffer_store_dwordx4 v[{P}:{P+3}], v{vOA}, s[{sWS}:{sWS+3}], 0 offen sc1
    s_mov_b32 exec_hi, 0
    buffer_store_dwordx2 v[{P+4}:{P+5}], v{vOH}, s[{sWS}:{sWS+3}], 0 offen sc1
    """)
    stamp(8)
    k(f"""
    s_movk_i32 exec_lo, 0xff
    s_waitcnt vmcnt(0)
    buffer_atomic_add v28, v29, s[{sWS}:{sWS+3}], s{sFL} offen sc1
    """)
    stamp(9)
    k(f"""
    s_cmp_eq_u32 s{sROLE}, 1
    s_cbranch_scc1 L_fin
    s_mov_b32 exec_lo, 1
    ds_add_u32 v{vCN}, v28
    s_mov_b64 exec, -1
    v_mov_b32 v12, v{vCN}
    s_setprio 0
    """)

    NPRE = 7
    B3 = 16
    A3 = 96
    C3 = 236
    srd(sOUT, 10, 2621440)
    k(f"""
    v_lshrrev_b32 v2, 2, v0            ; 4g + r
    v_mul_u32_u24 v2, 160, v2
    v_and_b32 v3, 3, v0
    v_lshl_add_u32 v2, v3, 3, v2       ; steps 0..9
    v_add_u32 v3, {10*5120}, v2        ; steps 10..19
    v_lshrrev_b32 v4, 4, v0
    v_and_b32 v5, 15, v0
    v_lshlrev_b32 v6, 15, v4
    v_lshl_add_u32 v6, v5, 4, v6
    s_and_b32 s{sT1}, s{sJ}, 3
    s_lshr_b32 s{sT3}, s{sWAVE}, 1
    s_lshl_b32 s{sT2}, s{sT3}, 2
    s_add_u32 s{sT1}, s{sT1}, s{sT2}
    s_lshl_b32 s{sT0}, s{sXCD}, 3
    s_add_u32 s{sT0}, s{sT0}, s{sT1}     ; q tile
    s_lshl_b32 s{sT2}, s{sXCD}, 5
    s_add_u32 s{sT2}, s{sT2}, s{sJ}
    s_lshl_b32 s{sT2}, s{sT2}, 1
    s_add_u32 s{sT2}, s{sT2}, s{sT3}
    s_lshl_b32 s{sT2}, s{sT2}, 7
    s_add_u32 s{sT2}, s{sT2}, {CN2_OFF}
    v_mov_b32 v10, s{sT2}
    s_lshl_b32 s{sT0}, s{sT0}, 5
    s_and_b32 s{sT1}, s{sWAVE}, 1
    s_lshl_b32 s{sT1}, s{sT1}, 4
    s_add_u32 s{sT0}, s{sT0}, s{sT1}     ; row0
    s_lshl_b32 s{sT1}, s{sT0}, 4
    s_add_u32 s{sT1}, s{sT1}, {O_OFF}
    v_add_u32 v7, s{sT0}, v5
    v_mul_u32_u24 v7, 1280, v7
    s_mul_i32 s{sT2}, s{sRB}, 160
    v_add_u32 v7, s{sT2}, v7
    v_lshl_add_u32 v9, v4, 3, v7
    v_and_b32 v11, 1, v4
    v_lshl_add_u32 v7, v11, 5, v7
    v_lshrrev_b32 v11, 1, v4
    v_lshl_add_u32 v7, v11, 4, v7
    """)
    lwait("L_cwo", 11, 12, 0, 4)
    def LA(ks):
        base = A3 + (ks % NPRE) * 20
        va = 2 if ks < 10 else 3
        o = (ks % 10) * 5120
        for tl in range(5):
            for t in range(2):
                a = base + tl * 4 + 2 * t
                k(f"ds_read_b64_tr_b16 v[{a}:{a+1}], v{va} offset:{o + t*16*160 + tl*32}")
    for ks in range(NPRE):
        LA(ks)
        k("s_waitcnt lgkmcnt(5)")
    k("s_mov_b64 exec, 1")
    stamp(4)
    gpoll("L_poll2", 11, 10, 32)
    k("s_mov_b64 exec, -1")
    stamp(11)
    for ks in range(20):
        k(f"buffer_load_dwordx4 v[{B3+4*ks}:{B3+4*ks+3}], v6, s[{sWS}:{sWS+3}], s{sT1} offen sc1")
        if ks < 19: k(f"s_add_u32 s{sT1}, s{sT1}, {4*32768}")
    for ks in range(20):
        lg = 5 if (ks >= 1 and ks - 1 + NPRE < 20) else 0
        k(f"s_waitcnt vmcnt({19-ks}) lgkmcnt({lg})")
        base = A3 + (ks % NPRE) * 20
        for tl in range(5):
            a = base + tl * 4; c = C3 + tl * 4; b = B3 + 4 * ks
            cs = "0" if ks == 0 else f"v[{c}:{c+3}]"
            k(f"v_mfma_f32_16x16x32_bf16 v[{c}:{c+3}], v[{a}:{a+3}], v[{b}:{b+3}], {cs}")
        if ks + NPRE < 20: LA(ks + NPRE)
    stamp(12)
    k("s_nop 7")
    for tl in range(5):
        c = C3 + tl * 4
        q = 16 + (tl >> 1) * 4 + (tl & 1) * 2
        k(f"v_cvt_pk_bf16_f32 v{q}, v{c}, v{c+1}")
        k(f"v_cvt_pk_bf16_f32 v{q+1}, v{c+2}, v{c+3}")
    k(f"""
    v_permlane16_swap_b32 v16, v18
    v_permlane16_swap_b32 v17, v19
    v_permlane16_swap_b32 v20, v22
    v_permlane16_swap_b32 v21, v23
    buffer_store_dwordx4 v[16:19], v7, s[{sOUT}:{sOUT+3}], 0 offen
    buffer_store_dwordx4 v[20:23], v7, s[{sOUT}:{sOUT+3}], 0 offen offset:64
    buffer_store_dwordx2 v[24:25], v9, s[{sOUT}:{sOUT+3}], 0 offen offset:128
    """)
    k("L_fin:")
    if "padat" in opts:
        k(f"""
        s_waitcnt lgkmcnt(0)
        s_cmp_eq_u32 s94, 0
        s_cbranch_scc1 L_nopad
        L_pad:
        s_memrealtime s[92:93]
        s_waitcnt lgkmcnt(0)
        s_sub_u32 s92, s92, s94
        s_cmp_lt_u32 s92, 3000
        s_cbranch_scc1 L_pad
        L_nopad:
        """)
    if stamps:
        SW = opts.get("sw", 0)
        k(f"""
        s_mov_b64 exec, -1
        s_waitcnt vmcnt(0)
        s_mem{'' if opts.get('cyc') else 'real'}time s[{sST+26}:{sST+27}]
        s_and_b32 s{sT0}, s{sWAVE}, 3
        s_cmp_lg_u32 s{sT0}, {SW}
        s_cbranch_scc1 L_end
        s_waitcnt lgkmcnt(0)
        s_lshl_b32 s{sT0}, s2, 1
        s_lshr_b32 s{sT1}, s{sWAVE}, 2
        s_add_u32 s{sT0}, s{sT0}, s{sT1}
        s_lshl_b32 s{sT0}, s{sT0}, 6
        s_add_u32 s{sT0}, s{sT0}, {STAMP_OFF}
        v_mov_b32 v1, 0
        """)
        for i in range(16): k(f"v_mov_b32 v{4+i}, s{sST+2*i}")
        for i in range(4): k(f"buffer_store_dwordx4 v[{4+4*i}:{7+4*i}], v1, s[{sWS}:{sWS+3}], s{sT0} offen offset:{16*i}")
    k("L_end:")
    k("s_endpgm")

    k("L_nofar:")
    for i in range(16): k(f"v_mov_b32 v{S[1]+i}, {hex(NEG)}")
    k("s_branch L_far_done")
    for g in range(1, 5):
        k(f"L_worest{g}:")
        k(f"s_cmp_eq_u32 s{sROLE}, 1\ns_cbranch_scc1 L_p2_done")
        wo_group(g)
    k("s_branch L_p2_done")

    k("L_slow:")
    s = S[0]
    k(f"""
    v_cndmask_b32 v{vQ2}, v{vQ2}, 0, s[{sUP}:{sUP+1}]
    v_mov_b32 v25, 0xff800000
    v_mov_b32 v27, {hex(NEG)}
    s_mov_b32 s{sT2}, 0               ; pass
    s_add_u32 s{sT4}, s{sNT}, 1
    s_cmp_lg_u32 s{sRB}, 0
    s_cselect_b32 s{sT4}, 9, s{sT4}     ; tiles
    """)
    for i in range(16): k(f"v_mov_b32 v{OA+i}, 0")
    k(f"""
    L_slow_pass:
    s_mov_b32 s{sCNT}, 0
    L_slow_tile:
    s_sub_u32 s{sT3}, 8, s{sCNT}
    s_lshl_b32 s{sT3}, s{sT3}, 9
    v_add_u32 v10, s{sT3}, v{vKA1}
    v_add_u32 v11, s{sT3}, v{vKA2}
    v_add_u32 v12, s{sT3}, v{vVA0}
    v_add_u32 v13, s{sT3}, v{vVA1}
    ds_read_b128 v[{KF[0]}:{KF[0]+3}], v10
    ds_read_b64 v[{KF[0]+4}:{KF[0]+5}], v11
    ds_read_b64_tr_b16 v[{VF[0]}:{VF[0]+1}], v12
    ds_read_b64_tr_b16 v[{VF[0]+2}:{VF[0]+3}], v13
    ds_read_b64_tr_b16 v[{VF[0]+4}:{VF[0]+5}], v12 offset:256
    ds_read_b64_tr_b16 v[{VF[0]+6}:{VF[0]+7}], v13 offset:256
    s_waitcnt lgkmcnt(0)
    """)
    QK(0, 0)
    k(f"""
    s_nop 15
    s_cmp_lg_u32 s{sCNT}, 0
    s_cbranch_scc1 L_slow_nd
    """)
    for i in range(16): k(f"v_bfi_b32 v{s+i}, v{MK+i}, v{s+i}, v27")
    k(f"""
    L_slow_nd:
    s_cmp_lg_u32 s{sCNT}, 8
    s_cbranch_scc1 L_slow_nf
    """)
    for i in range(16): k(f"v_bfi_b32 v{s+i}, v{MK+i}, v27, v{s+i}")
    k(f"""
    L_slow_nf:
    s_cmp_lg_u32 s{sT2}, 0
    s_cbranch_scc1 L_slow_p2
    """)
    for i in range(16): k(f"v_max_f32 v25, v25, v{s+i}")
    k("s_branch L_slow_next")
    k("L_slow_p2:")
    for i in range(16): k(f"v_sub_f32 v{s+i}, v{s+i}, v25")
    EXP(0, 0, 16)
    k("s_nop 0")
    CVT(0, 0, 8)
    k("s_nop 1")
    PV(0, 0); PV(0, 1)
    k(f"""
    s_nop 15
    L_slow_next:
    s_add_u32 s{sCNT}, s{sCNT}, 1
    s_cmp_lt_u32 s{sCNT}, s{sT4}
    s_cbranch_scc1 L_slow_tile
    s_cmp_lg_u32 s{sT2}, 0
    s_cbranch_scc1 L_slow_done
    v_mov_b32 v26, v25
    s_nop 1
    v_permlane32_swap_b32 v25, v26
    v_max_f32 v25, v25, v26
    s_mov_b32 s{sT2}, 1
    s_branch L_slow_pass
    L_slow_done:
    v_mov_b32 v25, v{OA+8}
    v_mov_b32 v26, v{OA+8}
    s_nop 1
    v_permlane32_swap_b32 v25, v26
    s_branch L_p2_norm
    """)
    k("L_code_end:")
    return emit([k], single=True)

if __name__ == "__main__":
    out = sys.argv[1]
    opts = {}
    for a in sys.argv[2:]:
        kx, v = a.split("=")
        opts[kx] = [int(x) for x in v.split(',')] if kx == 'only' else int(v)
    open(out, "w").write(gen(opts))
```

```python
import sys, math, struct
from asmlib import *

def f2u(x): return struct.unpack("<I", struct.pack("<f", x))[0]

QKV_OFF = 0
O_OFF   = 8 << 20
CN1_OFF = 12 << 20
CN2_OFF = CN1_OFF + 768 * 128
STAMP_OFF = 13 << 20
WS_SIZE = 14 << 20
SLOT = 28672
NSLOT = 4
LDS_WO = 0
LDS_K = 102400
LDS_V = LDS_K + 24576
LDS_Q = LDS_V + 24576
LDS_TOTAL = 163840
QSCALE = (20 ** -0.5) * math.log2(math.e)
SPIN_MAX = 400000
NEG = 0xf149f2ca

def gen(opts):
    DEPTH = opts.get("depth", 3)
    NCH = 12
    CODEPF = ""
    if opts.get("codepf"):
        CODEPF = "s_getpc_b64 s[46:47]\nv_lshlrev_b32 v20, 6, v0\ns_lshl_b32 s48, s36, 12\nv_add_u32 v20, s48, v20\nglobal_load_dword v21, v20, s[46:47]\ns_waitcnt vmcnt(0)"
    stamps = opts.get("stamps", False)
    k = K("standalone__sliding_block__prompt_kernel", (256, 1, 1), (512, 1, 1), LDS_TOTAL, vgpr=256, sgpr=102)

    sX, sW, sWO, sOUT, sWS = 16, 20, 24, 28, 32
    sWAVE, sXCD, sJ, sR1, sCT = 36, 37, 38, 39, 40
    sH, sRB, sODD, sTAG = 41, 42, 43, 44
    sLW = 45
    sT0, sT1, sT2, sT3, sT4, sT5 = 46, 47, 48, 49, 50, 51
    sCNT, sFL = 52, 53
    sUP = 54
    sEX = 56
    sNT = 58
    sB0 = 59
    sSTO = 60
    sROLE = 61
    sSC = 62
    sST = 64
    sUM, sNX, sWB = 98, 99, 100
    def astamp(idx):
        if stamps and opts.get("attst"): k(f"s_mem{'' if opts.get('cyc') else 'real'}time s[{sST+2*idx}:{sST+2*idx+1}]")
    def stamp(idx, role=None):
        if opts.get("padat") == idx and (role is None or role == opts.get("padrole", role)):
            k("s_memrealtime s[94:95]")
        if opts.get("attst") and idx in (1, 2, 3, 14, 15, 5, 6): return
        if stamps and (idx in opts.get("only", range(16)) or idx == 0):
            k(f"s_mem{'' if opts.get('cyc') else 'real'}time s[{sST+2*idx}:{sST+2*idx+1}]")
    def srd(d, lo, size):
        k(f"s_mov_b32 s{d}, s{lo}\ns_mov_b32 s{d+1}, s{lo+1}\ns_mov_b32 s{d+2}, {size}\ns_mov_b32 s{d+3}, 0x20000")
    def readychk(lab, vreg, vz, issue_first):
        k(f"s_mov_b32 s{sCNT}, 0")
        if issue_first: k(f"global_load_dword v{vreg}, v{vz}, s[12:13] sc1")
        k(f"""
        {lab}:
        s_waitcnt vmcnt(0)
        v_readfirstlane_b32 s{sTAG}, v{vreg}
        s_add_u32 s{sCNT}, s{sCNT}, 1
        s_cmp_ge_u32 s{sCNT}, {SPIN_MAX}
        s_cbranch_scc1 {lab}_ok
        s_cmp_ge_u32 s{sTAG}, 64
        s_cbranch_scc1 {lab}_ok
        global_load_dword v{vreg}, v{vz}, s[12:13] sc1
        s_branch {lab}
        {lab}_ok:
        """)
    def gpoll(lab, vreg, vaddr, target):
        k(f"""
        s_mov_b32 s{sCNT}, 0
        {lab}:
        {f"buffer_load_dword v{vreg}, v{vaddr}, s[{sWS}:{sWS+3}], 0 offen sc1" if opts.get("ldpoll") else f"v_mov_b32 v{vreg}, 0"}
        {"" if opts.get("ldpoll") else f"buffer_atomic_add v{vreg}, v{vaddr}, s[{sWS}:{sWS+3}], 0 offen sc0 sc1"}
        s_add_u32 s{sCNT}, s{sCNT}, 1
        s_cmp_ge_u32 s{sCNT}, {SPIN_MAX}
        s_waitcnt vmcnt(0)
        s_cbranch_scc1 {lab}_out
        v_cmp_gt_u32 vcc, {target}, v{vreg}
        s_cbranch_vccnz {lab}
        {lab}_out:
        """)
    def lwait(lab, vreg, vaddr, off, target):
        k(f"""
        {lab}:
        ds_read_b32 v{vreg}, v{vaddr} offset:{off}
        s_waitcnt lgkmcnt(0)
        v_cmp_gt_u32 vcc, {target}, v{vreg}
        s_cbranch_vccnz {lab}
        """)

    if stamps:
        for i in range(16): k(f"s_mov_b64 s[{sST+2*i}:{sST+2*i+1}], 0")
    if "padat" in opts: k("s_mov_b64 s[94:95], 0")
    stamp(0)
    k(f"""
    s_cmp_ge_u32 s2, 256
    s_cbranch_scc1 L_end
    s_load_dwordx8 s[4:11], s[0:1], 0
    s_load_dwordx4 s[12:15], s[0:1], 32
    v_lshrrev_b32 v1, 6, v0
    v_and_b32 v0, 63, v0
    v_readfirstlane_b32 s{sWAVE}, v1
    s_and_b32 s{sXCD}, s2, 7
    s_lshr_b32 s{sJ}, s2, 3
    {"s_xor_b32 s%d, s%d, 4" % (sWAVE, sWAVE) if opts.get("swap") else ""}
    s_and_b32 s{sT0}, s{sXCD}, 3
    s_lshl_b32 s{sT0}, s{sT0}, 2
    s_and_b32 s{sT1}, s{sJ}, 3
    s_lshr_b32 s{sT2}, s{sXCD}, 2
    s_lshr_b32 s{sRB}, s{sJ}, 2
    s_lshl_b32 s{sT3}, s{sT2}, 3
    s_add_u32 s{sCT}, s{sT3}, s{sRB}
    s_lshl_b32 s{sT3}, s{sT2}, 1
    s_add_u32 s{sT3}, s{sT3}, s{sT1}
    s_cmp_ge_u32 s{sJ}, 28
    s_cselect_b32 s{sCT}, 7, s{sCT}
    s_cselect_b32 s{sT3}, s{sT3}, s{sT1}
    s_add_u32 s{sR1}, s{sT0}, s{sT3}
    s_cmp_ge_u32 s{sJ}, 30
    s_cselect_b32 s{sCT}, 15, s{sCT}
    s_lshl_b32 s{sH}, s{sXCD}, 2
    s_add_u32 s{sH}, s{sH}, s{sT1}
    s_and_b32 s{sODD}, s{sH}, 1
    s_mov_b32 s{sUP}, 0
    s_mov_b32 s{sUP+1}, -1
    """)
    if opts.get("codepf", 1):
        k(f"""
        s_cmp_lt_u32 s{sJ}, 30
        s_cbranch_scc1 L_nopf
        s_getpc_b64 s[{sT2}:{sT2+1}]
        s_lshl_b32 s{sT0}, s{sWAVE}, 12
        v_lshlrev_b32 v2, 6, v0
        v_add_u32 v2, s{sT0}, v2
        v_min_u32 v2, L_code_end - L_nopf, v2
        global_load_dword v255, v2, s[{sT2}:{sT2+1}]
        L_nopf:
        """)
    k(f"""
    s_cmp_lt_u32 s{sWAVE}, 4
    s_cbranch_scc1 L_compute
    """)
    vLX, vLW = 240, 241
    k(f"""
    s_mov_b32 s{sROLE}, 1
    s_sub_u32 s{sT0}, s{sWAVE}, 4
    v_lshrrev_b32 v2, 3, v0
    v_mul_u32_u24 v2, 1280, v2
    s_and_b32 s{sT1}, s{sT0}, 1
    s_lshl_b32 s{sT1}, s{sT1}, 2
    v_lshrrev_b32 v3, 4, v0
    v_add_u32 v4, s{sT1}, v3
    v_and_b32 v5, 7, v0
    v_xor_b32 v4, v4, v5
    v_lshl_add_u32 v2, v4, 4, v2
    s_mul_i32 s{sT2}, s{sR1}, {128*1280}
    s_mul_i32 s{sT3}, s{sT0}, {8*1280}
    s_add_u32 s{sT2}, s{sT2}, s{sT3}
    v_add_u32 v{vLX}, s{sT2}, v2
    v_mul_u32_u24 v4, 3840, v3
    v_lshlrev_b32 v5, 2, v3
    v_and_b32 v6, 15, v0
    v_xor_b32 v5, v5, v6
    v_lshl_add_u32 v3, v5, 4, v4
    s_lshl_b32 s{sT2}, s{sCT}, 8
    s_mul_i32 s{sT3}, s{sT0}, {4*3840}
    s_add_u32 s{sT2}, s{sT2}, s{sT3}
    v_add_u32 v{vLW}, s{sT2}, v3
    s_lshl_b32 s{sLW}, s{sT0}, 10
    s_and_b32 s{sT1}, s{sJ}, 3
    s_add_u32 s{sT1}, s{sT1}, s{sRB}
    s_and_b32 s{sT1}, s{sT1}, {1 if opts.get('rot') else 0}
    s_mul_i32 s96, s{sT1}, {5*64*3840}
    s_mul_i32 s97, s{sT1}, 640
    s_waitcnt lgkmcnt(0)
    """)
    stamp(1)
    srd(sX, 4, 2621440); srd(sW, 6, 2457600)
    k(f"""
    s_cmp_ge_u32 s{sCT}, 15
    s_cbranch_scc1 L_ld_idle
    """)
    cnt = []
    def issue(c):
        slot = ((c + 3) % NSLOT) * SLOT
        n = 0
        if c < 10:
            for t in range(4):
                k(f"s_add_u32 m0, s{sLW}, {slot + t*4096}")
                k(f"s_{'add' if c < 5 else 'sub'}_u32 s{sT5}, {c*64*3840 + t*16*3840}, s96")
                k(f"buffer_load_dwordx4 v{vLW}, s[{sW}:{sW+3}], s{sT5} offen lds"); n += 1
            for t in range(3):
                k(f"s_add_u32 m0, s{sLW}, {slot + 16384 + t*4096}")
                k(f"s_{'add' if c < 5 else 'sub'}_u32 s{sT5}, {c*128 + t*32*1280}, s97")
                k(f"buffer_load_dwordx4 v{vLX}, s[{sX}:{sX+3}], s{sT5} offen lds"); n += 1
        else:
            hf = c - 10
            for p in range(5):
                k(f"s_add_u32 m0, s{sLW}, {slot + p*4096}")
                k(f"s_{'add' if hf == 0 else 'sub'}_u32 s{sT5}, {3*32*1280 + (hf*5+p)*128}, s97")
                k(f"buffer_load_dwordx4 v{vLX}, s[{sX}:{sX+3}], s{sT5} offen lds"); n += 1
        cnt.append(n)
    for c in range(DEPTH):
        issue(c)
        if c == 0: stamp(2)
    stamp(3, 1)
    srd(sWS, 14, WS_SIZE)
    k("s_branch L_prep")
    k("L_ld_idle:")
    srd(sWS, 14, WS_SIZE); srd(sWO, 8, 819200)
    TP = opts.get("tailpf", 0)
    XP = opts.get("xpf", 0)
    k(f"""
    v_lshlrev_b32 v2, 4, v0
    s_mov_b32 m0, s{sLW}
    s_and_b32 s{sT1}, s{sJ}, 1
    s_lshl_b32 s{sT2}, s{sT1}, 3
    s_add_u32 s{sT2}, s{sT2}, s{sXCD}
    """)
    def warm(lab, srd_, n):
        k(f"""
        s_mov_b32 s{sT3}, 0
        {lab}:
        buffer_load_dwordx4 v2, s[{srd_}:{srd_+3}], s{sT0} offen lds
        s_add_u32 s{sT0}, s{sT0}, 4096
        s_add_u32 s{sT3}, s{sT3}, 1
        {"s_cmp_ge_u32 s%d, 819200" % sT0 if srd_ == sWO else ""}
        {"s_cselect_b32 s%d, s%d, s%d" % (sT0, sLW, sT0) if srd_ == sWO else ""}
        s_waitcnt vmcnt(12)
        s_cmp_lt_u32 s{sT3}, {n}
        s_cbranch_scc1 {lab}
        """)
    if TP:
        k(f"s_mul_i32 s{sT0}, s{sT2}, {4*TP*3840}\ns_add_u32 s{sT0}, s{sT0}, {(640-64*TP)*3840}\ns_add_u32 s{sT0}, s{sT0}, s{sLW}")
        warm("L_tpw", sW, (15 * TP + 3) // 4)
    if XP:
        k(f"s_mul_i32 s{sT0}, s{sT2}, {128*1280}\ns_add_u32 s{sT0}, s{sT0}, {96*1280}\ns_add_u32 s{sT0}, s{sT0}, s{sLW}")
        warm("L_tpx", sX, 10)
    k(f"""
    s_mul_i32 s{sT0}, s{sT1}, 409600
    s_mul_i32 s{sT3}, s{sXCD}, {opts.get("wrot", 49152)}
    s_add_u32 s{sT0}, s{sT0}, s{sT3}
    s_add_u32 s{sT0}, s{sT0}, s{sLW}
    """)
    if opts.get("sparse"):
        k(f"""
        v_lshlrev_b32 v2, 7, v0
        s_mul_i32 s{sT0}, s{sT1}, 409600
        s_mul_i32 s{sT3}, s{sXCD}, 49152
        s_add_u32 s{sT0}, s{sT0}, s{sT3}
        s_lshl_b32 s{sT3}, s{sLW}, 3
        s_add_u32 s{sT0}, s{sT0}, s{sT3}
        s_mov_b32 s{sT4}, 0
        L_warm:
        buffer_load_dword v254, v2, s[{sWO}:{sWO+3}], s{sT0} offen {"nt" if opts.get("sparse") == 2 else ""}
        s_add_u32 s{sT0}, s{sT0}, 32768
        s_sub_u32 s{sT5}, s{sT0}, 819200
        s_cmp_ge_u32 s{sT0}, 819200
        s_cselect_b32 s{sT0}, s{sT5}, s{sT0}
        s_add_u32 s{sT4}, s{sT4}, 1
        s_cmp_lt_u32 s{sT4}, {opts.get("nwarm", 13)}
        s_cbranch_scc1 L_warm
        """)
    else:
        warm("L_warm", sWO, opts.get("nwarm", 24))
    k(f"""
    s_waitcnt vmcnt(0)
    s_branch L_prep
    """)

    AREG = 96
    ACCS = [16, 32, 48, 48]
    BR = 64
    PK = 80
    vXb = [[2, 3, 4, 5], [6, 7, 8, 9], [88, 89, 90, 91]]
    vWb = [10, 11, 92]
    vSA, vSB, vTG, vZ0, vFA = 12, 13, 14, 15, 1
    k("L_compute:")
    k(f"""
    s_mov_b32 s{sROLE}, 0
    {"s_setprio 1" if opts.get("swap") == 1 else ""}
    v_and_b32 v16, 31, v0
    v_lshrrev_b32 v17, 5, v0          ; h
    v_bfe_u32 v18, v0, 1, 3
    v_xor_b32 v18, v18, v17           ; y
    v_lshlrev_b32 v19, 7, v16         ; row*128
    """)
    for s in range(4):
        k(f"v_xor_b32 v20, {2*s}, v18\nv_lshl_add_u32 v{vXb[0][s]}, v20, 4, v19")
        k(f"v_add_u32 v{vXb[1][s]}, {2*SLOT}, v{vXb[0][s]}")
    k(f"""
    v_bfe_u32 v20, v0, 2, 2           ; r
    v_lshl_add_u32 v21, v17, 3, v20   ; 8h + r
    v_lshlrev_b32 v21, 8, v21         ; *256
    v_bfe_u32 v22, v0, 4, 1           ; g&1
    v_bfe_u32 v23, v0, 1, 1           ; c>>1
    v_lshl_add_u32 v22, v22, 1, v23
    v_and_b32 v23, 1, v0
    v_lshl_add_u32 v21, v23, 3, v21
    v_lshl_add_u32 v21, v22, 4, v21
    v_xor_b32 v22, s{sWAVE}, v20
    v_lshl_add_u32 v{vWb[0]}, v22, 6, v21
    v_add_u32 v{vWb[1]}, {2*SLOT}, v{vWb[0]}
    v_lshlrev_b32 v{vSA}, 4, v0               ; lane*16
    v_lshlrev_b32 v{vSB}, 4, v16
    v_lshl_add_u32 v{vSB}, v17, 15, v{vSB}    ; (l&31)*16 + h*32768
    v_mov_b32 v{vZ0}, 0
    s_lshl_b32 s{sT0}, s{sCT}, 2
    s_add_u32 s{sT0}, s{sT0}, s{sWAVE}
    s_lshl_b32 s{sSTO}, s{sT0}, 17
    s_lshl_b32 s{sT1}, s{sR1}, 11
    s_add_u32 s{sSTO}, s{sSTO}, s{sT1}
    ; consumers of this wave's 32 columns: ty = cg/20, c = cg%20 ; heads floor(8c/5) .. floor((8c+12)/5)-1 ; row blocks r>>1 (+1 for K,V)
    s_mul_i32 s{sT1}, s{sT0}, 205
    s_lshr_b32 s{sT1}, s{sT1}, 12             ; ty
    s_mul_i32 s{sT2}, s{sT1}, 20
    s_sub_u32 s{sT2}, s{sT0}, s{sT2}          ; c
    s_mul_i32 s{sT3}, s{sT2}, 1640
    s_lshr_b32 s{sT3}, s{sT3}, 10             ; floor(8c/5)
    s_lshl_b32 s{sT2}, s{sT2}, 3
    s_add_u32 s{sT2}, s{sT2}, 12
    s_mul_i32 s{sT2}, s{sT2}, 205
    s_lshr_b32 s{sT2}, s{sT2}, 10             ; floor((8c+12)/5)
    v_and_b32 v20, 3, v0
    v_add_u32 v20, s{sT3}, v20                ; head
    v_lshrrev_b32 v21, 2, v0                  ; Rsel
    s_lshr_b32 s{sT3}, s{sR1}, 1
    s_min_u32 s{sT1}, s{sT1}, 1
    s_add_u32 s{sT1}, s{sT1}, s{sT3}
    s_min_u32 s{sT1}, s{sT1}, 7
    v_add_u32 v21, s{sT3}, v21
    v_cmp_gt_u32 vcc, s{sT2}, v20
    v_cmp_ge_u32 s[{sT4}:{sT4+1}], s{sT1}, v21
    s_and_b64 s[{sEX}:{sEX+1}], vcc, s[{sT4}:{sT4+1}]
    v_lshl_add_u32 v20, v21, 5, v20
    v_mul_u32_u24 v{vFA}, 384, v20
    v_add_u32 v{vFA}, {CN1_OFF}, v{vFA}
    s_cmp_lt_u32 s{sCT}, 5
    s_cselect_b32 s{sSC}, {hex(f2u(QSCALE))}, 1.0
    s_waitcnt lgkmcnt(0)
    """)
    MP_ = opts.get("mpf", 0)
    if MP_:
        W0 = opts.get("mpw0", 192)
        wper = ((640 - W0) * 3840 // 256 + 127) // 128 * 128
        srd(sX, 4, 2621440); srd(sW, 6, 2457600)
        k(f"""
        s_lshl_b32 s{sT0}, s{sWAVE}, 10
        s_mul_i32 s{sT1}, s2, 10240
        s_add_u32 s{sT1}, s{sT1}, s{sT0}
        s_mul_i32 s{sT2}, s2, {wper}
        s_add_u32 s{sT2}, s{sT2}, {W0*3840}
        s_add_u32 s{sT2}, s{sT2}, s{sT0}
        """)
        if MP_ & 2:
            for i in range((wper + 4095) // 4096):
                k(f"buffer_load_dwordx4 v[64:67], v{vSA}, s[{sW}:{sW+3}], s{sT2} offen\ns_add_u32 s{sT2}, s{sT2}, 4096")
        if MP_ & 1:
            for i in range(3):
                if i == 2: k(f"s_cmp_ge_u32 s{sWAVE}, 2\ns_cbranch_scc1 L_mpf_done")
                k(f"buffer_load_dwordx4 v[64:67], v{vSA}, s[{sX}:{sX+3}], s{sT1} offen\ns_add_u32 s{sT1}, s{sT1}, 4096")
        k("L_mpf_done:")
    srd(sWS, 14, WS_SIZE)
    TL = opts.get("tlb", 0)
    if TL:
        n = (13 << 20) >> TL
        srd(sOUT, 10, 2621440); srd(sWO, 8, 819200)
        k(f"""
        s_lshl_b32 s{sT0}, s{sWAVE}, 6
        v_add_u32 v20, s{sT0}, v0
        v_lshlrev_b32 v21, {TL}, v20
        v_cmp_gt_u32 vcc, {n}, v20
        s_and_saveexec_b64 s[{sT2}:{sT2+1}], vcc
        s_cbranch_execz L_tl1
        buffer_atomic_add v{vZ0}, v21, s[{sWS}:{sWS+3}], 0 offen sc1
        L_tl1:
        s_mov_b64 exec, -1
        s_cmp_lg_u32 s{sWAVE}, 3
        s_cbranch_scc1 L_tl2
        v_lshlrev_b32 v21, {max(TL, 16)}, v0
        buffer_load_dword v64, v21, s[{sOUT}:{sOUT+3}], 0 offen
        buffer_load_dword v65, v21, s[{sWO}:{sWO+3}], 0 offen
        s_waitcnt vmcnt(0)
        L_tl2:
        """)
    k(f"""
    s_cmp_lt_u32 s{sCT}, 15
    s_cbranch_scc1 L_p1_go
    s_and_b32 s{sT0}, s{sJ}, 1
    s_lshl_b32 s{sT0}, s{sT0}, 3
    s_add_u32 s{sT0}, s{sT0}, s{sXCD}
    s_lshl_b32 s{sT0}, s{sT0}, 2
    s_add_u32 s{sT0}, s{sT0}, s{sWAVE}
    s_mul_i32 s{sT0}, s{sT0}, {20*128}
    s_add_u32 s{sT0}, s{sT0}, {CN1_OFF}
    v_lshlrev_b32 v20, 7, v0
    v_mov_b32 v21, 1
    s_mov_b64 exec, 0xfffff
    buffer_store_dword v{vZ0}, v20, s[{sWS}:{sWS+3}], s{sT0} offen sc1
    s_mov_b64 exec, 1
    s_waitcnt vmcnt(0)
    global_atomic_add v{vZ0}, v21, s[12:13] sc1
    s_mov_b64 exec, -1
    s_branch L_prep
    L_p1_go:
    """)
    def rdA(c, s):
        sl = (c + 3) % NSLOT
        o = (sl & 1) * SLOT + s * 16 * 256
        va = vWb[sl >> 1]
        a = AREG + 4 * (4 * c + s)
        k(f"ds_read_b64_tr_b16 v[{a}:{a+1}], v{va} offset:{o}")
        k(f"ds_read_b64_tr_b16 v[{a+2}:{a+3}], v{va} offset:{o + 4*256}")
    def rdB(c, s, off, f):
        sl = (c + 3) % NSLOT
        b = BR + 4 * f
        k(f"ds_read_b128 v[{b}:{b+3}], v{vXb[sl >> 1][s]} offset:{(sl & 1) * SLOT + off}")
    def mf(acc, ks, f, first):
        a = AREG + 4 * ks; b = BR + 4 * f
        cs = "0" if first else f"v[{acc}:{acc+15}]"
        k(f"v_mfma_f32_32x32x16_bf16 v[{acc}:{acc+15}], v[{a}:{a+3}], v[{b}:{b+3}], {cs}")
    fr = lambda s, g: 3 * (s & 1) + g
    def rd(c, s):
        rdA(c, s)
        for g in range(3): rdB(c, s, 16384 + g * 4096, fr(s, g))
    def mf3(c, s):
        for g in range(3): mf(ACCS[g], 4*c+s, fr(s, g), c == 0 and s == 0)
    PIPE = opts.get("pipe", 1)
    if PIPE:
        if MP_: k("s_waitcnt vmcnt(0)")
        k("s_barrier      ; B_0")
        stamp(1)
        rd(0, 0); rd(0, 1)
        for c in range(10):
            if c == 4: k(f"global_load_dword v{vTG}, v{vZ0}, s[12:13] sc1")
            if c == 8:
                readychk("L_rdy1", vTG, vZ0, False)
                k(f"v_mov_b32 v{vTG}, 1")
            for s in range(2):
                k("s_waitcnt lgkmcnt(5)")
                mf3(c, s); rd(c, s + 2)
            k("s_waitcnt lgkmcnt(5)")
            mf3(c, 2)
            k("s_waitcnt lgkmcnt(0)")
            k(f"s_barrier      ; B_{c+1}")
            if c < 9: rd(c + 1, 0)
            else:
                for i in range(3):
                    rdB(10, i, 0, i)
            mf3(c, 3)
            if c < 9: rd(c + 1, 1)
    else:
      for c in range(10):
        k(f"s_barrier      ; B_{c}")
        if c == 0: stamp(1)
        rd(c, 0); rd(c, 1)
        if c == 5: k(f"global_load_dword v{vTG}, v{vZ0}, s[12:13] sc1")
        if c == 9:
            readychk("L_rdy1", vTG, vZ0, False)
            k(f"v_mov_b32 v{vTG}, 1")
        for s in range(4):
            k(f"s_waitcnt lgkmcnt({5 if s < 3 else 0})")
            mf3(c, s)
            if s < 2: rd(c, s + 2)
    stamp(2)
    def ep_pair(c0, c1, q, vaddr, off_s):
        return [f"v_cvt_pk_bf16_f32 v{q}, v{c0}, v{c0+1}",
                f"v_cvt_pk_bf16_f32 v{q+1}, v{c0+2}, v{c0+3}",
                f"v_cvt_pk_bf16_f32 v{q+2}, v{c1}, v{c1+1}",
                f"v_cvt_pk_bf16_f32 v{q+3}, v{c1+2}, v{c1+3}",
                f"s_add_u32 s{sT5}, s{sSTO}, {off_s}",
                "s_nop 0",
                f"v_permlane32_swap_b32 v{q}, v{q+2}",
                f"v_permlane32_swap_b32 v{q+1}, v{q+3}",
                f"buffer_store_dwordx4 v[{q}:{q+3}], v{vaddr}, s[{sWS}:{sWS+3}], s{sT5} offen sc1"]
    def mulq(c):
        return [f"v_mul_f32 v{c+i}, s{sSC}, v{c+i}" for i in range(4)]
    def ep_part0():
        o = []
        for b in range(4):
            o += mulq(ACCS[0] + 4*b) + mulq(ACCS[1] + 4*b)
            o += ep_pair(ACCS[0] + 4*b, ACCS[1] + 4*b, PK + 4*(b & 1), vSA, b * 32768)
        return o
    def ep_part(g):
        acc = ACCS[g]
        o = []
        for b in (0, 2):
            o += mulq(acc + 4*b) + mulq(acc + 4*b + 4)
            o += ep_pair(acc + 4*b, acc + 4*b + 4, PK + 2*b, vSB, b * 32768 + g * 512)
        return o
    def flag(st, vm):
        return [f"s_mov_b64 exec, s[{sEX}:{sEX+1}]", f"s_waitcnt vmcnt({vm})",
                f"buffer_atomic_add v{vTG}, v{vFA}, s[{sWS}:{sWS+3}], 0 offen offset:{st*128} sc1", "s_mov_b64 exec, -1"]
    steps = []
    for c in range(10, 12):
        hf = c - 10
        for p in range(5):
            for s in range(4):
                steps.append((c, hf * 20 + p * 4 + s, s, p * 4096))
    LOOK = 3
    PER = opts.get("per", 3)
    fill = {}
    def spread(instrs, start, per):
        i = start
        while instrs:
            fill.setdefault(i, []).extend(instrs[:per]); instrs = instrs[per:]; i += 1
        return i
    G2T = 88 if NSLOT == 4 else None
    def g2_conv():
        o = []
        for b in range(4):
            c = ACCS[2] + 4 * b
            o += mulq(c) + [f"v_cvt_pk_bf16_f32 v{G2T+2*b}, v{c}, v{c+1}", f"v_cvt_pk_bf16_f32 v{G2T+2*b+1}, v{c+2}, v{c+3}"]
        return o
    def g2_store():
        o = []
        for b in (0, 2):
            q = G2T + 2 * b
            o += [f"s_add_u32 s{sT5}, s{sSTO}, {b*32768 + 2*512}", f"v_permlane32_swap_b32 v{q}, v{q+2}", f"v_permlane32_swap_b32 v{q+1}, v{q+3}",
                  f"buffer_store_dwordx4 v[{q}:{q+3}], v{vSB}, s[{sWS}:{sWS+3}], s{sT5} offen sc1"]
        return o
    e0 = spread(g2_store() + ep_part0(), 0, PER)
    FAT = opts.get("fat", 38)
    assert e0 <= FAT
    fill.setdefault(FAT, []).extend(flag(0, 4))
    if not PIPE:
        k("s_barrier      ; B_10")
        for i in range(LOOK):
            c, ks, s, off = steps[i]
            rdB(c, s, off, i % 4)
    k("s_nop 8" if not PIPE else "s_nop 11")
    for ins in g2_conv(): k(ins)
    for i, (c, ks, s, off) in enumerate(steps):
        n = i + LOOK
        if n < 40:
            cn, ksn, sn, offn = steps[n]
            if cn != steps[n - 1][0]: k(f"s_barrier      ; B_{cn}")
            rdB(cn, sn, offn, n % 4)
        k(f"s_waitcnt lgkmcnt({min(LOOK, 39 - i)})")
        mf(ACCS[3], ks, i % 4, ks == 0)
        for ins in fill.get(i, []): k(ins)
        if i == FAT: stamp(6)
    stamp(14, 0)
    k("s_nop 11")
    for ins in ep_part(3): k(ins)
    for ins in flag(1, 3): k(ins)
    stamp(5)

    vKA1, vKA2, vVA0, vVA1 = 2, 3, 4, 5
    vOA, vOH = 6, 7
    vCW, vCN = 8, 9
    vQA1, vQA2 = 10, 11
    vQ1, vQ2 = 16, 20
    MK, MP, PD = 32, 48, 56
    S = [64, 80]
    P = 96
    KF = [104, 112]
    VF = [120, 128]
    OA = 136
    k("L_prep:")
    k(f"""
    v_and_b32 v25, 31, v0              ; q
    v_lshrrev_b32 v26, 5, v0           ; h
    v_lshlrev_b32 v27, 2, v26
    v_sub_u32 v27, v27, v25            ; 4h - q
    """)
    for i in range(16):
        key = 8 * (i >> 2) + (i & 3)
        k(f"v_add_u32 v{MK+i}, {key-1}, v27")
        k(f"v_ashrrev_i32 v{MK+i}, 31, v{MK+i}")
    k(f"s_mov_b32 s{sT1}, 0xffff")
    for j in range(8):
        k(f"v_bfi_b32 v{MP+j}, s{sT1}, v{MK+2*j}, v{MK+2*j+1}")
    k(f"""
    s_cmp_eq_u32 s{sROLE}, 1
    s_cbranch_scc1 L_nof
    s_cmp_ge_u32 s{sCT}, 15
    s_cbranch_scc1 L_nof
    """)
    for ins in flag(2, 1): k(ins)
    stamp(3, 0)
    k(f"""
    L_nof:
    s_lshl_b32 s{sT0}, s{sWAVE}, 9        ; w*512
    v_lshlrev_b32 v27, 4, v25
    v_add_u32 v27, s{sT0}, v27            ; (32w+q)*16
    v_lshl_add_u32 v{vKA1}, v26, 13, v27
    v_add_u32 v{vKA1}, {LDS_K}, v{vKA1}
    s_lshl_b32 s{sT1}, s{sODD}, 3
    s_add_u32 s{sT2}, s{sT1}, {LDS_K+16384}
    v_add_u32 v{vKA2}, s{sT2}, v27
    s_sub_u32 s{sT2}, {LDS_K+16384+12*16+8}, s{sT1}
    v_mov_b32 v31, s{sT2}
    v_cndmask_b32 v{vKA2}, v{vKA2}, v31, s[{sUP}:{sUP+1}]
    v_lshl_add_u32 v{vCW}, v25, 8, v31
    v_lshl_add_u32 v{vCW}, v26, 4, v{vCW}
    s_sub_u32 s{sT2}, {LDS_V+16384+511*16+8}, s{sT1}
    v_mov_b32 v{vCN}, s{sT2}
    v_lshl_add_u32 v{vQA1}, v26, 12, v27
    v_add_u32 v{vQA1}, {LDS_Q}, v{vQA1}
    s_add_u32 s{sT2}, s{sT1}, {LDS_Q+8192}
    v_add_u32 v{vQA2}, s{sT2}, v27
    s_lshr_b32 s{sT1}, s{sH}, 1
    s_mul_i32 s{sB0}, s{sT1}, 5            ; 5m
    s_mul_i32 s{sT2}, s{sODD}, 3
    s_add_u32 s{sT2}, s{sT2}, s{sB0}       ; blockA
    s_lshl_b32 s{sT3}, s{sRB}, 12          ; 256*RB*16
    s_lshl_b32 s{sT4}, s{sT2}, 15
    s_add_u32 s{sT4}, s{sT4}, s{sT3}
    s_add_u32 s{sT4}, s{sT4}, {O_OFF}
    v_lshl_add_u32 v{vOA}, v26, 15, v27
    v_add_u32 v{vOA}, s{sT4}, v{vOA}
    s_add_u32 s{sT4}, s{sB0}, 2
    s_lshl_b32 s{sT4}, s{sT4}, 15
    s_add_u32 s{sT4}, s{sT4}, s{sT3}
    s_lshl_b32 s{sT5}, s{sODD}, 3
    s_add_u32 s{sT4}, s{sT4}, s{sT5}
    s_add_u32 s{sT4}, s{sT4}, {O_OFF}
    v_add_u32 v{vOH}, s{sT4}, v27
    v_bfe_u32 v30, v0, 4, 1              ; g1
    v_bfe_u32 v29, v0, 1, 1              ; c>>1
    v_cmp_eq_u32 vcc, 1, v30
    v_mov_b32 v28, 2
    v_and_b32 v25, 1, v0                 ; c&1
    v_cndmask_b32 v29, v29, v28, vcc     ; p
    v_and_b32 v30, v25, v30
    v_mov_b32 v28, s{sODD}
    v_cndmask_b32 v25, v25, v28, vcc
    v_bfe_u32 v28, v0, 2, 2              ; r
    v_lshl_add_u32 v28, v26, 2, v28      ; 4h + r
    v_lshlrev_b32 v26, 2, v29            ; p<<2
    v_lshlrev_b32 v27, 13, v29           ; p*8192
    v_lshl_add_u32 v27, v25, 3, v27
    v_add_u32 v27, s{sT0}, v27
    v_add_u32 v27, {LDS_V}, v27
    v_xor_b32 v25, v28, v26
    v_lshl_add_u32 v{vVA0}, v25, 4, v27
    v_or_b32 v28, 8, v28
    v_xor_b32 v25, v28, v26
    v_lshl_add_u32 v{vVA1}, v25, 4, v27
    v_cmp_eq_u32 vcc, 1, v30
    s_cmp_eq_u32 s{sRB}, 0
    s_cselect_b32 s{sNT}, s{sWAVE}, 7
    v_cndmask_b32 v{vVA0}, v{vVA0}, v31, vcc
    v_cndmask_b32 v{vVA1}, v{vVA1}, v31, vcc
    """)
    if opts.get("zrow", 1):
        k(f"""
        v_and_b32 v25, 18, v0
        v_cmp_eq_u32 vcc, 18, v25            ; g1 && c>=2
        v_add_u32 v31, 16, v31
        s_nop 0
        v_cndmask_b32 v{vVA0}, v{vVA0}, v31, vcc
        v_cndmask_b32 v{vVA1}, v{vVA1}, v31, vcc
        """)
    k(f"""
    v_mov_b32 v22, 0x3f80
    v_mov_b32 v23, 0
    v_cndmask_b32 v22, v22, v23, s[{sUP}:{sUP+1}]
    s_cmp_eq_u32 s{sROLE}, 1
    s_cbranch_scc1 L_role_ld
    """)
    vWOA = 200
    k(f"s_lshl_b32 s{sLW}, s{sWAVE}, 10\ns_lshl_b32 s{sT0}, s{sWAVE}, 6\nv_add_u32 v26, s{sT0}, v0\ns_mul_i32 s{sWB}, s{sRB}, 160")
    for i in range(5):
        if i: k(f"v_add_u32 v26, 256, v26")
        k(f"""
        v_mul_u32_u24 v27, 6554, v26
        v_lshrrev_b32 v27, 16, v27        ; rho
        v_mul_u32_u24 v28, 10, v27
        v_sub_u32 v28, v26, v28           ; piece
        v_and_b32 v29, 0x63, v27
        v_bfe_u32 v30, v27, 2, 2          ; g
        v_lshl_add_u32 v29, v30, 3, v29
        v_bfe_u32 v30, v27, 4, 1          ; t
        v_lshl_add_u32 v29, v30, 2, v29   ; k
        v_mul_u32_u24 v29, 1280, v29
        v_lshl_add_u32 v{vWOA+i}, v28, 4, v29
        """)
    srd(sWO, 8, 819200)
    k(f"""
    s_cmp_lt_u32 s{sCT}, 15
    s_cbranch_scc1 L_BD
    """)
    readychk("L_rdy2", vTG, vZ0, True)
    k("s_branch L_BD")

    vP, vZ, vF = 220, 221, 222
    vU = 224
    TY = 80 * 32768
    k(f"""
    L_role_ld:
    v_mov_b32 v{vZ}, 0
    s_lshl_b32 s{sT1}, s{sODD}, 1
    s_add_u32 s{sT1}, s{sT1}, s{sB0}
    s_add_u32 s{sT2}, s{sT1}, 2
    s_lshr_b32 s{sT1}, s{sT1}, 2
    s_lshr_b32 s{sT2}, s{sT2}, 2
    s_sub_u32 s{sT2}, s{sT2}, s{sT1}          ; 0 or 1
    s_cmp_eq_u32 s{sRB}, 0
    s_cselect_b32 s{sNX}, 6, 10
    s_movk_i32 s{sUM}, 0x3ff
    s_cselect_b32 s{sUM}, 0x333, s{sUM}
    s_lshl_b32 s{sNX}, s{sNX}, s{sT2}
    s_and_b32 s{sT0}, s{sWAVE}, 1
    s_lshl_b32 s{sT1}, 0x155, s{sT0}
    s_and_b32 s101, s{sUM}, s{sT1}
    s_cmp_lt_u32 s{sWAVE}, 6
    s_cselect_b32 s{sUM}, s{sUM}, s101
    s_sub_u32 s{sFL}, s{sWAVE}, 4
    s_min_u32 s{sFL}, s{sFL}, 2
    s_lshl_b32 s{sT0}, s{sRB}, 5
    s_add_u32 s{sT0}, s{sT0}, s{sH}
    s_mul_i32 s{sT0}, s{sT0}, 3
    s_add_u32 s{sT0}, s{sT0}, s{sFL}
    s_lshl_b32 s{sT0}, s{sT0}, 7
    s_add_u32 s{sT0}, s{sT0}, {CN1_OFF}
    v_mov_b32 v{vF}, s{sT0}
    s_mul_i32 s{sT0}, s{sODD}, 3
    s_add_u32 s{sT0}, s{sT0}, s{sB0}
    s_lshl_b32 s{sT0}, s{sT0}, 15
    s_add_u32 s{sT1}, s{sB0}, 2
    s_lshl_b32 s{sT1}, s{sT1}, 15
    s_lshl_b32 s{sT2}, s{sRB}, 12
    s_add_u32 s{sT0}, s{sT0}, s{sT2}
    s_add_u32 s{sT1}, s{sT1}, s{sT2}
    v_lshlrev_b32 v219, 4, v0
    v_add_u32 v{vU}, s{sT0}, v219
    v_add_u32 v{vU+1}, 32768, v{vU}
    v_add_u32 v{vU+2}, s{sT1}, v219
    v_xor_b32 v{vU+3}, 64, v{vU+1}
    v_xor_b32 v{vU+4}, 128, v{vU+2}
    s_cmp_ge_u32 s{sCT}, 15
    s_cbranch_scc1 L_ld_idle2
    """)
    srd(sX, 4, 2621440); srd(sW, 6, 2457600)
    for c in range(NCH):
        k(f"s_waitcnt vmcnt({sum(cnt[c+1:])})")
        if c == 9: stamp(15)
        if c == NCH - 1: stamp(14, 1)
        k(f"s_barrier      ; B_{c}")
        if c == 7: k(f"global_load_dword v{vP}, v{vZ}, s[12:13] sc1")
        if len(cnt) < NCH: issue(len(cnt))
    k(f"""
    s_branch L_ld_go
    L_ld_idle2:
    global_load_dword v{vP}, v{vZ}, s[12:13] sc1
    L_ld_go:
    """)
    readychk("L_rdy3", vP, vZ, False)
    k(f"""
    L_fetch:
    s_lshl_b32 s{sSTO}, s{sFL}, 8
    s_add_u32 s{sSTO}, s{sSTO}, 1024
    s_cmp_eq_u32 s{sFL}, 1
    s_cselect_b32 s{sSTO}, 0, s{sSTO}
    s_cselect_b32 s{sT4}, -1, 0
    s_mov_b64 exec, 1
    """)
    gpoll("L_poll1", vP, vF, f"s{sNX}")
    stamp(4, 1)
    k(f"""
    s_mov_b32 exec_lo, -1
    s_mov_b32 exec_hi, s{sT4}
    """)
    for u in (0, 1, 4, 5, 8, 9, 2, 3, 6, 7):
        ty = (u + 2) >> 2; t1 = (u + 2) & 3
        k(f"s_bitcmp1_b32 s{sUM}, {u}\ns_cbranch_scc0 L_skipu{u}")
        for p in range(3):
            ldsb = [LDS_Q + (t1 - 2) * 2048 + p * 4096, LDS_K + t1 * 2048 + p * 8192, LDS_V + t1 * 2048 + p * 8192][ty]
            vr = vU + p if (ty < 2 or p == 0) else vU + 2 + p
            k(f"s_add_u32 m0, s{sSTO}, {ldsb}")
            if p == 0: k(f"s_add_u32 s{sT5}, s{sSTO}, {ty * TY + (t1 - 2) * 2048}")
            else: k("s_nop 0")
            k(f"buffer_load_dwordx4 v{vr}, s[{sWS}:{sWS+3}], s{sT5} offen sc1 lds")
        k(f"L_skipu{u}:")
    stamp(5)
    k(f"""
    s_mov_b64 exec, -1
    s_waitcnt vmcnt(0)
    """)
    stamp(6)
    k(f"""
    s_cmp_lg_u32 s{sWAVE}, 7
    s_cbranch_scc1 L_BD
    ds_write_b32 v{vCN}, v{vZ}
    s_waitcnt lgkmcnt(0)
    L_BD:
    s_barrier
    """)
    stamp(7)

    def LK(kk, buf):
        off = (8 - kk) * 512
        f = KF[buf]
        k(f"ds_read_b128 v[{f}:{f+3}], v{vKA1} offset:{off}")
        k(f"ds_read_b64 v[{f+4}:{f+5}], v{vKA2} offset:{off}")
    def LV(kk, buf):
        off = (8 - kk) * 512
        f = VF[buf]
        for u in range(2):
            for t in range(2):
                k(f"ds_read_b64_tr_b16 v[{f+4*u+2*t}:{f+4*u+2*t+1}], v{[vVA0, vVA1][t]} offset:{off + u*256}")
    def QK(buf, sbuf):
        f = KF[buf]; s = S[sbuf]
        k(f"v_mfma_f32_32x32x16_bf16 v[{s}:{s+15}], v[{f}:{f+3}], v[{vQ1}:{vQ1+3}], 0")
        k(f"v_mfma_f32_32x32x8_bf16 v[{s}:{s+15}], v[{f+4}:{f+5}], v[{vQ2}:{vQ2+1}], v[{s}:{s+15}]")
    def EXP(sbuf, lo, hi):
        s = S[sbuf]
        for i in range(lo, hi): k(f"v_exp_f32 v{s+i}, v{s+i}")
    def CVT(sbuf, lo, hi):
        s = S[sbuf]
        for i in range(lo, hi): k(f"v_cvt_pk_bf16_f32 v{P+i}, v{s+2*i}, v{s+2*i+1}")
    def PV(buf, u, p=P, first=False):
        f = VF[buf] + 4 * u
        cs = "0" if first else f"v[{OA}:{OA+15}]"
        k(f"v_mfma_f32_32x32x16_bf16 v[{OA}:{OA+15}], v[{f}:{f+3}], v[{p+4*u}:{p+4*u+3}], {cs}")
    def wo_group(gi):
        for i in range(5):
            k(f"s_add_u32 m0, s{sLW}, {LDS_WO + (gi*5+i)*4096}")
            if i == 0: k(f"s_add_u32 s{sT5}, s{sWB}, {gi*4*40960}")
            else: k("s_nop 0")
            k(f"buffer_load_dwordx4 v{vWOA+i}, s[{sWO}:{sWO+3}], s{sT5} offen lds")
    def wo_opt(gi):
        if opts.get("nowo"): return
        k(f"s_cmp_eq_u32 s{sROLE}, 1\ns_cbranch_scc1 L_nowo{gi}")
        wo_group(gi)
        k(f"L_nowo{gi}:")

    PR = opts.get("pr", 0)
    PRS = {0: None, 1: [3, 3, 2, 2, 1, 1, 0, 0], 2: [3, 2, 2, 1, 1, 0, 0, 0], 3: [3, 3, 3, 2, 2, 1, 1, 0], 4: [1, 1, 1, 1, 0, 0, 0, 0], 5: [3, 2, 1, 0, 3, 2, 1, 0]}[PR]
    def setpr(st):
        if PRS and (st == 0 or PRS[st] != PRS[st - 1]): k(f"s_setprio {PRS[st]}")
    setpr(0)
    k(f"""
    s_mov_b32 exec_lo, 0x3ffff
    s_mov_b32 exec_hi, 0x3ffff
    ds_write_b64 v{vCW}, v[22:23]
    s_mov_b64 exec, -1
    ds_read_b128 v[{vQ1}:{vQ1+3}], v{vQA1}
    ds_read_b64 v[{vQ2}:{vQ2+1}], v{vQA2}
    """)
    LK(0, 0); LK(8, 1); LV(0, 0); LV(8, 1)
    k(f"""
    s_waitcnt lgkmcnt(12)
    v_cndmask_b32 v{vQ2}, v{vQ2}, 0, s[{sUP}:{sUP+1}]
    v_cndmask_b32 v{vQ2+1}, v{vQ2+1}, 0, s[{sUP}:{sUP+1}]
    s_waitcnt lgkmcnt(10)
    s_cmp_eq_u32 s{sRB}, 0
    """)
    QK(0, 0)
    k("s_cbranch_scc1 L_nofar")
    k("s_waitcnt lgkmcnt(8)")
    QK(1, 1)
    k("L_far_done:")
    LK(1, 0)
    wo_opt(0)
    k("s_nop 7")
    s = S[0]
    for i in range(16): k(f"v_bfi_b32 v{s+i}, v{MK+i}, v{s+i}, v{S[1]+i}")
    k(f"v_max3_f32 v25, v{s}, v{s+1}, v{s+2}")
    k(f"v_max3_f32 v26, v{s+3}, v{s+4}, v{s+5}")
    k(f"v_max3_f32 v25, v25, v{s+6}, v{s+7}")
    k(f"v_max3_f32 v26, v26, v{s+8}, v{s+9}")
    k(f"v_max3_f32 v25, v25, v{s+10}, v{s+11}")
    k(f"v_max3_f32 v26, v26, v{s+12}, v{s+13}")
    k(f"v_max3_f32 v25, v25, v{s+14}, v{s+15}")
    k(f"""
    v_max_f32 v25, v25, v26
    v_mov_b32 v26, v25
    s_nop 1
    v_permlane32_swap_b32 v25, v26
    v_max_f32 v25, v25, v26
    v_and_b32 v25, 0xffff0000, v25
    v_lshrrev_b32 v26, 16, v25
    v_xor_b32 v26, 0x8000, v26
    v_cndmask_b32 v{vQ2}, v{vQ2}, v26, s[{sUP}:{sUP+1}]
    """)
    astamp(5)
    for i in range(4): k(f"v_sub_f32 v{s+i}, v{s+i}, v25")
    k("s_waitcnt lgkmcnt(0)")
    QK(0, 1)
    LK(2, 1)
    for i in range(4, 16): k(f"v_sub_f32 v{s+i}, v{s+i}, v25")
    EXP(0, 0, 8)
    CVT(0, 0, 4)
    for j in range(4): k(f"v_and_b32 v{PD+j}, v{MP+j}, v{P+j}")
    for j in range(4): k(f"v_xor_b32 v{P+j}, v{PD+j}, v{P+j}")
    EXP(0, 8, 10)
    PV(0, 0, PD, first=True)
    EXP(0, 10, 13)
    k(f"s_cmp_eq_u32 s{sRB}, 0\ns_cbranch_scc1 L_nofar1")
    PV(1, 0)
    k("L_nofar1:")
    EXP(0, 13, 16)
    k("s_nop 0")
    CVT(0, 4, 8)
    for j in range(4, 8): k(f"v_and_b32 v{PD+j}, v{MP+j}, v{P+j}")
    for j in range(4, 8): k(f"v_xor_b32 v{P+j}, v{PD+j}, v{P+j}")
    PV(0, 1, PD)
    k(f"s_cbranch_scc1 L_nofar2")
    PV(1, 1)
    k("L_nofar2:")
    LV(1, 0)
    k(f"s_cmp_eq_u32 s{sNT}, 0\ns_cbranch_scc1 L_worest1")
    astamp(1)
    for i in range(7):
        if i == 2: astamp(2)
        if i == 4: astamp(3)
        if i == 6: astamp(14)
        cur = (i + 1) & 1; nxt = i & 1
        setpr(i + 1)
        if i < 6:
            k("s_waitcnt lgkmcnt(4)")
            QK((i + 1) & 1, nxt)
        if i < 5: LK(i + 3, i & 1)
        if i < 4: wo_opt(i + 1)
        EXP(cur, 0, 8)
        CVT(cur, 0, 4)
        EXP(cur, 8, 10)
        k(f"s_waitcnt lgkmcnt({2 if i < 5 else 0})")
        PV(i & 1, 0)
        EXP(cur, 10, 16)
        k("s_nop 0")
        CVT(cur, 4, 8)
        if i < 6: LV(i + 2, (i + 1) & 1)
        else: k("s_nop 1")
        PV(i & 1, 1)
        if i < 6:
            k(f"s_cmp_eq_u32 s{sNT}, {i+1}")
            k(f"s_cbranch_scc1 {'L_worest%d' % (i+2) if i < 3 else 'L_p2_done'}")
    k("L_p2_done:")
    if PRS: k("s_setprio 0" if not opts.get("prend") else f"s_setprio {opts['prend']}")
    astamp(15)
    k(f"""
    s_lshl_b32 s{sT2}, s{sRB}, 5
    s_and_b32 s{sT3}, s{sWAVE}, 3
    s_add_u32 s{sT2}, s{sT2}, s{sT3}
    s_lshl_b32 s{sT2}, s{sT2}, 1
    s_add_u32 s{sT2}, s{sT2}, s{sROLE}
    s_lshl_b32 s{sT2}, s{sT2}, 7
    s_add_u32 s{sFL}, s{sT2}, {CN2_OFF}
    v_mov_b32 v27, {hex(f2u(2.0**60))}
    v_mov_b32 v30, {hex(f2u(2.0**-60))}
    v_mov_b32 v28, 1
    v_lshlrev_b32 v29, 10, v0
    s_nop 0
    v_mov_b32 v25, v{OA+8}
    v_mov_b32 v26, v{OA+8}
    s_nop 1
    v_permlane32_swap_b32 v25, v26
    v_cmp_nlt_f32 vcc, v26, v27
    v_cmp_ngt_f32 s[{sT0}:{sT0+1}], v26, v30
    s_or_b64 vcc, vcc, s[{sT0}:{sT0+1}]
    s_cbranch_vccnz L_slow
    L_p2_norm:
    v_rcp_f32 v26, v26
    s_nop 0
    """)
    for i in range(12): k(f"v_mul_f32 v{OA+i}, v{OA+i}, v26")
    k(f"""
    v_cvt_pk_bf16_f32 v{P}, v{OA}, v{OA+1}
    v_cvt_pk_bf16_f32 v{P+1}, v{OA+2}, v{OA+3}
    v_cvt_pk_bf16_f32 v{P+2}, v{OA+4}, v{OA+5}
    v_cvt_pk_bf16_f32 v{P+3}, v{OA+6}, v{OA+7}
    v_cvt_pk_bf16_f32 v{P+4}, v{OA+8}, v{OA+9}
    v_cvt_pk_bf16_f32 v{P+5}, v{OA+10}, v{OA+11}
    v_permlane32_swap_b32 v{P}, v{P+2}
    v_permlane32_swap_b32 v{P+1}, v{P+3}
    buffer_store_dwordx4 v[{P}:{P+3}], v{vOA}, s[{sWS}:{sWS+3}], 0 offen sc1
    s_mov_b32 exec_hi, 0
    buffer_store_dwordx2 v[{P+4}:{P+5}], v{vOH}, s[{sWS}:{sWS+3}], 0 offen sc1
    """)
    stamp(8)
    k(f"""
    s_movk_i32 exec_lo, 0xff
    s_waitcnt vmcnt(0)
    buffer_atomic_add v28, v29, s[{sWS}:{sWS+3}], s{sFL} offen sc1
    """)
    stamp(9)
    k(f"""
    s_cmp_eq_u32 s{sROLE}, 1
    s_cbranch_scc1 L_fin
    s_mov_b32 exec_lo, 1
    ds_add_u32 v{vCN}, v28
    s_mov_b64 exec, -1
    v_mov_b32 v12, v{vCN}
    s_setprio 0
    """)

    NPRE = 7
    B3 = 16
    A3 = 96
    C3 = 236
    srd(sOUT, 10, 2621440)
    k(f"""
    v_lshrrev_b32 v2, 2, v0            ; 4g + r
    v_mul_u32_u24 v2, 160, v2
    v_and_b32 v3, 3, v0
    v_lshl_add_u32 v2, v3, 3, v2       ; steps 0..9
    v_add_u32 v3, {10*5120}, v2        ; steps 10..19
    v_lshrrev_b32 v4, 4, v0
    v_and_b32 v5, 15, v0
    v_lshlrev_b32 v6, 15, v4
    v_lshl_add_u32 v6, v5, 4, v6
    s_and_b32 s{sT1}, s{sJ}, 3
    s_lshr_b32 s{sT3}, s{sWAVE}, 1
    s_lshl_b32 s{sT2}, s{sT3}, 2
    s_add_u32 s{sT1}, s{sT1}, s{sT2}
    s_lshl_b32 s{sT0}, s{sXCD}, 3
    s_add_u32 s{sT0}, s{sT0}, s{sT1}     ; q tile
    s_lshl_b32 s{sT2}, s{sXCD}, 5
    s_add_u32 s{sT2}, s{sT2}, s{sJ}
    s_lshl_b32 s{sT2}, s{sT2}, 1
    s_add_u32 s{sT2}, s{sT2}, s{sT3}
    s_lshl_b32 s{sT2}, s{sT2}, 7
    s_add_u32 s{sT2}, s{sT2}, {CN2_OFF}
    v_mov_b32 v10, s{sT2}
    s_lshl_b32 s{sT0}, s{sT0}, 5
    s_and_b32 s{sT1}, s{sWAVE}, 1
    s_lshl_b32 s{sT1}, s{sT1}, 4
    s_add_u32 s{sT0}, s{sT0}, s{sT1}     ; row0
    s_lshl_b32 s{sT1}, s{sT0}, 4
    s_add_u32 s{sT1}, s{sT1}, {O_OFF}
    v_add_u32 v7, s{sT0}, v5
    v_mul_u32_u24 v7, 1280, v7
    s_mul_i32 s{sT2}, s{sRB}, 160
    v_add_u32 v7, s{sT2}, v7
    v_lshl_add_u32 v9, v4, 3, v7
    v_and_b32 v11, 1, v4
    v_lshl_add_u32 v7, v11, 5, v7
    v_lshrrev_b32 v11, 1, v4
    v_lshl_add_u32 v7, v11, 4, v7
    """)
    lwait("L_cwo", 11, 12, 0, 4)
    def LA(ks):
        base = A3 + (ks % NPRE) * 20
        va = 2 if ks < 10 else 3
        o = (ks % 10) * 5120
        for tl in range(5):
            for t in range(2):
                a = base + tl * 4 + 2 * t
                k(f"ds_read_b64_tr_b16 v[{a}:{a+1}], v{va} offset:{o + t*16*160 + tl*32}")
    for ks in range(NPRE):
        LA(ks)
        k("s_waitcnt lgkmcnt(5)")
    k("s_mov_b64 exec, 1")
    stamp(4, 0)
    gpoll("L_poll2", 11, 10, 32)
    k("s_mov_b64 exec, -1")
    stamp(11)
    for ks in range(20):
        k(f"buffer_load_dwordx4 v[{B3+4*ks}:{B3+4*ks+3}], v6, s[{sWS}:{sWS+3}], s{sT1} offen sc1")
        if ks < 19: k(f"s_add_u32 s{sT1}, s{sT1}, {4*32768}")
    for ks in range(20):
        lg = 5 if (ks >= 1 and ks - 1 + NPRE < 20) else 0
        k(f"s_waitcnt vmcnt({19-ks}) lgkmcnt({lg})")
        if ks == 0: stamp(10)
        base = A3 + (ks % NPRE) * 20
        for tl in range(5):
            a = base + tl * 4; c = C3 + tl * 4; b = B3 + 4 * ks
            cs = "0" if ks == 0 else f"v[{c}:{c+3}]"
            k(f"v_mfma_f32_16x16x32_bf16 v[{c}:{c+3}], v[{a}:{a+3}], v[{b}:{b+3}], {cs}")
        if ks + NPRE < 20: LA(ks + NPRE)
    stamp(12)
    k("s_nop 7")
    for tl in range(5):
        c = C3 + tl * 4
        q = 16 + (tl >> 1) * 4 + (tl & 1) * 2
        k(f"v_cvt_pk_bf16_f32 v{q}, v{c}, v{c+1}")
        k(f"v_cvt_pk_bf16_f32 v{q+1}, v{c+2}, v{c+3}")
    k(f"""
    v_permlane16_swap_b32 v16, v18
    v_permlane16_swap_b32 v17, v19
    v_permlane16_swap_b32 v20, v22
    v_permlane16_swap_b32 v21, v23
    buffer_store_dwordx4 v[16:19], v7, s[{sOUT}:{sOUT+3}], 0 offen
    buffer_store_dwordx4 v[20:23], v7, s[{sOUT}:{sOUT+3}], 0 offen offset:64
    buffer_store_dwordx2 v[24:25], v9, s[{sOUT}:{sOUT+3}], 0 offen offset:128
    """)
    k("L_fin:")
    if "padat" in opts:
        k(f"""
        s_waitcnt lgkmcnt(0)
        s_cmp_eq_u32 s94, 0
        s_cbranch_scc1 L_nopad
        L_pad:
        s_memrealtime s[92:93]
        s_waitcnt lgkmcnt(0)
        s_sub_u32 s92, s92, s94
        s_cmp_lt_u32 s92, 3000
        s_cbranch_scc1 L_pad
        L_nopad:
        """)
    if stamps:
        SW = opts.get("sw", 0)
        k(f"""
        s_mov_b64 exec, -1
        s_waitcnt vmcnt(0)
        s_mem{'' if opts.get('cyc') else 'real'}time s[{sST+26}:{sST+27}]
        s_and_b32 s{sT0}, s{sWAVE}, 3
        s_cmp_lg_u32 s{sT0}, {SW}
        s_cbranch_scc1 L_end
        s_waitcnt lgkmcnt(0)
        s_lshl_b32 s{sT0}, s2, 1
        s_lshr_b32 s{sT1}, s{sWAVE}, 2
        s_add_u32 s{sT0}, s{sT0}, s{sT1}
        s_lshl_b32 s{sT0}, s{sT0}, 6
        s_add_u32 s{sT0}, s{sT0}, {STAMP_OFF}
        v_mov_b32 v1, 0
        """)
        for i in range(16): k(f"v_mov_b32 v{4+i}, s{sST+2*i}")
        for i in range(4): k(f"buffer_store_dwordx4 v[{4+4*i}:{7+4*i}], v1, s[{sWS}:{sWS+3}], s{sT0} offen offset:{16*i}")
    k("L_end:")
    k("s_endpgm")

    k("L_nofar:")
    for i in range(16): k(f"v_mov_b32 v{S[1]+i}, {hex(NEG)}")
    k("s_branch L_far_done")
    for g in range(1, 5):
        k(f"L_worest{g}:")
        k(f"s_cmp_eq_u32 s{sROLE}, 1\ns_cbranch_scc1 L_p2_done")
        wo_group(g)
    k("s_branch L_p2_done")

    k("L_slow:")
    s = S[0]
    k(f"""
    v_cndmask_b32 v{vQ2}, v{vQ2}, 0, s[{sUP}:{sUP+1}]
    v_mov_b32 v25, 0xff800000
    v_mov_b32 v27, {hex(NEG)}
    s_mov_b32 s{sT2}, 0               ; pass
    s_add_u32 s{sT4}, s{sNT}, 1
    s_cmp_lg_u32 s{sRB}, 0
    s_cselect_b32 s{sT4}, 9, s{sT4}     ; tiles
    """)
    for i in range(16): k(f"v_mov_b32 v{OA+i}, 0")
    k(f"""
    L_slow_pass:
    s_mov_b32 s{sCNT}, 0
    L_slow_tile:
    s_sub_u32 s{sT3}, 8, s{sCNT}
    s_lshl_b32 s{sT3}, s{sT3}, 9
    v_add_u32 v10, s{sT3}, v{vKA1}
    v_add_u32 v11, s{sT3}, v{vKA2}
    v_add_u32 v12, s{sT3}, v{vVA0}
    v_add_u32 v13, s{sT3}, v{vVA1}
    ds_read_b128 v[{KF[0]}:{KF[0]+3}], v10
    ds_read_b64 v[{KF[0]+4}:{KF[0]+5}], v11
    ds_read_b64_tr_b16 v[{VF[0]}:{VF[0]+1}], v12
    ds_read_b64_tr_b16 v[{VF[0]+2}:{VF[0]+3}], v13
    ds_read_b64_tr_b16 v[{VF[0]+4}:{VF[0]+5}], v12 offset:256
    ds_read_b64_tr_b16 v[{VF[0]+6}:{VF[0]+7}], v13 offset:256
    s_waitcnt lgkmcnt(0)
    """)
    QK(0, 0)
    k(f"""
    s_nop 15
    s_cmp_lg_u32 s{sCNT}, 0
    s_cbranch_scc1 L_slow_nd
    """)
    for i in range(16): k(f"v_bfi_b32 v{s+i}, v{MK+i}, v{s+i}, v27")
    k(f"""
    L_slow_nd:
    s_cmp_lg_u32 s{sCNT}, 8
    s_cbranch_scc1 L_slow_nf
    """)
    for i in range(16): k(f"v_bfi_b32 v{s+i}, v{MK+i}, v27, v{s+i}")
    k(f"""
    L_slow_nf:
    s_cmp_lg_u32 s{sT2}, 0
    s_cbranch_scc1 L_slow_p2
    """)
    for i in range(16): k(f"v_max_f32 v25, v25, v{s+i}")
    k("s_branch L_slow_next")
    k("L_slow_p2:")
    for i in range(16): k(f"v_sub_f32 v{s+i}, v{s+i}, v25")
    EXP(0, 0, 16)
    k("s_nop 0")
    CVT(0, 0, 8)
    k("s_nop 1")
    PV(0, 0); PV(0, 1)
    k(f"""
    s_nop 15
    L_slow_next:
    s_add_u32 s{sCNT}, s{sCNT}, 1
    s_cmp_lt_u32 s{sCNT}, s{sT4}
    s_cbranch_scc1 L_slow_tile
    s_cmp_lg_u32 s{sT2}, 0
    s_cbranch_scc1 L_slow_done
    v_mov_b32 v26, v25
    s_nop 1
    v_permlane32_swap_b32 v25, v26
    v_max_f32 v25, v25, v26
    s_mov_b32 s{sT2}, 1
    s_branch L_slow_pass
    L_slow_done:
    v_mov_b32 v25, v{OA+8}
    v_mov_b32 v26, v{OA+8}
    s_nop 1
    v_permlane32_swap_b32 v25, v26
    s_branch L_p2_norm
    """)
    k("L_code_end:")
    return emit([k], single=True)

if __name__ == "__main__":
    out = sys.argv[1]
    opts = {}
    for a in sys.argv[2:]:
        kx, v = a.split("=")
        opts[kx] = [int(x) for x in v.split(',')] if kx == 'only' else int(v)
    open(out, "w").write(gen(opts))
```

```python
import sys, math, struct
from asmlib import *

def f2u(x): return struct.unpack("<I", struct.pack("<f", x))[0]

QKV_OFF = 0
O_OFF   = 8 << 20
CN1_OFF = 12 << 20
CN2_OFF = CN1_OFF + 768 * 128
STAMP_OFF = 13 << 20
WS_SIZE = 14 << 20
SLOT = 28672
NSLOT = 4
LDS_WO = 0
LDS_K = 102400
LDS_V = LDS_K + 24576
LDS_Q = LDS_V + 24576
LDS_TOTAL = 163840
QSCALE = (20 ** -0.5) * math.log2(math.e)
SPIN_MAX = 400000
NEG = 0xf149f2ca

def gen(opts):
    DEPTH = opts.get("depth", 3)
    NCH = 12
    MAP = ""
    if opts.get("map") == 1:
        MAP = "s_lshr_b32 s40, s38, 1\ns_and_b32 s39, s38, 1\ns_lshl_b32 s46, s37, 1\ns_add_u32 s39, s39, s46"
    if opts.get("map") == 2:
        MAP = ("s_and_b32 s46, s37, 1\ns_lshl_b32 s46, s46, 3\ns_and_b32 s39, s38, 7\ns_lshr_b32 s48, s37, 1\ns_lshr_b32 s49, s38, 3\n"
               "s_lshl_b32 s40, s48, 2\ns_add_u32 s40, s40, s49\ns_sub_u32 s40, s40, s48\n"
               "s_sub_u32 s50, s38, 24\ns_mul_i32 s51, s48, 6\ns_add_u32 s50, s50, s51\n"
               "s_lshr_b32 s51, s50, 3\ns_add_u32 s51, s51, 12\ns_and_b32 s50, s50, 7\n"
               "s_cmp_ge_u32 s38, 24\ns_cselect_b32 s40, s51, s40\ns_cselect_b32 s39, s50, s39\ns_add_u32 s39, s39, s46\n"
               "s_cmp_ge_u32 s38, 30\ns_cselect_b32 s40, 15, s40")
    CODEPF = ""
    if opts.get("codepf"):
        CODEPF = "s_getpc_b64 s[46:47]\nv_lshlrev_b32 v20, 6, v0\ns_lshl_b32 s48, s36, 12\nv_add_u32 v20, s48, v20\nglobal_load_dword v21, v20, s[46:47]\ns_waitcnt vmcnt(0)"
    stamps = opts.get("stamps", False)
    k = K("standalone__sliding_block__prompt_kernel", (256, 1, 1), (512, 1, 1), LDS_TOTAL, vgpr=256, sgpr=102)

    sX, sW, sWO, sOUT, sWS = 16, 20, 24, 28, 32
    sWAVE, sXCD, sJ, sR1, sCT = 36, 37, 38, 39, 40
    sH, sRB, sODD, sTAG = 41, 42, 43, 44
    sLW = 45
    sT0, sT1, sT2, sT3, sT4, sT5 = 46, 47, 48, 49, 50, 51
    sCNT, sFL = 52, 53
    sUP = 54
    sEX = 56
    sNT = 58
    sB0 = 59
    sSTO = 60
    sROLE = 61
    sSC = 62
    sST = 64
    sUM, sNX, sWB = 98, 99, 100
    def astamp(idx):
        if stamps and opts.get("attst"): k(f"s_mem{'' if opts.get('cyc') else 'real'}time s[{sST+2*idx}:{sST+2*idx+1}]")
    def stamp(idx, role=None):
        if opts.get("padat") == idx and (role is None or role == opts.get("padrole", role)):
            k("s_memrealtime s[94:95]")
        if opts.get("attst") and idx in (1, 2, 3, 14, 15, 5, 6): return
        if stamps and (idx in opts.get("only", range(16)) or idx == 0):
            k(f"s_mem{'' if opts.get('cyc') else 'real'}time s[{sST+2*idx}:{sST+2*idx+1}]")
    def srd(d, lo, size):
        k(f"s_mov_b32 s{d}, s{lo}\ns_mov_b32 s{d+1}, s{lo+1}\ns_mov_b32 s{d+2}, {size}\ns_mov_b32 s{d+3}, 0x20000")
    def readychk(lab, vreg, vz, issue_first):
        k(f"s_mov_b32 s{sCNT}, 0")
        if issue_first: k(f"global_load_dword v{vreg}, v{vz}, s[12:13] sc1")
        k(f"""
        {lab}:
        s_waitcnt vmcnt(0)
        v_readfirstlane_b32 s{sTAG}, v{vreg}
        s_add_u32 s{sCNT}, s{sCNT}, 1
        s_cmp_ge_u32 s{sCNT}, {SPIN_MAX}
        s_cbranch_scc1 {lab}_ok
        s_cmp_ge_u32 s{sTAG}, 64
        s_cbranch_scc1 {lab}_ok
        global_load_dword v{vreg}, v{vz}, s[12:13] sc1
        s_branch {lab}
        {lab}_ok:
        """)
    def gpoll(lab, vreg, vaddr, target):
        k(f"""
        s_mov_b32 s{sCNT}, 0
        {lab}:
        {f"buffer_load_dword v{vreg}, v{vaddr}, s[{sWS}:{sWS+3}], 0 offen sc1" if opts.get("ldpoll") else f"v_mov_b32 v{vreg}, 0"}
        {"" if opts.get("ldpoll") else f"buffer_atomic_add v{vreg}, v{vaddr}, s[{sWS}:{sWS+3}], 0 offen sc0 sc1"}
        s_add_u32 s{sCNT}, s{sCNT}, 1
        s_cmp_ge_u32 s{sCNT}, {SPIN_MAX}
        s_waitcnt vmcnt(0)
        s_cbranch_scc1 {lab}_out
        v_cmp_gt_u32 vcc, {target}, v{vreg}
        s_cbranch_vccnz {lab}
        {lab}_out:
        """)
    def lwait(lab, vreg, vaddr, off, target):
        k(f"""
        {lab}:
        ds_read_b32 v{vreg}, v{vaddr} offset:{off}
        s_waitcnt lgkmcnt(0)
        v_cmp_gt_u32 vcc, {target}, v{vreg}
        s_cbranch_vccnz {lab}
        """)

    if stamps:
        for i in range(16): k(f"s_mov_b64 s[{sST+2*i}:{sST+2*i+1}], 0")
    if "padat" in opts: k("s_mov_b64 s[94:95], 0")
    stamp(0)
    k(f"""
    s_cmp_ge_u32 s2, 256
    s_cbranch_scc1 L_end
    s_load_dwordx8 s[4:11], s[0:1], 0
    s_load_dwordx4 s[12:15], s[0:1], 32
    v_lshrrev_b32 v1, 6, v0
    v_and_b32 v0, 63, v0
    v_readfirstlane_b32 s{sWAVE}, v1
    s_and_b32 s{sXCD}, s2, 7
    s_lshr_b32 s{sJ}, s2, 3
    {"s_xor_b32 s%d, s%d, 4" % (sWAVE, sWAVE) if opts.get("swap") else ""}
    s_and_b32 s{sT0}, s{sXCD}, 3
    s_lshl_b32 s{sT0}, s{sT0}, 2
    s_and_b32 s{sT1}, s{sJ}, 3
    s_lshr_b32 s{sT2}, s{sXCD}, 2
    s_lshr_b32 s{sRB}, s{sJ}, 2
    s_lshl_b32 s{sT3}, s{sT2}, 3
    s_add_u32 s{sCT}, s{sT3}, s{sRB}
    s_lshl_b32 s{sT3}, s{sT2}, 1
    s_add_u32 s{sT3}, s{sT3}, s{sT1}
    s_cmp_ge_u32 s{sJ}, 28
    s_cselect_b32 s{sCT}, 7, s{sCT}
    s_cselect_b32 s{sT3}, s{sT3}, s{sT1}
    s_add_u32 s{sR1}, s{sT0}, s{sT3}
    s_cmp_ge_u32 s{sJ}, 30
    s_cselect_b32 s{sCT}, 15, s{sCT}
    {MAP}
    s_lshl_b32 s{sH}, s{sXCD}, 2
    s_add_u32 s{sH}, s{sH}, s{sT1}
    s_and_b32 s{sODD}, s{sH}, 1
    s_mov_b32 s{sUP}, 0
    s_mov_b32 s{sUP+1}, -1
    """)
    if opts.get("codepf", 1):
        k(f"""
        s_cmp_lt_u32 s{sJ}, 30
        s_cbranch_scc1 L_nopf
        s_getpc_b64 s[{sT2}:{sT2+1}]
        s_lshl_b32 s{sT0}, s{sWAVE}, 12
        v_lshlrev_b32 v2, 6, v0
        v_add_u32 v2, s{sT0}, v2
        v_min_u32 v2, L_code_end - L_nopf, v2
        global_load_dword v255, v2, s[{sT2}:{sT2+1}]
        L_nopf:
        """)
    k(f"""
    s_cmp_lt_u32 s{sWAVE}, 4
    s_cbranch_scc1 L_compute
    """)
    vLX, vLW = 240, 241
    k(f"""
    s_mov_b32 s{sROLE}, 1
    s_sub_u32 s{sT0}, s{sWAVE}, 4
    v_lshrrev_b32 v2, 3, v0
    v_mul_u32_u24 v2, 1280, v2
    s_and_b32 s{sT1}, s{sT0}, 1
    s_lshl_b32 s{sT1}, s{sT1}, 2
    v_lshrrev_b32 v3, 4, v0
    v_add_u32 v4, s{sT1}, v3
    v_and_b32 v5, 7, v0
    v_xor_b32 v4, v4, v5
    v_lshl_add_u32 v2, v4, 4, v2
    s_mul_i32 s{sT2}, s{sR1}, {128*1280}
    s_mul_i32 s{sT3}, s{sT0}, {8*1280}
    s_add_u32 s{sT2}, s{sT2}, s{sT3}
    v_add_u32 v{vLX}, s{sT2}, v2
    v_mul_u32_u24 v4, 3840, v3
    v_lshlrev_b32 v5, 2, v3
    v_and_b32 v6, 15, v0
    v_xor_b32 v5, v5, v6
    v_lshl_add_u32 v3, v5, 4, v4
    s_lshl_b32 s{sT2}, s{sCT}, 8
    s_mul_i32 s{sT3}, s{sT0}, {4*3840}
    s_add_u32 s{sT2}, s{sT2}, s{sT3}
    v_add_u32 v{vLW}, s{sT2}, v3
    s_lshl_b32 s{sLW}, s{sT0}, 10
    s_and_b32 s{sT1}, s{sJ}, 3
    s_add_u32 s{sT1}, s{sT1}, s{sRB}
    s_and_b32 s{sT1}, s{sT1}, {1 if opts.get('rot') else 0}
    s_mul_i32 s96, s{sT1}, {5*64*3840}
    s_mul_i32 s97, s{sT1}, 640
    s_waitcnt lgkmcnt(0)
    """)
    stamp(1)
    srd(sX, 4, 2621440); srd(sW, 6, 2457600)
    k(f"""
    s_cmp_ge_u32 s{sCT}, 15
    s_cbranch_scc1 L_ld_idle
    """)
    cnt = []
    def issue(c):
        slot = ((c + 3) % NSLOT) * SLOT
        n = 0
        if c < 10:
            for t in range(4):
                k(f"s_add_u32 m0, s{sLW}, {slot + t*4096}")
                k(f"s_{'add' if c < 5 else 'sub'}_u32 s{sT5}, {c*64*3840 + t*16*3840}, s96")
                k(f"buffer_load_dwordx4 v{vLW}, s[{sW}:{sW+3}], s{sT5} offen lds"); n += 1
            for t in range(3):
                k(f"s_add_u32 m0, s{sLW}, {slot + 16384 + t*4096}")
                k(f"s_{'add' if c < 5 else 'sub'}_u32 s{sT5}, {c*128 + t*32*1280}, s97")
                k(f"buffer_load_dwordx4 v{vLX}, s[{sX}:{sX+3}], s{sT5} offen lds"); n += 1
        else:
            hf = c - 10
            for p in range(5):
                k(f"s_add_u32 m0, s{sLW}, {slot + p*4096}")
                k(f"s_{'add' if hf == 0 else 'sub'}_u32 s{sT5}, {3*32*1280 + (hf*5+p)*128}, s97")
                k(f"buffer_load_dwordx4 v{vLX}, s[{sX}:{sX+3}], s{sT5} offen lds"); n += 1
        cnt.append(n)
    for c in range(DEPTH):
        issue(c)
        if c == 0: stamp(2)
    stamp(3, 1)
    srd(sWS, 14, WS_SIZE)
    k("s_branch L_prep")
    k("L_ld_idle:")
    srd(sWS, 14, WS_SIZE); srd(sWO, 8, 819200)
    TP = opts.get("tailpf", 0)
    XP = opts.get("xpf", 0)
    k(f"""
    v_lshlrev_b32 v2, 4, v0
    s_mov_b32 m0, s{sLW}
    s_and_b32 s{sT1}, s{sJ}, 1
    s_lshl_b32 s{sT2}, s{sT1}, 3
    s_add_u32 s{sT2}, s{sT2}, s{sXCD}
    """)
    def warm(lab, srd_, n):
        k(f"""
        s_mov_b32 s{sT3}, 0
        {lab}:
        buffer_load_dwordx4 v2, s[{srd_}:{srd_+3}], s{sT0} offen lds
        s_add_u32 s{sT0}, s{sT0}, 4096
        s_add_u32 s{sT3}, s{sT3}, 1
        {"s_cmp_ge_u32 s%d, 819200" % sT0 if srd_ == sWO else ""}
        {"s_cselect_b32 s%d, s%d, s%d" % (sT0, sLW, sT0) if srd_ == sWO else ""}
        s_waitcnt vmcnt(12)
        s_cmp_lt_u32 s{sT3}, {n}
        s_cbranch_scc1 {lab}
        """)
    if TP:
        k(f"s_mul_i32 s{sT0}, s{sT2}, {4*TP*3840}\ns_add_u32 s{sT0}, s{sT0}, {(640-64*TP)*3840}\ns_add_u32 s{sT0}, s{sT0}, s{sLW}")
        warm("L_tpw", sW, (15 * TP + 3) // 4)
    if XP:
        k(f"s_mul_i32 s{sT0}, s{sT2}, {128*1280}\ns_add_u32 s{sT0}, s{sT0}, {96*1280}\ns_add_u32 s{sT0}, s{sT0}, s{sLW}")
        warm("L_tpx", sX, 10)
    k(f"""
    s_mul_i32 s{sT0}, s{sT1}, 409600
    s_mul_i32 s{sT3}, s{sXCD}, {opts.get("wrot", 49152)}
    s_add_u32 s{sT0}, s{sT0}, s{sT3}
    s_add_u32 s{sT0}, s{sT0}, s{sLW}
    """)
    if opts.get("sparse"):
        k(f"""
        v_lshlrev_b32 v2, 7, v0
        s_mul_i32 s{sT0}, s{sT1}, 409600
        s_mul_i32 s{sT3}, s{sXCD}, 49152
        s_add_u32 s{sT0}, s{sT0}, s{sT3}
        s_lshl_b32 s{sT3}, s{sLW}, 3
        s_add_u32 s{sT0}, s{sT0}, s{sT3}
        s_mov_b32 s{sT4}, 0
        L_warm:
        buffer_load_dword v254, v2, s[{sWO}:{sWO+3}], s{sT0} offen {"nt" if opts.get("sparse") == 2 else ""}
        s_add_u32 s{sT0}, s{sT0}, 32768
        s_sub_u32 s{sT5}, s{sT0}, 819200
        s_cmp_ge_u32 s{sT0}, 819200
        s_cselect_b32 s{sT0}, s{sT5}, s{sT0}
        s_add_u32 s{sT4}, s{sT4}, 1
        s_cmp_lt_u32 s{sT4}, {opts.get("nwarm", 13)}
        s_cbranch_scc1 L_warm
        """)
    else:
        warm("L_warm", sWO, opts.get("nwarm", 24))
    k(f"""
    s_waitcnt vmcnt(0)
    s_branch L_prep
    """)

    AREG = 96
    ACCS = [16, 32, 48, 48]
    BR = 64
    PK = 80
    vXb = [[2, 3, 4, 5], [6, 7, 8, 9], [88, 89, 90, 91]]
    vWb = [10, 11, 92]
    vSA, vSB, vTG, vZ0, vFA = 12, 13, 14, 15, 1
    k("L_compute:")
    k(f"""
    s_mov_b32 s{sROLE}, 0
    {"s_setprio 1" if opts.get("swap") == 1 else ""}
    v_and_b32 v16, 31, v0
    v_lshrrev_b32 v17, 5, v0          ; h
    v_bfe_u32 v18, v0, 1, 3
    v_xor_b32 v18, v18, v17           ; y
    v_lshlrev_b32 v19, 7, v16         ; row*128
    """)
    for s in range(4):
        k(f"v_xor_b32 v20, {2*s}, v18\nv_lshl_add_u32 v{vXb[0][s]}, v20, 4, v19")
        k(f"v_add_u32 v{vXb[1][s]}, {2*SLOT}, v{vXb[0][s]}")
    k(f"""
    v_bfe_u32 v20, v0, 2, 2           ; r
    v_lshl_add_u32 v21, v17, 3, v20   ; 8h + r
    v_lshlrev_b32 v21, 8, v21         ; *256
    v_bfe_u32 v22, v0, 4, 1           ; g&1
    v_bfe_u32 v23, v0, 1, 1           ; c>>1
    v_lshl_add_u32 v22, v22, 1, v23
    v_and_b32 v23, 1, v0
    v_lshl_add_u32 v21, v23, 3, v21
    v_lshl_add_u32 v21, v22, 4, v21
    v_xor_b32 v22, s{sWAVE}, v20
    v_lshl_add_u32 v{vWb[0]}, v22, 6, v21
    v_add_u32 v{vWb[1]}, {2*SLOT}, v{vWb[0]}
    v_lshlrev_b32 v{vSA}, 4, v0               ; lane*16
    v_lshlrev_b32 v{vSB}, 4, v16
    v_lshl_add_u32 v{vSB}, v17, 15, v{vSB}    ; (l&31)*16 + h*32768
    v_mov_b32 v{vZ0}, 0
    s_lshl_b32 s{sT0}, s{sCT}, 2
    s_add_u32 s{sT0}, s{sT0}, s{sWAVE}
    s_lshl_b32 s{sSTO}, s{sT0}, 17
    s_lshl_b32 s{sT1}, s{sR1}, 11
    s_add_u32 s{sSTO}, s{sSTO}, s{sT1}
    ; consumers of this wave's 32 columns: ty = cg/20, c = cg%20 ; heads floor(8c/5) .. floor((8c+12)/5)-1 ; row blocks r>>1 (+1 for K,V)
    s_mul_i32 s{sT1}, s{sT0}, 205
    s_lshr_b32 s{sT1}, s{sT1}, 12             ; ty
    s_mul_i32 s{sT2}, s{sT1}, 20
    s_sub_u32 s{sT2}, s{sT0}, s{sT2}          ; c
    s_mul_i32 s{sT3}, s{sT2}, 1640
    s_lshr_b32 s{sT3}, s{sT3}, 10             ; floor(8c/5)
    s_lshl_b32 s{sT2}, s{sT2}, 3
    s_add_u32 s{sT2}, s{sT2}, 12
    s_mul_i32 s{sT2}, s{sT2}, 205
    s_lshr_b32 s{sT2}, s{sT2}, 10             ; floor((8c+12)/5)
    v_and_b32 v20, 3, v0
    v_add_u32 v20, s{sT3}, v20                ; head
    v_lshrrev_b32 v21, 2, v0                  ; Rsel
    s_lshr_b32 s{sT3}, s{sR1}, 1
    s_min_u32 s{sT1}, s{sT1}, 1
    s_add_u32 s{sT1}, s{sT1}, s{sT3}
    s_min_u32 s{sT1}, s{sT1}, 7
    v_add_u32 v21, s{sT3}, v21
    v_cmp_gt_u32 vcc, s{sT2}, v20
    v_cmp_ge_u32 s[{sT4}:{sT4+1}], s{sT1}, v21
    s_and_b64 s[{sEX}:{sEX+1}], vcc, s[{sT4}:{sT4+1}]
    v_lshl_add_u32 v20, v21, 5, v20
    v_mul_u32_u24 v{vFA}, 384, v20
    v_add_u32 v{vFA}, {CN1_OFF}, v{vFA}
    s_cmp_lt_u32 s{sCT}, 5
    s_cselect_b32 s{sSC}, {hex(f2u(QSCALE))}, 1.0
    s_waitcnt lgkmcnt(0)
    """)
    MP_ = opts.get("mpf", 0)
    if MP_:
        W0 = opts.get("mpw0", 192)
        wper = ((640 - W0) * 3840 // 256 + 127) // 128 * 128
        srd(sX, 4, 2621440); srd(sW, 6, 2457600)
        k(f"""
        s_lshl_b32 s{sT0}, s{sWAVE}, 10
        s_mul_i32 s{sT1}, s2, 10240
        s_add_u32 s{sT1}, s{sT1}, s{sT0}
        s_mul_i32 s{sT2}, s2, {wper}
        s_add_u32 s{sT2}, s{sT2}, {W0*3840}
        s_add_u32 s{sT2}, s{sT2}, s{sT0}
        """)
        if MP_ & 2:
            for i in range((wper + 4095) // 4096):
                k(f"buffer_load_dwordx4 v[64:67], v{vSA}, s[{sW}:{sW+3}], s{sT2} offen\ns_add_u32 s{sT2}, s{sT2}, 4096")
        if MP_ & 1:
            for i in range(3):
                if i == 2: k(f"s_cmp_ge_u32 s{sWAVE}, 2\ns_cbranch_scc1 L_mpf_done")
                k(f"buffer_load_dwordx4 v[64:67], v{vSA}, s[{sX}:{sX+3}], s{sT1} offen\ns_add_u32 s{sT1}, s{sT1}, 4096")
        k("L_mpf_done:")
    srd(sWS, 14, WS_SIZE)
    TL = opts.get("tlb", 0)
    if TL:
        n = (13 << 20) >> TL
        srd(sOUT, 10, 2621440); srd(sWO, 8, 819200)
        k(f"""
        s_lshl_b32 s{sT0}, s{sWAVE}, 6
        v_add_u32 v20, s{sT0}, v0
        v_lshlrev_b32 v21, {TL}, v20
        s_lshl_b32 s{sT1}, s2, 7
        s_add_u32 s{sT0}, s{sT1}, 0x40000
        v_add_u32 v21, s{sT0}, v21
        v_cmp_gt_u32 vcc, {n}, v20
        s_and_saveexec_b64 s[{sT2}:{sT2+1}], vcc
        s_cbranch_execz L_tl1
        buffer_atomic_add v{vZ0}, v21, s[{sWS}:{sWS+3}], 0 offen sc1
        L_tl1:
        s_mov_b64 exec, -1
        s_cmp_lg_u32 s{sWAVE}, 3
        s_cbranch_scc1 L_tl2
        v_lshlrev_b32 v21, {max(TL, 16)}, v0
        s_mov_b64 exec, 3
        buffer_load_dword v254, v21, s[{sOUT}:{sOUT+3}], s{sT1} offen
        buffer_load_dword v253, v21, s[{sWO}:{sWO+3}], s{sT1} offen
        s_mov_b64 exec, -1
        L_tl2:
        """)
    k(f"""
    s_cmp_lt_u32 s{sCT}, 15
    s_cbranch_scc1 L_p1_go
    s_and_b32 s{sT0}, s{sJ}, 1
    s_lshl_b32 s{sT0}, s{sT0}, 3
    s_add_u32 s{sT0}, s{sT0}, s{sXCD}
    s_lshl_b32 s{sT0}, s{sT0}, 2
    s_add_u32 s{sT0}, s{sT0}, s{sWAVE}
    s_mul_i32 s{sT0}, s{sT0}, {20*128}
    s_add_u32 s{sT0}, s{sT0}, {CN1_OFF}
    v_lshlrev_b32 v20, 7, v0
    v_mov_b32 v21, 1
    s_mov_b64 exec, 0xfffff
    buffer_store_dword v{vZ0}, v20, s[{sWS}:{sWS+3}], s{sT0} offen sc1
    s_mov_b64 exec, 1
    s_waitcnt vmcnt(0)
    global_atomic_add v{vZ0}, v21, s[12:13] sc1
    s_mov_b64 exec, -1
    s_branch L_prep
    L_p1_go:
    """)
    def rdA(c, s):
        sl = (c + 3) % NSLOT
        o = (sl & 1) * SLOT + s * 16 * 256
        va = vWb[sl >> 1]
        a = AREG + 4 * (4 * c + s)
        k(f"ds_read_b64_tr_b16 v[{a}:{a+1}], v{va} offset:{o}")
        k(f"ds_read_b64_tr_b16 v[{a+2}:{a+3}], v{va} offset:{o + 4*256}")
    def rdB(c, s, off, f):
        sl = (c + 3) % NSLOT
        b = BR + 4 * f
        k(f"ds_read_b128 v[{b}:{b+3}], v{vXb[sl >> 1][s]} offset:{(sl & 1) * SLOT + off}")
    def mf(acc, ks, f, first):
        a = AREG + 4 * ks; b = BR + 4 * f
        cs = "0" if first else f"v[{acc}:{acc+15}]"
        k(f"v_mfma_f32_32x32x16_bf16 v[{acc}:{acc+15}], v[{a}:{a+3}], v[{b}:{b+3}], {cs}")
    fr = lambda s, g: 3 * (s & 1) + g
    def rd(c, s):
        rdA(c, s)
        for g in range(3): rdB(c, s, 16384 + g * 4096, fr(s, g))
    def mf3(c, s):
        for g in range(3): mf(ACCS[g], 4*c+s, fr(s, g), c == 0 and s == 0)
    PIPE = opts.get("pipe", 1)
    if PIPE:
        if MP_: k("s_waitcnt vmcnt(0)")
        k("s_barrier      ; B_0")
        stamp(1)
        rd(0, 0); rd(0, 1)
        for c in range(10):
            if c == 4: k(f"global_load_dword v{vTG}, v{vZ0}, s[12:13] sc1")
            if c == 8:
                readychk("L_rdy1", vTG, vZ0, False)
                k(f"v_mov_b32 v{vTG}, 1")
            for s in range(2):
                k("s_waitcnt lgkmcnt(5)")
                mf3(c, s); rd(c, s + 2)
            k("s_waitcnt lgkmcnt(5)")
            mf3(c, 2)
            k("s_waitcnt lgkmcnt(0)")
            k(f"s_barrier      ; B_{c+1}")
            if c < 9: rd(c + 1, 0)
            else:
                for i in range(3):
                    rdB(10, i, 0, i)
            mf3(c, 3)
            if c < 9: rd(c + 1, 1)
    else:
      for c in range(10):
        k(f"s_barrier      ; B_{c}")
        if c == 0: stamp(1)
        rd(c, 0); rd(c, 1)
        if c == 5: k(f"global_load_dword v{vTG}, v{vZ0}, s[12:13] sc1")
        if c == 9:
            readychk("L_rdy1", vTG, vZ0, False)
            k(f"v_mov_b32 v{vTG}, 1")
        for s in range(4):
            k(f"s_waitcnt lgkmcnt({5 if s < 3 else 0})")
            mf3(c, s)
            if s < 2: rd(c, s + 2)
    stamp(2)
    def ep_pair(c0, c1, q, vaddr, off_s):
        return [f"v_cvt_pk_bf16_f32 v{q}, v{c0}, v{c0+1}",
                f"v_cvt_pk_bf16_f32 v{q+1}, v{c0+2}, v{c0+3}",
                f"v_cvt_pk_bf16_f32 v{q+2}, v{c1}, v{c1+1}",
                f"v_cvt_pk_bf16_f32 v{q+3}, v{c1+2}, v{c1+3}",
                f"s_add_u32 s{sT5}, s{sSTO}, {off_s}",
                "s_nop 0",
                f"v_permlane32_swap_b32 v{q}, v{q+2}",
                f"v_permlane32_swap_b32 v{q+1}, v{q+3}",
                f"buffer_store_dwordx4 v[{q}:{q+3}], v{vaddr}, s[{sWS}:{sWS+3}], s{sT5} offen sc1"]
    def mulq(c):
        return [f"v_mul_f32 v{c+i}, s{sSC}, v{c+i}" for i in range(4)]
    def ep_part0():
        o = []
        for b in range(4):
            o += mulq(ACCS[0] + 4*b) + mulq(ACCS[1] + 4*b)
            o += ep_pair(ACCS[0] + 4*b, ACCS[1] + 4*b, PK + 4*(b & 1), vSA, b * 32768)
        return o
    def ep_part(g):
        acc = ACCS[g]
        o = []
        for b in (0, 2):
            o += mulq(acc + 4*b) + mulq(acc + 4*b + 4)
            o += ep_pair(acc + 4*b, acc + 4*b + 4, PK + 2*b, vSB, b * 32768 + g * 512)
        return o
    def flag(st, vm):
        return [f"s_mov_b64 exec, s[{sEX}:{sEX+1}]", f"s_waitcnt vmcnt({vm})",
                f"buffer_atomic_add v{vTG}, v{vFA}, s[{sWS}:{sWS+3}], 0 offen offset:{st*128} sc1", "s_mov_b64 exec, -1"]
    steps = []
    for c in range(10, 12):
        hf = c - 10
        for p in range(5):
            for s in range(4):
                steps.append((c, hf * 20 + p * 4 + s, s, p * 4096))
    LOOK = 3
    PER = opts.get("per", 3)
    fill = {}
    def spread(instrs, start, per):
        i = start
        while instrs:
            fill.setdefault(i, []).extend(instrs[:per]); instrs = instrs[per:]; i += 1
        return i
    G2T = 88 if NSLOT == 4 else None
    def g2_conv():
        o = []
        for b in range(4):
            c = ACCS[2] + 4 * b
            o += mulq(c) + [f"v_cvt_pk_bf16_f32 v{G2T+2*b}, v{c}, v{c+1}", f"v_cvt_pk_bf16_f32 v{G2T+2*b+1}, v{c+2}, v{c+3}"]
        return o
    def g2_store():
        o = []
        for b in (0, 2):
            q = G2T + 2 * b
            o += [f"s_add_u32 s{sT5}, s{sSTO}, {b*32768 + 2*512}", f"v_permlane32_swap_b32 v{q}, v{q+2}", f"v_permlane32_swap_b32 v{q+1}, v{q+3}",
                  f"buffer_store_dwordx4 v[{q}:{q+3}], v{vSB}, s[{sWS}:{sWS+3}], s{sT5} offen sc1"]
        return o
    e0 = spread(g2_store() + ep_part0(), 0, PER)
    FAT = opts.get("fat", 38)
    assert e0 <= FAT
    fill.setdefault(FAT, []).extend(flag(0, 4))
    if not PIPE:
        k("s_barrier      ; B_10")
        for i in range(LOOK):
            c, ks, s, off = steps[i]
            rdB(c, s, off, i % 4)
    k("s_nop 8" if not PIPE else "s_nop 11")
    for ins in g2_conv(): k(ins)
    for i, (c, ks, s, off) in enumerate(steps):
        n = i + LOOK
        if n < 40:
            cn, ksn, sn, offn = steps[n]
            if cn != steps[n - 1][0]: k(f"s_barrier      ; B_{cn}")
            rdB(cn, sn, offn, n % 4)
        k(f"s_waitcnt lgkmcnt({min(LOOK, 39 - i)})")
        mf(ACCS[3], ks, i % 4, ks == 0)
        for ins in fill.get(i, []): k(ins)
        if i == FAT: stamp(6)
    stamp(14, 0)
    k("s_nop 11")
    for ins in ep_part(3): k(ins)
    for ins in flag(1, 3): k(ins)
    stamp(5)

    vKA1, vKA2, vVA0, vVA1 = 2, 3, 4, 5
    vOA, vOH = 6, 7
    vCW, vCN = 8, 9
    vQA1, vQA2 = 10, 11
    vQ1, vQ2 = 16, 20
    MK, MP, PD = 32, 48, 56
    S = [64, 80]
    P = 96
    KF = [104, 112]
    VF = [120, 128]
    OA = 136
    k("L_prep:")
    k(f"""
    v_and_b32 v25, 31, v0              ; q
    v_lshrrev_b32 v26, 5, v0           ; h
    v_lshlrev_b32 v27, 2, v26
    v_sub_u32 v27, v27, v25            ; 4h - q
    """)
    for i in range(16):
        key = 8 * (i >> 2) + (i & 3)
        k(f"v_add_u32 v{MK+i}, {key-1}, v27")
        k(f"v_ashrrev_i32 v{MK+i}, 31, v{MK+i}")
    k(f"s_mov_b32 s{sT1}, 0xffff")
    for j in range(8):
        k(f"v_bfi_b32 v{MP+j}, s{sT1}, v{MK+2*j}, v{MK+2*j+1}")
    k(f"""
    s_cmp_eq_u32 s{sROLE}, 1
    s_cbranch_scc1 L_nof
    s_cmp_ge_u32 s{sCT}, 15
    s_cbranch_scc1 L_nof
    """)
    for ins in flag(2, 1): k(ins)
    stamp(3, 0)
    k(f"""
    L_nof:
    s_lshl_b32 s{sT0}, s{sWAVE}, 9        ; w*512
    v_lshlrev_b32 v27, 4, v25
    v_add_u32 v27, s{sT0}, v27            ; (32w+q)*16
    v_lshl_add_u32 v{vKA1}, v26, 13, v27
    v_add_u32 v{vKA1}, {LDS_K}, v{vKA1}
    s_lshl_b32 s{sT1}, s{sODD}, 3
    s_add_u32 s{sT2}, s{sT1}, {LDS_K+16384}
    v_add_u32 v{vKA2}, s{sT2}, v27
    s_sub_u32 s{sT2}, {LDS_K+16384+12*16+8}, s{sT1}
    v_mov_b32 v31, s{sT2}
    v_cndmask_b32 v{vKA2}, v{vKA2}, v31, s[{sUP}:{sUP+1}]
    v_lshl_add_u32 v{vCW}, v25, 8, v31
    v_lshl_add_u32 v{vCW}, v26, 4, v{vCW}
    s_sub_u32 s{sT2}, {LDS_V+16384+511*16+8}, s{sT1}
    v_mov_b32 v{vCN}, s{sT2}
    v_lshl_add_u32 v{vQA1}, v26, 12, v27
    v_add_u32 v{vQA1}, {LDS_Q}, v{vQA1}
    s_add_u32 s{sT2}, s{sT1}, {LDS_Q+8192}
    v_add_u32 v{vQA2}, s{sT2}, v27
    s_lshr_b32 s{sT1}, s{sH}, 1
    s_mul_i32 s{sB0}, s{sT1}, 5            ; 5m
    s_mul_i32 s{sT2}, s{sODD}, 3
    s_add_u32 s{sT2}, s{sT2}, s{sB0}       ; blockA
    s_lshl_b32 s{sT3}, s{sRB}, 12          ; 256*RB*16
    s_lshl_b32 s{sT4}, s{sT2}, 15
    s_add_u32 s{sT4}, s{sT4}, s{sT3}
    s_add_u32 s{sT4}, s{sT4}, {O_OFF}
    v_lshl_add_u32 v{vOA}, v26, 15, v27
    v_add_u32 v{vOA}, s{sT4}, v{vOA}
    s_add_u32 s{sT4}, s{sB0}, 2
    s_lshl_b32 s{sT4}, s{sT4}, 15
    s_add_u32 s{sT4}, s{sT4}, s{sT3}
    s_lshl_b32 s{sT5}, s{sODD}, 3
    s_add_u32 s{sT4}, s{sT4}, s{sT5}
    s_add_u32 s{sT4}, s{sT4}, {O_OFF}
    v_add_u32 v{vOH}, s{sT4}, v27
    v_bfe_u32 v30, v0, 4, 1              ; g1
    v_bfe_u32 v29, v0, 1, 1              ; c>>1
    v_cmp_eq_u32 vcc, 1, v30
    v_mov_b32 v28, 2
    v_and_b32 v25, 1, v0                 ; c&1
    v_cndmask_b32 v29, v29, v28, vcc     ; p
    v_and_b32 v30, v25, v30
    v_mov_b32 v28, s{sODD}
    v_cndmask_b32 v25, v25, v28, vcc
    v_bfe_u32 v28, v0, 2, 2              ; r
    v_lshl_add_u32 v28, v26, 2, v28      ; 4h + r
    v_lshlrev_b32 v26, 2, v29            ; p<<2
    v_lshlrev_b32 v27, 13, v29           ; p*8192
    v_lshl_add_u32 v27, v25, 3, v27
    v_add_u32 v27, s{sT0}, v27
    v_add_u32 v27, {LDS_V}, v27
    v_xor_b32 v25, v28, v26
    v_lshl_add_u32 v{vVA0}, v25, 4, v27
    v_or_b32 v28, 8, v28
    v_xor_b32 v25, v28, v26
    v_lshl_add_u32 v{vVA1}, v25, 4, v27
    v_cmp_eq_u32 vcc, 1, v30
    s_cmp_eq_u32 s{sRB}, 0
    s_cselect_b32 s{sNT}, s{sWAVE}, 7
    v_cndmask_b32 v{vVA0}, v{vVA0}, v31, vcc
    v_cndmask_b32 v{vVA1}, v{vVA1}, v31, vcc
    """)
    if opts.get("zrow", 1):
        k(f"""
        v_and_b32 v25, 18, v0
        v_cmp_eq_u32 vcc, 18, v25            ; g1 && c>=2
        v_add_u32 v31, 16, v31
        s_nop 0
        v_cndmask_b32 v{vVA0}, v{vVA0}, v31, vcc
        v_cndmask_b32 v{vVA1}, v{vVA1}, v31, vcc
        """)
    k(f"""
    v_mov_b32 v22, 0x3f80
    v_mov_b32 v23, 0
    v_cndmask_b32 v22, v22, v23, s[{sUP}:{sUP+1}]
    s_cmp_eq_u32 s{sROLE}, 1
    s_cbranch_scc1 L_role_ld
    """)
    vWOA = 200
    k(f"s_lshl_b32 s{sLW}, s{sWAVE}, 10\ns_lshl_b32 s{sT0}, s{sWAVE}, 6\nv_add_u32 v26, s{sT0}, v0\ns_mul_i32 s{sWB}, s{sRB}, 160")
    for i in range(5):
        if i: k(f"v_add_u32 v26, 256, v26")
        k(f"""
        v_mul_u32_u24 v27, 6554, v26
        v_lshrrev_b32 v27, 16, v27        ; rho
        v_mul_u32_u24 v28, 10, v27
        v_sub_u32 v28, v26, v28           ; piece
        v_and_b32 v29, 0x63, v27
        v_bfe_u32 v30, v27, 2, 2          ; g
        v_lshl_add_u32 v29, v30, 3, v29
        v_bfe_u32 v30, v27, 4, 1          ; t
        v_lshl_add_u32 v29, v30, 2, v29   ; k
        v_mul_u32_u24 v29, 1280, v29
        v_lshl_add_u32 v{vWOA+i}, v28, 4, v29
        """)
    srd(sWO, 8, 819200)
    k(f"""
    s_cmp_lt_u32 s{sCT}, 15
    s_cbranch_scc1 L_BD
    """)
    readychk("L_rdy2", vTG, vZ0, True)
    k("s_branch L_BD")

    vP, vZ, vF = 220, 221, 222
    vU = 224
    TY = 80 * 32768
    k(f"""
    L_role_ld:
    v_mov_b32 v{vZ}, 0
    s_lshl_b32 s{sT1}, s{sODD}, 1
    s_add_u32 s{sT1}, s{sT1}, s{sB0}
    s_add_u32 s{sT2}, s{sT1}, 2
    s_lshr_b32 s{sT1}, s{sT1}, 2
    s_lshr_b32 s{sT2}, s{sT2}, 2
    s_sub_u32 s{sT2}, s{sT2}, s{sT1}          ; 0 or 1
    s_cmp_eq_u32 s{sRB}, 0
    s_cselect_b32 s{sNX}, 6, 10
    s_movk_i32 s{sUM}, 0x3ff
    s_cselect_b32 s{sUM}, 0x333, s{sUM}
    s_lshl_b32 s{sNX}, s{sNX}, s{sT2}
    s_and_b32 s{sT0}, s{sWAVE}, 1
    s_lshl_b32 s{sT1}, 0x155, s{sT0}
    s_and_b32 s101, s{sUM}, s{sT1}
    s_cmp_lt_u32 s{sWAVE}, 6
    s_cselect_b32 s{sUM}, s{sUM}, s101
    s_sub_u32 s{sFL}, s{sWAVE}, 4
    s_min_u32 s{sFL}, s{sFL}, 2
    s_lshl_b32 s{sT0}, s{sRB}, 5
    s_add_u32 s{sT0}, s{sT0}, s{sH}
    s_mul_i32 s{sT0}, s{sT0}, 3
    s_add_u32 s{sT0}, s{sT0}, s{sFL}
    s_lshl_b32 s{sT0}, s{sT0}, 7
    s_add_u32 s{sT0}, s{sT0}, {CN1_OFF}
    v_mov_b32 v{vF}, s{sT0}
    s_mul_i32 s{sT0}, s{sODD}, 3
    s_add_u32 s{sT0}, s{sT0}, s{sB0}
    s_lshl_b32 s{sT0}, s{sT0}, 15
    s_add_u32 s{sT1}, s{sB0}, 2
    s_lshl_b32 s{sT1}, s{sT1}, 15
    s_lshl_b32 s{sT2}, s{sRB}, 12
    s_add_u32 s{sT0}, s{sT0}, s{sT2}
    s_add_u32 s{sT1}, s{sT1}, s{sT2}
    v_lshlrev_b32 v219, 4, v0
    v_add_u32 v{vU}, s{sT0}, v219
    v_add_u32 v{vU+1}, 32768, v{vU}
    v_add_u32 v{vU+2}, s{sT1}, v219
    v_xor_b32 v{vU+3}, 64, v{vU+1}
    v_xor_b32 v{vU+4}, 128, v{vU+2}
    s_cmp_ge_u32 s{sCT}, 15
    s_cbranch_scc1 L_ld_idle2
    """)
    srd(sX, 4, 2621440); srd(sW, 6, 2457600)
    for c in range(NCH):
        k(f"s_waitcnt vmcnt({sum(cnt[c+1:])})")
        if c == 9: stamp(15)
        if c == NCH - 1: stamp(14, 1)
        k(f"s_barrier      ; B_{c}")
        if c == 7: k(f"global_load_dword v{vP}, v{vZ}, s[12:13] sc1")
        if len(cnt) < NCH: issue(len(cnt))
    k(f"""
    s_branch L_ld_go
    L_ld_idle2:
    global_load_dword v{vP}, v{vZ}, s[12:13] sc1
    L_ld_go:
    """)
    readychk("L_rdy3", vP, vZ, False)
    k(f"""
    L_fetch:
    s_lshl_b32 s{sSTO}, s{sFL}, 8
    s_add_u32 s{sSTO}, s{sSTO}, 1024
    s_cmp_eq_u32 s{sFL}, 1
    s_cselect_b32 s{sSTO}, 0, s{sSTO}
    s_cselect_b32 s{sT4}, -1, 0
    s_mov_b64 exec, 1
    """)
    gpoll("L_poll1", vP, vF, f"s{sNX}")
    stamp(4, 1)
    k(f"""
    s_mov_b32 exec_lo, -1
    s_mov_b32 exec_hi, s{sT4}
    """)
    for u in (0, 1, 4, 5, 8, 9, 2, 3, 6, 7):
        ty = (u + 2) >> 2; t1 = (u + 2) & 3
        k(f"s_bitcmp1_b32 s{sUM}, {u}\ns_cbranch_scc0 L_skipu{u}")
        for p in range(3):
            ldsb = [LDS_Q + (t1 - 2) * 2048 + p * 4096, LDS_K + t1 * 2048 + p * 8192, LDS_V + t1 * 2048 + p * 8192][ty]
            vr = vU + p if (ty < 2 or p == 0) else vU + 2 + p
            k(f"s_add_u32 m0, s{sSTO}, {ldsb}")
            if p == 0: k(f"s_add_u32 s{sT5}, s{sSTO}, {ty * TY + (t1 - 2) * 2048}")
            else: k("s_nop 0")
            k(f"buffer_load_dwordx4 v{vr}, s[{sWS}:{sWS+3}], s{sT5} offen sc1 lds")
        k(f"L_skipu{u}:")
    stamp(5)
    k(f"""
    s_mov_b64 exec, -1
    s_waitcnt vmcnt(0)
    """)
    stamp(6)
    k(f"""
    s_cmp_lg_u32 s{sWAVE}, 7
    s_cbranch_scc1 L_BD
    ds_write_b32 v{vCN}, v{vZ}
    s_waitcnt lgkmcnt(0)
    L_BD:
    s_barrier
    """)
    stamp(7)

    def LK(kk, buf):
        off = (8 - kk) * 512
        f = KF[buf]
        k(f"ds_read_b128 v[{f}:{f+3}], v{vKA1} offset:{off}")
        k(f"ds_read_b64 v[{f+4}:{f+5}], v{vKA2} offset:{off}")
    def LV(kk, buf):
        off = (8 - kk) * 512
        f = VF[buf]
        for u in range(2):
            for t in range(2):
                k(f"ds_read_b64_tr_b16 v[{f+4*u+2*t}:{f+4*u+2*t+1}], v{[vVA0, vVA1][t]} offset:{off + u*256}")
    def QK(buf, sbuf):
        f = KF[buf]; s = S[sbuf]
        k(f"v_mfma_f32_32x32x16_bf16 v[{s}:{s+15}], v[{f}:{f+3}], v[{vQ1}:{vQ1+3}], 0")
        k(f"v_mfma_f32_32x32x8_bf16 v[{s}:{s+15}], v[{f+4}:{f+5}], v[{vQ2}:{vQ2+1}], v[{s}:{s+15}]")
    def EXP(sbuf, lo, hi):
        s = S[sbuf]
        for i in range(lo, hi): k(f"v_exp_f32 v{s+i}, v{s+i}")
    def CVT(sbuf, lo, hi):
        s = S[sbuf]
        for i in range(lo, hi): k(f"v_cvt_pk_bf16_f32 v{P+i}, v{s+2*i}, v{s+2*i+1}")
    def PV(buf, u, p=P, first=False):
        f = VF[buf] + 4 * u
        cs = "0" if first else f"v[{OA}:{OA+15}]"
        k(f"v_mfma_f32_32x32x16_bf16 v[{OA}:{OA+15}], v[{f}:{f+3}], v[{p+4*u}:{p+4*u+3}], {cs}")
    def wo_group(gi):
        for i in range(5):
            k(f"s_add_u32 m0, s{sLW}, {LDS_WO + (gi*5+i)*4096}")
            if i == 0: k(f"s_add_u32 s{sT5}, s{sWB}, {gi*4*40960}")
            else: k("s_nop 0")
            k(f"buffer_load_dwordx4 v{vWOA+i}, s[{sWO}:{sWO+3}], s{sT5} offen lds")
    def wo_opt(gi):
        if opts.get("nowo"): return
        k(f"s_cmp_eq_u32 s{sROLE}, 1\ns_cbranch_scc1 L_nowo{gi}")
        wo_group(gi)
        k(f"L_nowo{gi}:")

    PR = opts.get("pr", 0)
    PRS = {0: None, 1: [3, 3, 2, 2, 1, 1, 0, 0], 2: [3, 2, 2, 1, 1, 0, 0, 0], 3: [3, 3, 3, 2, 2, 1, 1, 0], 4: [1, 1, 1, 1, 0, 0, 0, 0], 5: [3, 2, 1, 0, 3, 2, 1, 0]}[PR]
    def setpr(st):
        if PRS and (st == 0 or PRS[st] != PRS[st - 1]): k(f"s_setprio {PRS[st]}")
    setpr(0)
    k(f"""
    s_mov_b32 exec_lo, 0x3ffff
    s_mov_b32 exec_hi, 0x3ffff
    ds_write_b64 v{vCW}, v[22:23]
    s_mov_b64 exec, -1
    ds_read_b128 v[{vQ1}:{vQ1+3}], v{vQA1}
    ds_read_b64 v[{vQ2}:{vQ2+1}], v{vQA2}
    """)
    LK(0, 0); LK(8, 1); LV(0, 0); LV(8, 1)
    k(f"""
    s_waitcnt lgkmcnt(12)
    v_cndmask_b32 v{vQ2}, v{vQ2}, 0, s[{sUP}:{sUP+1}]
    v_cndmask_b32 v{vQ2+1}, v{vQ2+1}, 0, s[{sUP}:{sUP+1}]
    s_waitcnt lgkmcnt(10)
    s_cmp_eq_u32 s{sRB}, 0
    """)
    QK(0, 0)
    k("s_cbranch_scc1 L_nofar")
    k("s_waitcnt lgkmcnt(8)")
    QK(1, 1)
    k("L_far_done:")
    LK(1, 0)
    wo_opt(0)
    k("s_nop 7")
    s = S[0]
    for i in range(16): k(f"v_bfi_b32 v{s+i}, v{MK+i}, v{s+i}, v{S[1]+i}")
    k(f"v_max3_f32 v25, v{s}, v{s+1}, v{s+2}")
    k(f"v_max3_f32 v26, v{s+3}, v{s+4}, v{s+5}")
    k(f"v_max3_f32 v25, v25, v{s+6}, v{s+7}")
    k(f"v_max3_f32 v26, v26, v{s+8}, v{s+9}")
    k(f"v_max3_f32 v25, v25, v{s+10}, v{s+11}")
    k(f"v_max3_f32 v26, v26, v{s+12}, v{s+13}")
    k(f"v_max3_f32 v25, v25, v{s+14}, v{s+15}")
    k(f"""
    v_max_f32 v25, v25, v26
    v_mov_b32 v26, v25
    s_nop 1
    v_permlane32_swap_b32 v25, v26
    v_max_f32 v25, v25, v26
    v_and_b32 v25, 0xffff0000, v25
    v_lshrrev_b32 v26, 16, v25
    v_xor_b32 v26, 0x8000, v26
    v_cndmask_b32 v{vQ2}, v{vQ2}, v26, s[{sUP}:{sUP+1}]
    """)
    astamp(5)
    for i in range(4): k(f"v_sub_f32 v{s+i}, v{s+i}, v25")
    k("s_waitcnt lgkmcnt(0)")
    QK(0, 1)
    LK(2, 1)
    for i in range(4, 16): k(f"v_sub_f32 v{s+i}, v{s+i}, v25")
    EXP(0, 0, 8)
    CVT(0, 0, 4)
    for j in range(4): k(f"v_and_b32 v{PD+j}, v{MP+j}, v{P+j}")
    for j in range(4): k(f"v_xor_b32 v{P+j}, v{PD+j}, v{P+j}")
    EXP(0, 8, 10)
    PV(0, 0, PD, first=True)
    EXP(0, 10, 13)
    k(f"s_cmp_eq_u32 s{sRB}, 0\ns_cbranch_scc1 L_nofar1")
    PV(1, 0)
    k("L_nofar1:")
    EXP(0, 13, 16)
    k("s_nop 0")
    CVT(0, 4, 8)
    for j in range(4, 8): k(f"v_and_b32 v{PD+j}, v{MP+j}, v{P+j}")
    for j in range(4, 8): k(f"v_xor_b32 v{P+j}, v{PD+j}, v{P+j}")
    PV(0, 1, PD)
    k(f"s_cbranch_scc1 L_nofar2")
    PV(1, 1)
    k("L_nofar2:")
    LV(1, 0)
    k(f"s_cmp_eq_u32 s{sNT}, 0\ns_cbranch_scc1 L_worest1")
    astamp(1)
    for i in range(7):
        if i == 2: astamp(2)
        if i == 4: astamp(3)
        if i == 6: astamp(14)
        cur = (i + 1) & 1; nxt = i & 1
        setpr(i + 1)
        if i < 6:
            k("s_waitcnt lgkmcnt(4)")
            QK((i + 1) & 1, nxt)
        if i < 5: LK(i + 3, i & 1)
        if i < 4: wo_opt(i + 1)
        EXP(cur, 0, 8)
        CVT(cur, 0, 4)
        EXP(cur, 8, 10)
        k(f"s_waitcnt lgkmcnt({2 if i < 5 else 0})")
        PV(i & 1, 0)
        EXP(cur, 10, 16)
        k("s_nop 0")
        CVT(cur, 4, 8)
        if i < 6: LV(i + 2, (i + 1) & 1)
        else: k("s_nop 1")
        PV(i & 1, 1)
        if i < 6:
            k(f"s_cmp_eq_u32 s{sNT}, {i+1}")
            k(f"s_cbranch_scc1 {'L_worest%d' % (i+2) if i < 3 else 'L_p2_done'}")
    k("L_p2_done:")
    if PRS: k("s_setprio 0" if not opts.get("prend") else f"s_setprio {opts['prend']}")
    astamp(15)
    k(f"""
    s_lshl_b32 s{sT2}, s{sRB}, 5
    s_and_b32 s{sT3}, s{sWAVE}, 3
    s_add_u32 s{sT2}, s{sT2}, s{sT3}
    s_lshl_b32 s{sT2}, s{sT2}, 1
    s_add_u32 s{sT2}, s{sT2}, s{sROLE}
    s_lshl_b32 s{sT2}, s{sT2}, 7
    s_add_u32 s{sFL}, s{sT2}, {CN2_OFF}
    v_mov_b32 v27, {hex(f2u(2.0**60))}
    v_mov_b32 v30, {hex(f2u(2.0**-60))}
    v_mov_b32 v28, 1
    v_lshlrev_b32 v29, 10, v0
    s_nop 0
    v_mov_b32 v25, v{OA+8}
    v_mov_b32 v26, v{OA+8}
    s_nop 1
    v_permlane32_swap_b32 v25, v26
    v_cmp_nlt_f32 vcc, v26, v27
    v_cmp_ngt_f32 s[{sT0}:{sT0+1}], v26, v30
    s_or_b64 vcc, vcc, s[{sT0}:{sT0+1}]
    s_cbranch_vccnz L_slow
    L_p2_norm:
    v_rcp_f32 v26, v26
    s_nop 0
    """)
    for i in range(12): k(f"v_mul_f32 v{OA+i}, v{OA+i}, v26")
    k(f"""
    v_cvt_pk_bf16_f32 v{P}, v{OA}, v{OA+1}
    v_cvt_pk_bf16_f32 v{P+1}, v{OA+2}, v{OA+3}
    v_cvt_pk_bf16_f32 v{P+2}, v{OA+4}, v{OA+5}
    v_cvt_pk_bf16_f32 v{P+3}, v{OA+6}, v{OA+7}
    v_cvt_pk_bf16_f32 v{P+4}, v{OA+8}, v{OA+9}
    v_cvt_pk_bf16_f32 v{P+5}, v{OA+10}, v{OA+11}
    v_permlane32_swap_b32 v{P}, v{P+2}
    v_permlane32_swap_b32 v{P+1}, v{P+3}
    buffer_store_dwordx4 v[{P}:{P+3}], v{vOA}, s[{sWS}:{sWS+3}], 0 offen sc1
    s_mov_b32 exec_hi, 0
    buffer_store_dwordx2 v[{P+4}:{P+5}], v{vOH}, s[{sWS}:{sWS+3}], 0 offen sc1
    """)
    stamp(8)
    k(f"""
    s_movk_i32 exec_lo, 0xff
    s_waitcnt vmcnt(0)
    buffer_atomic_add v28, v29, s[{sWS}:{sWS+3}], s{sFL} offen sc1
    """)
    stamp(9)
    k(f"""
    s_cmp_eq_u32 s{sROLE}, 1
    s_cbranch_scc1 L_fin
    s_mov_b32 exec_lo, 1
    ds_add_u32 v{vCN}, v28
    s_mov_b64 exec, -1
    v_mov_b32 v12, v{vCN}
    s_setprio 0
    """)

    NPRE = 7
    B3 = 16
    A3 = 96
    C3 = 236
    srd(sOUT, 10, 2621440)
    k(f"""
    v_lshrrev_b32 v2, 2, v0            ; 4g + r
    v_mul_u32_u24 v2, 160, v2
    v_and_b32 v3, 3, v0
    v_lshl_add_u32 v2, v3, 3, v2       ; steps 0..9
    v_add_u32 v3, {10*5120}, v2        ; steps 10..19
    v_lshrrev_b32 v4, 4, v0
    v_and_b32 v5, 15, v0
    v_lshlrev_b32 v6, 15, v4
    v_lshl_add_u32 v6, v5, 4, v6
    s_and_b32 s{sT1}, s{sJ}, 3
    s_lshr_b32 s{sT3}, s{sWAVE}, 1
    s_lshl_b32 s{sT2}, s{sT3}, 2
    s_add_u32 s{sT1}, s{sT1}, s{sT2}
    s_lshl_b32 s{sT0}, s{sXCD}, 3
    s_add_u32 s{sT0}, s{sT0}, s{sT1}     ; q tile
    s_lshl_b32 s{sT2}, s{sXCD}, 5
    s_add_u32 s{sT2}, s{sT2}, s{sJ}
    s_lshl_b32 s{sT2}, s{sT2}, 1
    s_add_u32 s{sT2}, s{sT2}, s{sT3}
    s_lshl_b32 s{sT2}, s{sT2}, 7
    s_add_u32 s{sT2}, s{sT2}, {CN2_OFF}
    v_mov_b32 v10, s{sT2}
    s_lshl_b32 s{sT0}, s{sT0}, 5
    s_and_b32 s{sT1}, s{sWAVE}, 1
    s_lshl_b32 s{sT1}, s{sT1}, 4
    s_add_u32 s{sT0}, s{sT0}, s{sT1}     ; row0
    s_lshl_b32 s{sT1}, s{sT0}, 4
    s_add_u32 s{sT1}, s{sT1}, {O_OFF}
    v_add_u32 v7, s{sT0}, v5
    v_mul_u32_u24 v7, 1280, v7
    s_mul_i32 s{sT2}, s{sRB}, 160
    v_add_u32 v7, s{sT2}, v7
    v_lshl_add_u32 v9, v4, 3, v7
    v_and_b32 v11, 1, v4
    v_lshl_add_u32 v7, v11, 5, v7
    v_lshrrev_b32 v11, 1, v4
    v_lshl_add_u32 v7, v11, 4, v7
    """)
    lwait("L_cwo", 11, 12, 0, 4)
    def LA(ks):
        base = A3 + (ks % NPRE) * 20
        va = 2 if ks < 10 else 3
        o = (ks % 10) * 5120
        for tl in range(5):
            for t in range(2):
                a = base + tl * 4 + 2 * t
                k(f"ds_read_b64_tr_b16 v[{a}:{a+1}], v{va} offset:{o + t*16*160 + tl*32}")
    for ks in range(NPRE):
        LA(ks)
        k("s_waitcnt lgkmcnt(5)")
    k("s_mov_b64 exec, 1")
    stamp(4, 0)
    gpoll("L_poll2", 11, 10, 32)
    k("s_mov_b64 exec, -1")
    stamp(11)
    for ks in range(20):
        k(f"buffer_load_dwordx4 v[{B3+4*ks}:{B3+4*ks+3}], v6, s[{sWS}:{sWS+3}], s{sT1} offen sc1")
        if ks < 19: k(f"s_add_u32 s{sT1}, s{sT1}, {4*32768}")
    for ks in range(20):
        lg = 5 if (ks >= 1 and ks - 1 + NPRE < 20) else 0
        k(f"s_waitcnt vmcnt({19-ks}) lgkmcnt({lg})")
        if ks == 0: stamp(10)
        base = A3 + (ks % NPRE) * 20
        for tl in range(5):
            a = base + tl * 4; c = C3 + tl * 4; b = B3 + 4 * ks
            cs = "0" if ks == 0 else f"v[{c}:{c+3}]"
            k(f"v_mfma_f32_16x16x32_bf16 v[{c}:{c+3}], v[{a}:{a+3}], v[{b}:{b+3}], {cs}")
        if ks + NPRE < 20: LA(ks + NPRE)
    stamp(12)
    k("s_nop 7")
    for tl in range(5):
        c = C3 + tl * 4
        q = 16 + (tl >> 1) * 4 + (tl & 1) * 2
        k(f"v_cvt_pk_bf16_f32 v{q}, v{c}, v{c+1}")
        k(f"v_cvt_pk_bf16_f32 v{q+1}, v{c+2}, v{c+3}")
    k(f"""
    v_permlane16_swap_b32 v16, v18
    v_permlane16_swap_b32 v17, v19
    v_permlane16_swap_b32 v20, v22
    v_permlane16_swap_b32 v21, v23
    buffer_store_dwordx4 v[16:19], v7, s[{sOUT}:{sOUT+3}], 0 offen
    buffer_store_dwordx4 v[20:23], v7, s[{sOUT}:{sOUT+3}], 0 offen offset:64
    buffer_store_dwordx2 v[24:25], v9, s[{sOUT}:{sOUT+3}], 0 offen offset:128
    """)
    k("L_fin:")
    if "padat" in opts:
        k(f"""
        s_waitcnt lgkmcnt(0)
        s_cmp_eq_u32 s94, 0
        s_cbranch_scc1 L_nopad
        L_pad:
        s_memrealtime s[92:93]
        s_waitcnt lgkmcnt(0)
        s_sub_u32 s92, s92, s94
        s_cmp_lt_u32 s92, 3000
        s_cbranch_scc1 L_pad
        L_nopad:
        """)
    if stamps:
        SW = opts.get("sw", 0)
        k(f"""
        s_mov_b64 exec, -1
        s_waitcnt vmcnt(0)
        s_mem{'' if opts.get('cyc') else 'real'}time s[{sST+26}:{sST+27}]
        s_and_b32 s{sT0}, s{sWAVE}, 3
        s_cmp_lg_u32 s{sT0}, {SW}
        s_cbranch_scc1 L_end
        s_waitcnt lgkmcnt(0)
        s_lshl_b32 s{sT0}, s2, 1
        s_lshr_b32 s{sT1}, s{sWAVE}, 2
        s_add_u32 s{sT0}, s{sT0}, s{sT1}
        s_lshl_b32 s{sT0}, s{sT0}, 6
        s_add_u32 s{sT0}, s{sT0}, {STAMP_OFF}
        v_mov_b32 v1, 0
        """)
        for i in range(16): k(f"v_mov_b32 v{4+i}, s{sST+2*i}")
        for i in range(4): k(f"buffer_store_dwordx4 v[{4+4*i}:{7+4*i}], v1, s[{sWS}:{sWS+3}], s{sT0} offen offset:{16*i}")
    k("L_end:")
    k("s_endpgm")

    k("L_nofar:")
    for i in range(16): k(f"v_mov_b32 v{S[1]+i}, {hex(NEG)}")
    k("s_branch L_far_done")
    for g in range(1, 5):
        k(f"L_worest{g}:")
        k(f"s_cmp_eq_u32 s{sROLE}, 1\ns_cbranch_scc1 L_p2_done")
        wo_group(g)
    k("s_branch L_p2_done")

    k("L_slow:")
    s = S[0]
    k(f"""
    v_cndmask_b32 v{vQ2}, v{vQ2}, 0, s[{sUP}:{sUP+1}]
    v_mov_b32 v25, 0xff800000
    v_mov_b32 v27, {hex(NEG)}
    s_mov_b32 s{sT2}, 0               ; pass
    s_add_u32 s{sT4}, s{sNT}, 1
    s_cmp_lg_u32 s{sRB}, 0
    s_cselect_b32 s{sT4}, 9, s{sT4}     ; tiles
    """)
    for i in range(16): k(f"v_mov_b32 v{OA+i}, 0")
    k(f"""
    L_slow_pass:
    s_mov_b32 s{sCNT}, 0
    L_slow_tile:
    s_sub_u32 s{sT3}, 8, s{sCNT}
    s_lshl_b32 s{sT3}, s{sT3}, 9
    v_add_u32 v10, s{sT3}, v{vKA1}
    v_add_u32 v11, s{sT3}, v{vKA2}
    v_add_u32 v12, s{sT3}, v{vVA0}
    v_add_u32 v13, s{sT3}, v{vVA1}
    ds_read_b128 v[{KF[0]}:{KF[0]+3}], v10
    ds_read_b64 v[{KF[0]+4}:{KF[0]+5}], v11
    ds_read_b64_tr_b16 v[{VF[0]}:{VF[0]+1}], v12
    ds_read_b64_tr_b16 v[{VF[0]+2}:{VF[0]+3}], v13
    ds_read_b64_tr_b16 v[{VF[0]+4}:{VF[0]+5}], v12 offset:256
    ds_read_b64_tr_b16 v[{VF[0]+6}:{VF[0]+7}], v13 offset:256
    s_waitcnt lgkmcnt(0)
    """)
    QK(0, 0)
    k(f"""
    s_nop 15
    s_cmp_lg_u32 s{sCNT}, 0
    s_cbranch_scc1 L_slow_nd
    """)
    for i in range(16): k(f"v_bfi_b32 v{s+i}, v{MK+i}, v{s+i}, v27")
    k(f"""
    L_slow_nd:
    s_cmp_lg_u32 s{sCNT}, 8
    s_cbranch_scc1 L_slow_nf
    """)
    for i in range(16): k(f"v_bfi_b32 v{s+i}, v{MK+i}, v27, v{s+i}")
    k(f"""
    L_slow_nf:
    s_cmp_lg_u32 s{sT2}, 0
    s_cbranch_scc1 L_slow_p2
    """)
    for i in range(16): k(f"v_max_f32 v25, v25, v{s+i}")
    k("s_branch L_slow_next")
    k("L_slow_p2:")
    for i in range(16): k(f"v_sub_f32 v{s+i}, v{s+i}, v25")
    EXP(0, 0, 16)
    k("s_nop 0")
    CVT(0, 0, 8)
    k("s_nop 1")
    PV(0, 0); PV(0, 1)
    k(f"""
    s_nop 15
    L_slow_next:
    s_add_u32 s{sCNT}, s{sCNT}, 1
    s_cmp_lt_u32 s{sCNT}, s{sT4}
    s_cbranch_scc1 L_slow_tile
    s_cmp_lg_u32 s{sT2}, 0
    s_cbranch_scc1 L_slow_done
    v_mov_b32 v26, v25
    s_nop 1
    v_permlane32_swap_b32 v25, v26
    v_max_f32 v25, v25, v26
    s_mov_b32 s{sT2}, 1
    s_branch L_slow_pass
    L_slow_done:
    v_mov_b32 v25, v{OA+8}
    v_mov_b32 v26, v{OA+8}
    s_nop 1
    v_permlane32_swap_b32 v25, v26
    s_branch L_p2_norm
    """)
    k("L_code_end:")
    return emit([k], single=True)

if __name__ == "__main__":
    out = sys.argv[1]
    opts = {}
    for a in sys.argv[2:]:
        kx, v = a.split("=")
        opts[kx] = [int(x) for x in v.split(',')] if kx == 'only' else int(v)
    open(out, "w").write(gen(opts))
```

```python
import sys, math, struct
from asmlib import *

def f2u(x): return struct.unpack("<I", struct.pack("<f", x))[0]

QKV_OFF = 0
O_OFF   = 8 << 20
CN1_OFF = 12 << 20
CN2_OFF = CN1_OFF + 768 * 128
STAMP_OFF = 13 << 20
WS_SIZE = 14 << 20
SLOT = 28672
NSLOT = 4
LDS_WO = 0
LDS_K = 102400
LDS_V = LDS_K + 24576
LDS_Q = LDS_V + 24576
LDS_TOTAL = 163840
QSCALE = (20 ** -0.5) * math.log2(math.e)
SPIN_MAX = 400000
NEG = 0xf149f2ca

def gen(opts):
    DEPTH = opts.get("depth", 3)
    NCH = 12
    MAP = ""
    if opts.get("map") == 1:
        MAP = "s_lshr_b32 s40, s38, 1\ns_and_b32 s39, s38, 1\ns_lshl_b32 s46, s37, 1\ns_add_u32 s39, s39, s46"
    if opts.get("map") == 2:
        MAP = ("s_and_b32 s46, s37, 1\ns_lshl_b32 s46, s46, 3\ns_and_b32 s39, s38, 7\ns_lshr_b32 s48, s37, 1\ns_lshr_b32 s49, s38, 3\n"
               "s_lshl_b32 s40, s48, 2\ns_add_u32 s40, s40, s49\ns_sub_u32 s40, s40, s48\n"
               "s_sub_u32 s50, s38, 24\ns_mul_i32 s51, s48, 6\ns_add_u32 s50, s50, s51\n"
               "s_lshr_b32 s51, s50, 3\ns_add_u32 s51, s51, 12\ns_and_b32 s50, s50, 7\n"
               "s_cmp_ge_u32 s38, 24\ns_cselect_b32 s40, s51, s40\ns_cselect_b32 s39, s50, s39\ns_add_u32 s39, s39, s46\n"
               "s_cmp_ge_u32 s38, 30\ns_cselect_b32 s40, 15, s40")
    CODEPF = ""
    if opts.get("codepf"):
        CODEPF = "s_getpc_b64 s[46:47]\nv_lshlrev_b32 v20, 6, v0\ns_lshl_b32 s48, s36, 12\nv_add_u32 v20, s48, v20\nglobal_load_dword v21, v20, s[46:47]\ns_waitcnt vmcnt(0)"
    stamps = opts.get("stamps", False)
    k = K("standalone__sliding_block__prompt_kernel", (256, 1, 1), (512, 1, 1), LDS_TOTAL, vgpr=256, sgpr=102)

    sX, sW, sWO, sOUT, sWS = 16, 20, 24, 28, 32
    sWAVE, sXCD, sJ, sR1, sCT = 36, 37, 38, 39, 40
    sH, sRB, sODD, sTAG = 41, 42, 43, 44
    sLW = 45
    sT0, sT1, sT2, sT3, sT4, sT5 = 46, 47, 48, 49, 50, 51
    sCNT, sFL = 52, 53
    sUP = 54
    sEX = 56
    sNT = 58
    sB0 = 59
    sSTO = 60
    sROLE = 61
    sSC = 62
    sST = 64
    sUM, sNX, sWB = 98, 99, 100
    def astamp(idx):
        if stamps and opts.get("attst"): k(f"s_mem{'' if opts.get('cyc') else 'real'}time s[{sST+2*idx}:{sST+2*idx+1}]")
    def stamp(idx, role=None):
        if opts.get("padat") == idx and (role is None or role == opts.get("padrole", role)):
            k("s_memrealtime s[94:95]")
        if opts.get("attst") and idx in (1, 2, 3, 14, 15, 5, 6): return
        if stamps and (idx in opts.get("only", range(16)) or idx == 0):
            k(f"s_mem{'' if opts.get('cyc') else 'real'}time s[{sST+2*idx}:{sST+2*idx+1}]")
    def srd(d, lo, size):
        k(f"s_mov_b32 s{d}, s{lo}\ns_mov_b32 s{d+1}, s{lo+1}\ns_mov_b32 s{d+2}, {size}\ns_mov_b32 s{d+3}, 0x20000")
    def readychk(lab, vreg, vz, issue_first):
        k(f"s_mov_b32 s{sCNT}, 0")
        if issue_first: k(f"global_load_dword v{vreg}, v{vz}, s[12:13] sc1")
        k(f"""
        {lab}:
        s_waitcnt vmcnt(0)
        v_readfirstlane_b32 s{sTAG}, v{vreg}
        s_add_u32 s{sCNT}, s{sCNT}, 1
        s_cmp_ge_u32 s{sCNT}, {SPIN_MAX}
        s_cbranch_scc1 {lab}_ok
        s_cmp_ge_u32 s{sTAG}, 64
        s_cbranch_scc1 {lab}_ok
        global_load_dword v{vreg}, v{vz}, s[12:13] sc1
        s_branch {lab}
        {lab}_ok:
        """)
    def gpoll(lab, vreg, vaddr, target):
        k(f"""
        s_mov_b32 s{sCNT}, 0
        {lab}:
        {f"buffer_load_dword v{vreg}, v{vaddr}, s[{sWS}:{sWS+3}], 0 offen sc1" if opts.get("ldpoll") else f"v_mov_b32 v{vreg}, 0"}
        {"" if opts.get("ldpoll") else f"buffer_atomic_add v{vreg}, v{vaddr}, s[{sWS}:{sWS+3}], 0 offen sc0 sc1"}
        s_add_u32 s{sCNT}, s{sCNT}, 1
        s_cmp_ge_u32 s{sCNT}, {SPIN_MAX}
        s_waitcnt vmcnt(0)
        s_cbranch_scc1 {lab}_out
        v_cmp_gt_u32 vcc, {target}, v{vreg}
        s_cbranch_vccnz {lab}
        {lab}_out:
        """)
    def lwait(lab, vreg, vaddr, off, target):
        k(f"""
        {lab}:
        ds_read_b32 v{vreg}, v{vaddr} offset:{off}
        s_waitcnt lgkmcnt(0)
        v_cmp_gt_u32 vcc, {target}, v{vreg}
        s_cbranch_vccnz {lab}
        """)

    if stamps:
        for i in range(16): k(f"s_mov_b64 s[{sST+2*i}:{sST+2*i+1}], 0")
    if "padat" in opts: k("s_mov_b64 s[94:95], 0")
    stamp(0)
    k(f"""
    s_cmp_ge_u32 s2, 256
    s_cbranch_scc1 L_end
    s_load_dwordx8 s[4:11], s[0:1], 0
    s_load_dwordx4 s[12:15], s[0:1], 32
    v_lshrrev_b32 v1, 6, v0
    v_and_b32 v0, 63, v0
    v_readfirstlane_b32 s{sWAVE}, v1
    s_and_b32 s{sXCD}, s2, 7
    s_lshr_b32 s{sJ}, s2, 3
    {"s_xor_b32 s%d, s%d, 4" % (sWAVE, sWAVE) if opts.get("swap") else ""}
    s_and_b32 s{sT0}, s{sXCD}, 3
    s_lshl_b32 s{sT0}, s{sT0}, 2
    s_and_b32 s{sT1}, s{sJ}, 3
    s_lshr_b32 s{sT2}, s{sXCD}, 2
    s_lshr_b32 s{sRB}, s{sJ}, 2
    s_lshl_b32 s{sT3}, s{sT2}, 3
    s_add_u32 s{sCT}, s{sT3}, s{sRB}
    s_lshl_b32 s{sT3}, s{sT2}, 1
    s_add_u32 s{sT3}, s{sT3}, s{sT1}
    s_cmp_ge_u32 s{sJ}, 28
    s_cselect_b32 s{sCT}, 7, s{sCT}
    s_cselect_b32 s{sT3}, s{sT3}, s{sT1}
    s_add_u32 s{sR1}, s{sT0}, s{sT3}
    s_cmp_ge_u32 s{sJ}, 30
    s_cselect_b32 s{sCT}, 15, s{sCT}
    {MAP}
    s_lshl_b32 s{sH}, s{sXCD}, 2
    s_add_u32 s{sH}, s{sH}, s{sT1}
    s_and_b32 s{sODD}, s{sH}, 1
    s_mov_b32 s{sUP}, 0
    s_mov_b32 s{sUP+1}, -1
    """)
    if opts.get("codepf", 1):
        k(f"""
        s_cmp_lt_u32 s{sJ}, 30
        s_cbranch_scc1 L_nopf
        s_getpc_b64 s[{sT2}:{sT2+1}]
        s_lshl_b32 s{sT0}, s{sWAVE}, 12
        v_lshlrev_b32 v2, 6, v0
        v_add_u32 v2, s{sT0}, v2
        v_min_u32 v2, L_code_end - L_nopf, v2
        global_load_dword v255, v2, s[{sT2}:{sT2+1}]
        L_nopf:
        """)
    k(f"""
    s_cmp_lt_u32 s{sWAVE}, 4
    s_cbranch_scc1 L_compute
    """)
    vLX, vLW = 240, 241
    k(f"""
    s_mov_b32 s{sROLE}, 1
    s_sub_u32 s{sT0}, s{sWAVE}, 4
    v_lshrrev_b32 v2, 3, v0
    v_mul_u32_u24 v2, 1280, v2
    s_and_b32 s{sT1}, s{sT0}, 1
    s_lshl_b32 s{sT1}, s{sT1}, 2
    v_lshrrev_b32 v3, 4, v0
    v_add_u32 v4, s{sT1}, v3
    v_and_b32 v5, 7, v0
    v_xor_b32 v4, v4, v5
    v_lshl_add_u32 v2, v4, 4, v2
    s_mul_i32 s{sT2}, s{sR1}, {128*1280}
    s_mul_i32 s{sT3}, s{sT0}, {8*1280}
    s_add_u32 s{sT2}, s{sT2}, s{sT3}
    v_add_u32 v{vLX}, s{sT2}, v2
    v_mul_u32_u24 v4, 3840, v3
    v_lshlrev_b32 v5, 2, v3
    v_and_b32 v6, 15, v0
    v_xor_b32 v5, v5, v6
    v_lshl_add_u32 v3, v5, 4, v4
    s_lshl_b32 s{sT2}, s{sCT}, 8
    s_mul_i32 s{sT3}, s{sT0}, {4*3840}
    s_add_u32 s{sT2}, s{sT2}, s{sT3}
    v_add_u32 v{vLW}, s{sT2}, v3
    s_lshl_b32 s{sLW}, s{sT0}, 10
    s_lshl_b32 s{sT1}, s{sXCD}, 2
    s_lshr_b32 s96, {hex(opts.get("xrot", 0x30858530))}, s{sT1}
    s_and_b32 s96, s96, 15
    s_waitcnt lgkmcnt(0)
    """)
    stamp(1)
    srd(sX, 4, 2621440); srd(sW, 6, 2457600)
    k(f"""
    s_cmp_ge_u32 s{sCT}, 15
    s_cbranch_scc1 L_ld_idle
    """)
    cnt = []
    def nextk():
        k("s_add_u32 s96, s96, 1\ns_cmp_ge_u32 s96, 10\ns_cselect_b32 s96, 0, s96")
    def issue(c):
        slot = ((c + 3) % NSLOT) * SLOT
        n = 0
        if c < 10:
            k(f"s_mul_i32 s97, s96, {64*3840}")
            for t in range(4):
                k(f"s_add_u32 m0, s{sLW}, {slot + t*4096}")
                k(f"s_add_u32 s{sT5}, s97, {t*16*3840}")
                k(f"buffer_load_dwordx4 v{vLW}, s[{sW}:{sW+3}], s{sT5} offen lds"); n += 1
            k(f"s_lshl_b32 s97, s96, 7")
            for t in range(3):
                k(f"s_add_u32 m0, s{sLW}, {slot + 16384 + t*4096}")
                k(f"s_add_u32 s{sT5}, s97, {t*32*1280}")
                k(f"buffer_load_dwordx4 v{vLX}, s[{sX}:{sX+3}], s{sT5} offen lds"); n += 1
            nextk()
        else:
            for p in range(5):
                k(f"s_lshl_b32 s97, s96, 7")
                k(f"s_add_u32 m0, s{sLW}, {slot + p*4096}")
                k(f"s_add_u32 s{sT5}, s97, {3*32*1280}")
                k(f"buffer_load_dwordx4 v{vLX}, s[{sX}:{sX+3}], s{sT5} offen lds"); n += 1
                nextk()
        cnt.append(n)
    for c in range(DEPTH):
        issue(c)
        if c == 0: stamp(2)
    stamp(3, 1)
    srd(sWS, 14, WS_SIZE)
    k("s_branch L_prep")
    k("L_ld_idle:")
    srd(sWS, 14, WS_SIZE); srd(sWO, 8, 819200)
    TP = opts.get("tailpf", 0)
    XP = opts.get("xpf", 0)
    k(f"""
    v_lshlrev_b32 v2, 4, v0
    s_mov_b32 m0, s{sLW}
    s_and_b32 s{sT1}, s{sJ}, 1
    s_lshl_b32 s{sT2}, s{sT1}, 3
    s_add_u32 s{sT2}, s{sT2}, s{sXCD}
    """)
    def warm(lab, srd_, n):
        k(f"""
        s_mov_b32 s{sT3}, 0
        {lab}:
        buffer_load_dwordx4 v2, s[{srd_}:{srd_+3}], s{sT0} offen lds
        s_add_u32 s{sT0}, s{sT0}, 4096
        s_add_u32 s{sT3}, s{sT3}, 1
        {"s_cmp_ge_u32 s%d, 819200" % sT0 if srd_ == sWO else ""}
        {"s_cselect_b32 s%d, s%d, s%d" % (sT0, sLW, sT0) if srd_ == sWO else ""}
        s_waitcnt vmcnt(12)
        s_cmp_lt_u32 s{sT3}, {n}
        s_cbranch_scc1 {lab}
        """)
    if TP:
        k(f"s_mul_i32 s{sT0}, s{sT2}, {4*TP*3840}\ns_add_u32 s{sT0}, s{sT0}, {(640-64*TP)*3840}\ns_add_u32 s{sT0}, s{sT0}, s{sLW}")
        warm("L_tpw", sW, (15 * TP + 3) // 4)
    if XP:
        k(f"s_mul_i32 s{sT0}, s{sT2}, {128*1280}\ns_add_u32 s{sT0}, s{sT0}, {96*1280}\ns_add_u32 s{sT0}, s{sT0}, s{sLW}")
        warm("L_tpx", sX, 10)
    k(f"""
    s_mul_i32 s{sT0}, s{sT1}, 409600
    s_mul_i32 s{sT3}, s{sXCD}, {opts.get("wrot", 49152)}
    s_add_u32 s{sT0}, s{sT0}, s{sT3}
    s_add_u32 s{sT0}, s{sT0}, s{sLW}
    """)
    if opts.get("sparse"):
        k(f"""
        v_lshlrev_b32 v2, 7, v0
        s_mul_i32 s{sT0}, s{sT1}, 409600
        s_mul_i32 s{sT3}, s{sXCD}, 49152
        s_add_u32 s{sT0}, s{sT0}, s{sT3}
        s_lshl_b32 s{sT3}, s{sLW}, 3
        s_add_u32 s{sT0}, s{sT0}, s{sT3}
        s_mov_b32 s{sT4}, 0
        L_warm:
        buffer_load_dword v254, v2, s[{sWO}:{sWO+3}], s{sT0} offen {"nt" if opts.get("sparse") == 2 else ""}
        s_add_u32 s{sT0}, s{sT0}, 32768
        s_sub_u32 s{sT5}, s{sT0}, 819200
        s_cmp_ge_u32 s{sT0}, 819200
        s_cselect_b32 s{sT0}, s{sT5}, s{sT0}
        s_add_u32 s{sT4}, s{sT4}, 1
        s_cmp_lt_u32 s{sT4}, {opts.get("nwarm", 13)}
        s_cbranch_scc1 L_warm
        """)
    else:
        warm("L_warm", sWO, opts.get("nwarm", 24))
    k(f"""
    s_waitcnt vmcnt(0)
    s_branch L_prep
    """)

    AREG = 96
    ACCS = [16, 32, 48, 48]
    BR = 64
    PK = 80
    vXb = [[2, 3, 4, 5], [6, 7, 8, 9], [88, 89, 90, 91]]
    vWb = [10, 11, 92]
    vSA, vSB, vTG, vZ0, vFA = 12, 13, 14, 15, 1
    k("L_compute:")
    k(f"""
    s_mov_b32 s{sROLE}, 0
    {"s_setprio 1" if opts.get("swap") == 1 else ""}
    v_and_b32 v16, 31, v0
    v_lshrrev_b32 v17, 5, v0          ; h
    v_bfe_u32 v18, v0, 1, 3
    v_xor_b32 v18, v18, v17           ; y
    v_lshlrev_b32 v19, 7, v16         ; row*128
    """)
    for s in range(4):
        k(f"v_xor_b32 v20, {2*s}, v18\nv_lshl_add_u32 v{vXb[0][s]}, v20, 4, v19")
        k(f"v_add_u32 v{vXb[1][s]}, {2*SLOT}, v{vXb[0][s]}")
    k(f"""
    v_bfe_u32 v20, v0, 2, 2           ; r
    v_lshl_add_u32 v21, v17, 3, v20   ; 8h + r
    v_lshlrev_b32 v21, 8, v21         ; *256
    v_bfe_u32 v22, v0, 4, 1           ; g&1
    v_bfe_u32 v23, v0, 1, 1           ; c>>1
    v_lshl_add_u32 v22, v22, 1, v23
    v_and_b32 v23, 1, v0
    v_lshl_add_u32 v21, v23, 3, v21
    v_lshl_add_u32 v21, v22, 4, v21
    v_xor_b32 v22, s{sWAVE}, v20
    v_lshl_add_u32 v{vWb[0]}, v22, 6, v21
    v_add_u32 v{vWb[1]}, {2*SLOT}, v{vWb[0]}
    v_lshlrev_b32 v{vSA}, 4, v0               ; lane*16
    v_lshlrev_b32 v{vSB}, 4, v16
    v_lshl_add_u32 v{vSB}, v17, 15, v{vSB}    ; (l&31)*16 + h*32768
    v_mov_b32 v{vZ0}, 0
    s_lshl_b32 s{sT0}, s{sCT}, 2
    s_add_u32 s{sT0}, s{sT0}, s{sWAVE}
    s_lshl_b32 s{sSTO}, s{sT0}, 17
    s_lshl_b32 s{sT1}, s{sR1}, 11
    s_add_u32 s{sSTO}, s{sSTO}, s{sT1}
    ; consumers of this wave's 32 columns: ty = cg/20, c = cg%20 ; heads floor(8c/5) .. floor((8c+12)/5)-1 ; row blocks r>>1 (+1 for K,V)
    s_mul_i32 s{sT1}, s{sT0}, 205
    s_lshr_b32 s{sT1}, s{sT1}, 12             ; ty
    s_mul_i32 s{sT2}, s{sT1}, 20
    s_sub_u32 s{sT2}, s{sT0}, s{sT2}          ; c
    s_mul_i32 s{sT3}, s{sT2}, 1640
    s_lshr_b32 s{sT3}, s{sT3}, 10             ; floor(8c/5)
    s_lshl_b32 s{sT2}, s{sT2}, 3
    s_add_u32 s{sT2}, s{sT2}, 12
    s_mul_i32 s{sT2}, s{sT2}, 205
    s_lshr_b32 s{sT2}, s{sT2}, 10             ; floor((8c+12)/5)
    v_and_b32 v20, 3, v0
    v_add_u32 v20, s{sT3}, v20                ; head
    v_lshrrev_b32 v21, 2, v0                  ; Rsel
    s_lshr_b32 s{sT3}, s{sR1}, 1
    s_min_u32 s{sT1}, s{sT1}, 1
    s_add_u32 s{sT1}, s{sT1}, s{sT3}
    s_min_u32 s{sT1}, s{sT1}, 7
    v_add_u32 v21, s{sT3}, v21
    v_cmp_gt_u32 vcc, s{sT2}, v20
    v_cmp_ge_u32 s[{sT4}:{sT4+1}], s{sT1}, v21
    s_and_b64 s[{sEX}:{sEX+1}], vcc, s[{sT4}:{sT4+1}]
    v_lshl_add_u32 v20, v21, 5, v20
    v_mul_u32_u24 v{vFA}, 384, v20
    v_add_u32 v{vFA}, {CN1_OFF}, v{vFA}
    s_cmp_lt_u32 s{sCT}, 5
    s_cselect_b32 s{sSC}, {hex(f2u(QSCALE))}, 1.0
    s_waitcnt lgkmcnt(0)
    """)
    MP_ = opts.get("mpf", 0)
    if MP_:
        W0 = opts.get("mpw0", 192)
        wper = ((640 - W0) * 3840 // 256 + 127) // 128 * 128
        srd(sX, 4, 2621440); srd(sW, 6, 2457600)
        k(f"""
        s_lshl_b32 s{sT0}, s{sWAVE}, 10
        s_mul_i32 s{sT1}, s2, 10240
        s_add_u32 s{sT1}, s{sT1}, s{sT0}
        s_mul_i32 s{sT2}, s2, {wper}
        s_add_u32 s{sT2}, s{sT2}, {W0*3840}
        s_add_u32 s{sT2}, s{sT2}, s{sT0}
        """)
        if MP_ & 2:
            for i in range((wper + 4095) // 4096):
                k(f"buffer_load_dwordx4 v[64:67], v{vSA}, s[{sW}:{sW+3}], s{sT2} offen\ns_add_u32 s{sT2}, s{sT2}, 4096")
        if MP_ & 1:
            for i in range(3):
                if i == 2: k(f"s_cmp_ge_u32 s{sWAVE}, 2\ns_cbranch_scc1 L_mpf_done")
                k(f"buffer_load_dwordx4 v[64:67], v{vSA}, s[{sX}:{sX+3}], s{sT1} offen\ns_add_u32 s{sT1}, s{sT1}, 4096")
        k("L_mpf_done:")
    srd(sWS, 14, WS_SIZE)
    TL = opts.get("tlb", 0)
    if TL:
        n = (13 << 20) >> TL
        srd(sOUT, 10, 2621440); srd(sWO, 8, 819200)
        k(f"""
        s_lshl_b32 s{sT0}, s{sWAVE}, 6
        v_add_u32 v20, s{sT0}, v0
        v_lshlrev_b32 v21, {TL}, v20
        s_lshl_b32 s{sT1}, s2, 7
        s_add_u32 s{sT0}, s{sT1}, 0x40000
        v_add_u32 v21, s{sT0}, v21
        v_cmp_gt_u32 vcc, {n}, v20
        s_and_saveexec_b64 s[{sT2}:{sT2+1}], vcc
        s_cbranch_execz L_tl1
        buffer_atomic_add v{vZ0}, v21, s[{sWS}:{sWS+3}], 0 offen sc1
        L_tl1:
        s_mov_b64 exec, -1
        s_cmp_lg_u32 s{sWAVE}, 3
        s_cbranch_scc1 L_tl2
        v_lshlrev_b32 v21, {max(TL, 16)}, v0
        s_mov_b64 exec, 3
        buffer_load_dword v254, v21, s[{sOUT}:{sOUT+3}], s{sT1} offen
        buffer_load_dword v253, v21, s[{sWO}:{sWO+3}], s{sT1} offen
        s_mov_b64 exec, -1
        L_tl2:
        """)
    k(f"""
    s_cmp_lt_u32 s{sCT}, 15
    s_cbranch_scc1 L_p1_go
    s_and_b32 s{sT0}, s{sJ}, 1
    s_lshl_b32 s{sT0}, s{sT0}, 3
    s_add_u32 s{sT0}, s{sT0}, s{sXCD}
    s_lshl_b32 s{sT0}, s{sT0}, 2
    s_add_u32 s{sT0}, s{sT0}, s{sWAVE}
    s_mul_i32 s{sT0}, s{sT0}, {20*128}
    s_add_u32 s{sT0}, s{sT0}, {CN1_OFF}
    v_lshlrev_b32 v20, 7, v0
    v_mov_b32 v21, 1
    s_mov_b64 exec, 0xfffff
    buffer_store_dword v{vZ0}, v20, s[{sWS}:{sWS+3}], s{sT0} offen sc1
    s_mov_b64 exec, 1
    s_waitcnt vmcnt(0)
    global_atomic_add v{vZ0}, v21, s[12:13] sc1
    s_mov_b64 exec, -1
    s_branch L_prep
    L_p1_go:
    """)
    def rdA(c, s):
        sl = (c + 3) % NSLOT
        o = (sl & 1) * SLOT + s * 16 * 256
        va = vWb[sl >> 1]
        a = AREG + 4 * (4 * c + s)
        k(f"ds_read_b64_tr_b16 v[{a}:{a+1}], v{va} offset:{o}")
        k(f"ds_read_b64_tr_b16 v[{a+2}:{a+3}], v{va} offset:{o + 4*256}")
    def rdB(c, s, off, f):
        sl = (c + 3) % NSLOT
        b = BR + 4 * f
        k(f"ds_read_b128 v[{b}:{b+3}], v{vXb[sl >> 1][s]} offset:{(sl & 1) * SLOT + off}")
    def mf(acc, ks, f, first):
        a = AREG + 4 * ks; b = BR + 4 * f
        cs = "0" if first else f"v[{acc}:{acc+15}]"
        k(f"v_mfma_f32_32x32x16_bf16 v[{acc}:{acc+15}], v[{a}:{a+3}], v[{b}:{b+3}], {cs}")
    fr = lambda s, g: 3 * (s & 1) + g
    def rd(c, s):
        rdA(c, s)
        for g in range(3): rdB(c, s, 16384 + g * 4096, fr(s, g))
    def mf3(c, s):
        for g in range(3): mf(ACCS[g], 4*c+s, fr(s, g), c == 0 and s == 0)
    PIPE = opts.get("pipe", 1)
    if PIPE:
        if MP_: k("s_waitcnt vmcnt(0)")
        k("s_barrier      ; B_0")
        stamp(1)
        rd(0, 0); rd(0, 1)
        for c in range(10):
            if c == 4: k(f"global_load_dword v{vTG}, v{vZ0}, s[12:13] sc1")
            if c == 8:
                readychk("L_rdy1", vTG, vZ0, False)
                k(f"v_mov_b32 v{vTG}, 1")
            for s in range(2):
                k("s_waitcnt lgkmcnt(5)")
                mf3(c, s); rd(c, s + 2)
            k("s_waitcnt lgkmcnt(5)")
            mf3(c, 2)
            k("s_waitcnt lgkmcnt(0)")
            k(f"s_barrier      ; B_{c+1}")
            if c < 9: rd(c + 1, 0)
            else:
                for i in range(3):
                    rdB(10, i, 0, i)
            mf3(c, 3)
            if c < 9: rd(c + 1, 1)
    else:
      for c in range(10):
        k(f"s_barrier      ; B_{c}")
        if c == 0: stamp(1)
        rd(c, 0); rd(c, 1)
        if c == 5: k(f"global_load_dword v{vTG}, v{vZ0}, s[12:13] sc1")
        if c == 9:
            readychk("L_rdy1", vTG, vZ0, False)
            k(f"v_mov_b32 v{vTG}, 1")
        for s in range(4):
            k(f"s_waitcnt lgkmcnt({5 if s < 3 else 0})")
            mf3(c, s)
            if s < 2: rd(c, s + 2)
    stamp(2)
    def ep_pair(c0, c1, q, vaddr, off_s):
        return [f"v_cvt_pk_bf16_f32 v{q}, v{c0}, v{c0+1}",
                f"v_cvt_pk_bf16_f32 v{q+1}, v{c0+2}, v{c0+3}",
                f"v_cvt_pk_bf16_f32 v{q+2}, v{c1}, v{c1+1}",
                f"v_cvt_pk_bf16_f32 v{q+3}, v{c1+2}, v{c1+3}",
                f"s_add_u32 s{sT5}, s{sSTO}, {off_s}",
                "s_nop 0",
                f"v_permlane32_swap_b32 v{q}, v{q+2}",
                f"v_permlane32_swap_b32 v{q+1}, v{q+3}",
                f"buffer_store_dwordx4 v[{q}:{q+3}], v{vaddr}, s[{sWS}:{sWS+3}], s{sT5} offen sc1"]
    def mulq(c):
        return [f"v_mul_f32 v{c+i}, s{sSC}, v{c+i}" for i in range(4)]
    def ep_part0():
        o = []
        for b in range(4):
            o += mulq(ACCS[0] + 4*b) + mulq(ACCS[1] + 4*b)
            o += ep_pair(ACCS[0] + 4*b, ACCS[1] + 4*b, PK + 4*(b & 1), vSA, b * 32768)
        return o
    def ep_part(g):
        acc = ACCS[g]
        o = []
        for b in (0, 2):
            o += mulq(acc + 4*b) + mulq(acc + 4*b + 4)
            o += ep_pair(acc + 4*b, acc + 4*b + 4, PK + 2*b, vSB, b * 32768 + g * 512)
        return o
    def flag(st, vm):
        return [f"s_mov_b64 exec, s[{sEX}:{sEX+1}]", f"s_waitcnt vmcnt({vm})",
                f"buffer_atomic_add v{vTG}, v{vFA}, s[{sWS}:{sWS+3}], 0 offen offset:{st*128} sc1", "s_mov_b64 exec, -1"]
    steps = []
    for c in range(10, 12):
        hf = c - 10
        for p in range(5):
            for s in range(4):
                steps.append((c, hf * 20 + p * 4 + s, s, p * 4096))
    LOOK = 3
    PER = opts.get("per", 3)
    fill = {}
    def spread(instrs, start, per):
        i = start
        while instrs:
            fill.setdefault(i, []).extend(instrs[:per]); instrs = instrs[per:]; i += 1
        return i
    G2T = 88 if NSLOT == 4 else None
    def g2_conv():
        o = []
        for b in range(4):
            c = ACCS[2] + 4 * b
            o += mulq(c) + [f"v_cvt_pk_bf16_f32 v{G2T+2*b}, v{c}, v{c+1}", f"v_cvt_pk_bf16_f32 v{G2T+2*b+1}, v{c+2}, v{c+3}"]
        return o
    def g2_store():
        o = []
        for b in (0, 2):
            q = G2T + 2 * b
            o += [f"s_add_u32 s{sT5}, s{sSTO}, {b*32768 + 2*512}", f"v_permlane32_swap_b32 v{q}, v{q+2}", f"v_permlane32_swap_b32 v{q+1}, v{q+3}",
                  f"buffer_store_dwordx4 v[{q}:{q+3}], v{vSB}, s[{sWS}:{sWS+3}], s{sT5} offen sc1"]
        return o
    e0 = spread(g2_store() + ep_part0(), 0, PER)
    FAT = opts.get("fat", 38)
    assert e0 <= FAT
    fill.setdefault(FAT, []).extend(flag(0, 4))
    if not PIPE:
        k("s_barrier      ; B_10")
        for i in range(LOOK):
            c, ks, s, off = steps[i]
            rdB(c, s, off, i % 4)
    k("s_nop 8" if not PIPE else "s_nop 11")
    for ins in g2_conv(): k(ins)
    for i, (c, ks, s, off) in enumerate(steps):
        n = i + LOOK
        if n < 40:
            cn, ksn, sn, offn = steps[n]
            if cn != steps[n - 1][0]: k(f"s_barrier      ; B_{cn}")
            rdB(cn, sn, offn, n % 4)
        k(f"s_waitcnt lgkmcnt({min(LOOK, 39 - i)})")
        mf(ACCS[3], ks, i % 4, ks == 0)
        for ins in fill.get(i, []): k(ins)
        if i == FAT: stamp(6)
    stamp(14, 0)
    k("s_nop 11")
    for ins in ep_part(3): k(ins)
    for ins in flag(1, 3): k(ins)
    stamp(5)

    vKA1, vKA2, vVA0, vVA1 = 2, 3, 4, 5
    vOA, vOH = 6, 7
    vCW, vCN = 8, 9
    vQA1, vQA2 = 10, 11
    vQ1, vQ2 = 16, 20
    MK, MP, PD = 32, 48, 56
    S = [64, 80]
    P = 96
    KF = [104, 112]
    VF = [120, 128]
    OA = 136
    k("L_prep:")
    k(f"""
    v_and_b32 v25, 31, v0              ; q
    v_lshrrev_b32 v26, 5, v0           ; h
    v_lshlrev_b32 v27, 2, v26
    v_sub_u32 v27, v27, v25            ; 4h - q
    """)
    for i in range(16):
        key = 8 * (i >> 2) + (i & 3)
        k(f"v_add_u32 v{MK+i}, {key-1}, v27")
        k(f"v_ashrrev_i32 v{MK+i}, 31, v{MK+i}")
    k(f"s_mov_b32 s{sT1}, 0xffff")
    for j in range(8):
        k(f"v_bfi_b32 v{MP+j}, s{sT1}, v{MK+2*j}, v{MK+2*j+1}")
    k(f"""
    s_cmp_eq_u32 s{sROLE}, 1
    s_cbranch_scc1 L_nof
    s_cmp_ge_u32 s{sCT}, 15
    s_cbranch_scc1 L_nof
    """)
    for ins in flag(2, 1): k(ins)
    stamp(3, 0)
    k(f"""
    L_nof:
    s_lshl_b32 s{sT0}, s{sWAVE}, 9        ; w*512
    v_lshlrev_b32 v27, 4, v25
    v_add_u32 v27, s{sT0}, v27            ; (32w+q)*16
    v_lshl_add_u32 v{vKA1}, v26, 13, v27
    v_add_u32 v{vKA1}, {LDS_K}, v{vKA1}
    s_lshl_b32 s{sT1}, s{sODD}, 3
    s_add_u32 s{sT2}, s{sT1}, {LDS_K+16384}
    v_add_u32 v{vKA2}, s{sT2}, v27
    s_sub_u32 s{sT2}, {LDS_K+16384+12*16+8}, s{sT1}
    v_mov_b32 v31, s{sT2}
    v_cndmask_b32 v{vKA2}, v{vKA2}, v31, s[{sUP}:{sUP+1}]
    v_lshl_add_u32 v{vCW}, v25, 8, v31
    v_lshl_add_u32 v{vCW}, v26, 4, v{vCW}
    s_sub_u32 s{sT2}, {LDS_V+16384+511*16+8}, s{sT1}
    v_mov_b32 v{vCN}, s{sT2}
    v_lshl_add_u32 v{vQA1}, v26, 12, v27
    v_add_u32 v{vQA1}, {LDS_Q}, v{vQA1}
    s_add_u32 s{sT2}, s{sT1}, {LDS_Q+8192}
    v_add_u32 v{vQA2}, s{sT2}, v27
    s_lshr_b32 s{sT1}, s{sH}, 1
    s_mul_i32 s{sB0}, s{sT1}, 5            ; 5m
    s_mul_i32 s{sT2}, s{sODD}, 3
    s_add_u32 s{sT2}, s{sT2}, s{sB0}       ; blockA
    s_lshl_b32 s{sT3}, s{sRB}, 12          ; 256*RB*16
    s_lshl_b32 s{sT4}, s{sT2}, 15
    s_add_u32 s{sT4}, s{sT4}, s{sT3}
    s_add_u32 s{sT4}, s{sT4}, {O_OFF}
    v_lshl_add_u32 v{vOA}, v26, 15, v27
    v_add_u32 v{vOA}, s{sT4}, v{vOA}
    s_add_u32 s{sT4}, s{sB0}, 2
    s_lshl_b32 s{sT4}, s{sT4}, 15
    s_add_u32 s{sT4}, s{sT4}, s{sT3}
    s_lshl_b32 s{sT5}, s{sODD}, 3
    s_add_u32 s{sT4}, s{sT4}, s{sT5}
    s_add_u32 s{sT4}, s{sT4}, {O_OFF}
    v_add_u32 v{vOH}, s{sT4}, v27
    v_bfe_u32 v30, v0, 4, 1              ; g1
    v_bfe_u32 v29, v0, 1, 1              ; c>>1
    v_cmp_eq_u32 vcc, 1, v30
    v_mov_b32 v28, 2
    v_and_b32 v25, 1, v0                 ; c&1
    v_cndmask_b32 v29, v29, v28, vcc     ; p
    v_and_b32 v30, v25, v30
    v_mov_b32 v28, s{sODD}
    v_cndmask_b32 v25, v25, v28, vcc
    v_bfe_u32 v28, v0, 2, 2              ; r
    v_lshl_add_u32 v28, v26, 2, v28      ; 4h + r
    v_lshlrev_b32 v26, 2, v29            ; p<<2
    v_lshlrev_b32 v27, 13, v29           ; p*8192
    v_lshl_add_u32 v27, v25, 3, v27
    v_add_u32 v27, s{sT0}, v27
    v_add_u32 v27, {LDS_V}, v27
    v_xor_b32 v25, v28, v26
    v_lshl_add_u32 v{vVA0}, v25, 4, v27
    v_or_b32 v28, 8, v28
    v_xor_b32 v25, v28, v26
    v_lshl_add_u32 v{vVA1}, v25, 4, v27
    v_cmp_eq_u32 vcc, 1, v30
    s_cmp_eq_u32 s{sRB}, 0
    s_cselect_b32 s{sNT}, s{sWAVE}, 7
    v_cndmask_b32 v{vVA0}, v{vVA0}, v31, vcc
    v_cndmask_b32 v{vVA1}, v{vVA1}, v31, vcc
    """)
    if opts.get("zrow", 1):
        k(f"""
        v_and_b32 v25, 18, v0
        v_cmp_eq_u32 vcc, 18, v25            ; g1 && c>=2
        v_add_u32 v31, 16, v31
        s_nop 0
        v_cndmask_b32 v{vVA0}, v{vVA0}, v31, vcc
        v_cndmask_b32 v{vVA1}, v{vVA1}, v31, vcc
        """)
    k(f"""
    v_mov_b32 v22, 0x3f80
    v_mov_b32 v23, 0
    v_cndmask_b32 v22, v22, v23, s[{sUP}:{sUP+1}]
    s_cmp_eq_u32 s{sROLE}, 1
    s_cbranch_scc1 L_role_ld
    """)
    vWOA = 200
    k(f"s_lshl_b32 s{sLW}, s{sWAVE}, 10\ns_lshl_b32 s{sT0}, s{sWAVE}, 6\nv_add_u32 v26, s{sT0}, v0\ns_mul_i32 s{sWB}, s{sRB}, 160")
    for i in range(5):
        if i: k(f"v_add_u32 v26, 256, v26")
        k(f"""
        v_mul_u32_u24 v27, 6554, v26
        v_lshrrev_b32 v27, 16, v27        ; rho
        v_mul_u32_u24 v28, 10, v27
        v_sub_u32 v28, v26, v28           ; piece
        v_and_b32 v29, 0x63, v27
        v_bfe_u32 v30, v27, 2, 2          ; g
        v_lshl_add_u32 v29, v30, 3, v29
        v_bfe_u32 v30, v27, 4, 1          ; t
        v_lshl_add_u32 v29, v30, 2, v29   ; k
        v_mul_u32_u24 v29, 1280, v29
        v_lshl_add_u32 v{vWOA+i}, v28, 4, v29
        """)
    srd(sWO, 8, 819200)
    k(f"""
    s_cmp_lt_u32 s{sCT}, 15
    s_cbranch_scc1 L_BD
    """)
    readychk("L_rdy2", vTG, vZ0, True)
    k("s_branch L_BD")

    vP, vZ, vF = 220, 221, 222
    vU = 224
    TY = 80 * 32768
    k(f"""
    L_role_ld:
    v_mov_b32 v{vZ}, 0
    s_lshl_b32 s{sT1}, s{sODD}, 1
    s_add_u32 s{sT1}, s{sT1}, s{sB0}
    s_add_u32 s{sT2}, s{sT1}, 2
    s_lshr_b32 s{sT1}, s{sT1}, 2
    s_lshr_b32 s{sT2}, s{sT2}, 2
    s_sub_u32 s{sT2}, s{sT2}, s{sT1}          ; 0 or 1
    s_cmp_eq_u32 s{sRB}, 0
    s_cselect_b32 s{sNX}, 6, 10
    s_movk_i32 s{sUM}, 0x3ff
    s_cselect_b32 s{sUM}, 0x333, s{sUM}
    s_lshl_b32 s{sNX}, s{sNX}, s{sT2}
    s_and_b32 s{sT0}, s{sWAVE}, 1
    s_lshl_b32 s{sT1}, 0x155, s{sT0}
    s_and_b32 s101, s{sUM}, s{sT1}
    s_cmp_lt_u32 s{sWAVE}, 6
    s_cselect_b32 s{sUM}, s{sUM}, s101
    s_sub_u32 s{sFL}, s{sWAVE}, 4
    s_min_u32 s{sFL}, s{sFL}, 2
    s_lshl_b32 s{sT0}, s{sRB}, 5
    s_add_u32 s{sT0}, s{sT0}, s{sH}
    s_mul_i32 s{sT0}, s{sT0}, 3
    s_add_u32 s{sT0}, s{sT0}, s{sFL}
    s_lshl_b32 s{sT0}, s{sT0}, 7
    s_add_u32 s{sT0}, s{sT0}, {CN1_OFF}
    v_mov_b32 v{vF}, s{sT0}
    s_mul_i32 s{sT0}, s{sODD}, 3
    s_add_u32 s{sT0}, s{sT0}, s{sB0}
    s_lshl_b32 s{sT0}, s{sT0}, 15
    s_add_u32 s{sT1}, s{sB0}, 2
    s_lshl_b32 s{sT1}, s{sT1}, 15
    s_lshl_b32 s{sT2}, s{sRB}, 12
    s_add_u32 s{sT0}, s{sT0}, s{sT2}
    s_add_u32 s{sT1}, s{sT1}, s{sT2}
    v_lshlrev_b32 v219, 4, v0
    v_add_u32 v{vU}, s{sT0}, v219
    v_add_u32 v{vU+1}, 32768, v{vU}
    v_add_u32 v{vU+2}, s{sT1}, v219
    v_xor_b32 v{vU+3}, 64, v{vU+1}
    v_xor_b32 v{vU+4}, 128, v{vU+2}
    s_cmp_ge_u32 s{sCT}, 15
    s_cbranch_scc1 L_ld_idle2
    """)
    srd(sX, 4, 2621440); srd(sW, 6, 2457600)
    for c in range(NCH):
        k(f"s_waitcnt vmcnt({sum(cnt[c+1:])})")
        if c == 9: stamp(15)
        if c == NCH - 1: stamp(14, 1)
        k(f"s_barrier      ; B_{c}")
        if c == 7: k(f"global_load_dword v{vP}, v{vZ}, s[12:13] sc1")
        if len(cnt) < NCH: issue(len(cnt))
    k(f"""
    s_branch L_ld_go
    L_ld_idle2:
    global_load_dword v{vP}, v{vZ}, s[12:13] sc1
    L_ld_go:
    """)
    readychk("L_rdy3", vP, vZ, False)
    k(f"""
    L_fetch:
    s_lshl_b32 s{sSTO}, s{sFL}, 8
    s_add_u32 s{sSTO}, s{sSTO}, 1024
    s_cmp_eq_u32 s{sFL}, 1
    s_cselect_b32 s{sSTO}, 0, s{sSTO}
    s_cselect_b32 s{sT4}, -1, 0
    s_mov_b64 exec, 1
    """)
    gpoll("L_poll1", vP, vF, f"s{sNX}")
    stamp(4, 1)
    k(f"""
    s_mov_b32 exec_lo, -1
    s_mov_b32 exec_hi, s{sT4}
    """)
    for u in (0, 1, 4, 5, 8, 9, 2, 3, 6, 7):
        ty = (u + 2) >> 2; t1 = (u + 2) & 3
        k(f"s_bitcmp1_b32 s{sUM}, {u}\ns_cbranch_scc0 L_skipu{u}")
        for p in range(3):
            ldsb = [LDS_Q + (t1 - 2) * 2048 + p * 4096, LDS_K + t1 * 2048 + p * 8192, LDS_V + t1 * 2048 + p * 8192][ty]
            vr = vU + p if (ty < 2 or p == 0) else vU + 2 + p
            k(f"s_add_u32 m0, s{sSTO}, {ldsb}")
            if p == 0: k(f"s_add_u32 s{sT5}, s{sSTO}, {ty * TY + (t1 - 2) * 2048}")
            else: k("s_nop 0")
            k(f"buffer_load_dwordx4 v{vr}, s[{sWS}:{sWS+3}], s{sT5} offen sc1 lds")
        k(f"L_skipu{u}:")
    stamp(5)
    k(f"""
    s_mov_b64 exec, -1
    s_waitcnt vmcnt(0)
    """)
    stamp(6)
    k(f"""
    s_cmp_lg_u32 s{sWAVE}, 7
    s_cbranch_scc1 L_BD
    ds_write_b32 v{vCN}, v{vZ}
    s_waitcnt lgkmcnt(0)
    L_BD:
    s_barrier
    """)
    stamp(7)

    def LK(kk, buf):
        off = (8 - kk) * 512
        f = KF[buf]
        k(f"ds_read_b128 v[{f}:{f+3}], v{vKA1} offset:{off}")
        k(f"ds_read_b64 v[{f+4}:{f+5}], v{vKA2} offset:{off}")
    def LV(kk, buf):
        off = (8 - kk) * 512
        f = VF[buf]
        for u in range(2):
            for t in range(2):
                k(f"ds_read_b64_tr_b16 v[{f+4*u+2*t}:{f+4*u+2*t+1}], v{[vVA0, vVA1][t]} offset:{off + u*256}")
    def QK(buf, sbuf):
        f = KF[buf]; s = S[sbuf]
        k(f"v_mfma_f32_32x32x16_bf16 v[{s}:{s+15}], v[{f}:{f+3}], v[{vQ1}:{vQ1+3}], 0")
        k(f"v_mfma_f32_32x32x8_bf16 v[{s}:{s+15}], v[{f+4}:{f+5}], v[{vQ2}:{vQ2+1}], v[{s}:{s+15}]")
    def EXP(sbuf, lo, hi):
        s = S[sbuf]
        for i in range(lo, hi): k(f"v_exp_f32 v{s+i}, v{s+i}")
    def CVT(sbuf, lo, hi):
        s = S[sbuf]
        for i in range(lo, hi): k(f"v_cvt_pk_bf16_f32 v{P+i}, v{s+2*i}, v{s+2*i+1}")
    def PV(buf, u, p=P, first=False):
        f = VF[buf] + 4 * u
        cs = "0" if first else f"v[{OA}:{OA+15}]"
        k(f"v_mfma_f32_32x32x16_bf16 v[{OA}:{OA+15}], v[{f}:{f+3}], v[{p+4*u}:{p+4*u+3}], {cs}")
    def wo_group(gi):
        for i in range(5):
            k(f"s_add_u32 m0, s{sLW}, {LDS_WO + (gi*5+i)*4096}")
            if i == 0: k(f"s_add_u32 s{sT5}, s{sWB}, {gi*4*40960}")
            else: k("s_nop 0")
            k(f"buffer_load_dwordx4 v{vWOA+i}, s[{sWO}:{sWO+3}], s{sT5} offen lds")
    def wo_opt(gi):
        if opts.get("nowo"): return
        k(f"s_cmp_eq_u32 s{sROLE}, 1\ns_cbranch_scc1 L_nowo{gi}")
        wo_group(gi)
        k(f"L_nowo{gi}:")

    PR = opts.get("pr", 0)
    PRS = {0: None, 1: [3, 3, 2, 2, 1, 1, 0, 0], 2: [3, 2, 2, 1, 1, 0, 0, 0], 3: [3, 3, 3, 2, 2, 1, 1, 0], 4: [1, 1, 1, 1, 0, 0, 0, 0], 5: [3, 2, 1, 0, 3, 2, 1, 0]}[PR]
    def setpr(st):
        if PRS and (st == 0 or PRS[st] != PRS[st - 1]): k(f"s_setprio {PRS[st]}")
    setpr(0)
    k(f"""
    s_mov_b32 exec_lo, 0x3ffff
    s_mov_b32 exec_hi, 0x3ffff
    ds_write_b64 v{vCW}, v[22:23]
    s_mov_b64 exec, -1
    ds_read_b128 v[{vQ1}:{vQ1+3}], v{vQA1}
    ds_read_b64 v[{vQ2}:{vQ2+1}], v{vQA2}
    """)
    LK(0, 0); LK(8, 1); LV(0, 0); LV(8, 1)
    k(f"""
    s_waitcnt lgkmcnt(12)
    v_cndmask_b32 v{vQ2}, v{vQ2}, 0, s[{sUP}:{sUP+1}]
    v_cndmask_b32 v{vQ2+1}, v{vQ2+1}, 0, s[{sUP}:{sUP+1}]
    s_waitcnt lgkmcnt(10)
    s_cmp_eq_u32 s{sRB}, 0
    """)
    QK(0, 0)
    k("s_cbranch_scc1 L_nofar")
    k("s_waitcnt lgkmcnt(8)")
    QK(1, 1)
    k("L_far_done:")
    LK(1, 0)
    wo_opt(0)
    k("s_nop 7")
    s = S[0]
    for i in range(16): k(f"v_bfi_b32 v{s+i}, v{MK+i}, v{s+i}, v{S[1]+i}")
    k(f"v_max3_f32 v25, v{s}, v{s+1}, v{s+2}")
    k(f"v_max3_f32 v26, v{s+3}, v{s+4}, v{s+5}")
    k(f"v_max3_f32 v25, v25, v{s+6}, v{s+7}")
    k(f"v_max3_f32 v26, v26, v{s+8}, v{s+9}")
    k(f"v_max3_f32 v25, v25, v{s+10}, v{s+11}")
    k(f"v_max3_f32 v26, v26, v{s+12}, v{s+13}")
    k(f"v_max3_f32 v25, v25, v{s+14}, v{s+15}")
    k(f"""
    v_max_f32 v25, v25, v26
    v_mov_b32 v26, v25
    s_nop 1
    v_permlane32_swap_b32 v25, v26
    v_max_f32 v25, v25, v26
    v_and_b32 v25, 0xffff0000, v25
    v_lshrrev_b32 v26, 16, v25
    v_xor_b32 v26, 0x8000, v26
    v_cndmask_b32 v{vQ2}, v{vQ2}, v26, s[{sUP}:{sUP+1}]
    """)
    astamp(5)
    for i in range(4): k(f"v_sub_f32 v{s+i}, v{s+i}, v25")
    k("s_waitcnt lgkmcnt(0)")
    QK(0, 1)
    LK(2, 1)
    for i in range(4, 16): k(f"v_sub_f32 v{s+i}, v{s+i}, v25")
    EXP(0, 0, 8)
    CVT(0, 0, 4)
    for j in range(4): k(f"v_and_b32 v{PD+j}, v{MP+j}, v{P+j}")
    for j in range(4): k(f"v_xor_b32 v{P+j}, v{PD+j}, v{P+j}")
    EXP(0, 8, 10)
    PV(0, 0, PD, first=True)
    EXP(0, 10, 13)
    k(f"s_cmp_eq_u32 s{sRB}, 0\ns_cbranch_scc1 L_nofar1")
    PV(1, 0)
    k("L_nofar1:")
    EXP(0, 13, 16)
    k("s_nop 0")
    CVT(0, 4, 8)
    for j in range(4, 8): k(f"v_and_b32 v{PD+j}, v{MP+j}, v{P+j}")
    for j in range(4, 8): k(f"v_xor_b32 v{P+j}, v{PD+j}, v{P+j}")
    PV(0, 1, PD)
    k(f"s_cbranch_scc1 L_nofar2")
    PV(1, 1)
    k("L_nofar2:")
    LV(1, 0)
    k(f"s_cmp_eq_u32 s{sNT}, 0\ns_cbranch_scc1 L_worest1")
    astamp(1)
    for i in range(7):
        if i == 2: astamp(2)
        if i == 4: astamp(3)
        if i == 6: astamp(14)
        cur = (i + 1) & 1; nxt = i & 1
        setpr(i + 1)
        if i < 6:
            k("s_waitcnt lgkmcnt(4)")
            QK((i + 1) & 1, nxt)
        if i < 5: LK(i + 3, i & 1)
        if i < 4: wo_opt(i + 1)
        EXP(cur, 0, 8)
        CVT(cur, 0, 4)
        EXP(cur, 8, 10)
        k(f"s_waitcnt lgkmcnt({2 if i < 5 else 0})")
        PV(i & 1, 0)
        EXP(cur, 10, 16)
        k("s_nop 0")
        CVT(cur, 4, 8)
        if i < 6: LV(i + 2, (i + 1) & 1)
        else: k("s_nop 1")
        PV(i & 1, 1)
        if i < 6:
            k(f"s_cmp_eq_u32 s{sNT}, {i+1}")
            k(f"s_cbranch_scc1 {'L_worest%d' % (i+2) if i < 3 else 'L_p2_done'}")
    k("L_p2_done:")
    if PRS: k("s_setprio 0" if not opts.get("prend") else f"s_setprio {opts['prend']}")
    astamp(15)
    k(f"""
    s_lshl_b32 s{sT2}, s{sRB}, 5
    s_and_b32 s{sT3}, s{sWAVE}, 3
    s_add_u32 s{sT2}, s{sT2}, s{sT3}
    s_lshl_b32 s{sT2}, s{sT2}, 1
    s_add_u32 s{sT2}, s{sT2}, s{sROLE}
    s_lshl_b32 s{sT2}, s{sT2}, 7
    s_add_u32 s{sFL}, s{sT2}, {CN2_OFF}
    v_mov_b32 v27, {hex(f2u(2.0**60))}
    v_mov_b32 v30, {hex(f2u(2.0**-60))}
    v_mov_b32 v28, 1
    v_lshlrev_b32 v29, 10, v0
    s_nop 0
    v_mov_b32 v25, v{OA+8}
    v_mov_b32 v26, v{OA+8}
    s_nop 1
    v_permlane32_swap_b32 v25, v26
    v_cmp_nlt_f32 vcc, v26, v27
    v_cmp_ngt_f32 s[{sT0}:{sT0+1}], v26, v30
    s_or_b64 vcc, vcc, s[{sT0}:{sT0+1}]
    s_cbranch_vccnz L_slow
    L_p2_norm:
    v_rcp_f32 v26, v26
    s_nop 0
    """)
    for i in range(12): k(f"v_mul_f32 v{OA+i}, v{OA+i}, v26")
    k(f"""
    v_cvt_pk_bf16_f32 v{P}, v{OA}, v{OA+1}
    v_cvt_pk_bf16_f32 v{P+1}, v{OA+2}, v{OA+3}
    v_cvt_pk_bf16_f32 v{P+2}, v{OA+4}, v{OA+5}
    v_cvt_pk_bf16_f32 v{P+3}, v{OA+6}, v{OA+7}
    v_cvt_pk_bf16_f32 v{P+4}, v{OA+8}, v{OA+9}
    v_cvt_pk_bf16_f32 v{P+5}, v{OA+10}, v{OA+11}
    v_permlane32_swap_b32 v{P}, v{P+2}
    v_permlane32_swap_b32 v{P+1}, v{P+3}
    buffer_store_dwordx4 v[{P}:{P+3}], v{vOA}, s[{sWS}:{sWS+3}], 0 offen sc1
    s_mov_b32 exec_hi, 0
    buffer_store_dwordx2 v[{P+4}:{P+5}], v{vOH}, s[{sWS}:{sWS+3}], 0 offen sc1
    """)
    stamp(8)
    k(f"""
    s_movk_i32 exec_lo, 0xff
    s_waitcnt vmcnt(0)
    buffer_atomic_add v28, v29, s[{sWS}:{sWS+3}], s{sFL} offen sc1
    """)
    stamp(9)
    k(f"""
    s_cmp_eq_u32 s{sROLE}, 1
    s_cbranch_scc1 L_fin
    s_mov_b32 exec_lo, 1
    ds_add_u32 v{vCN}, v28
    s_mov_b64 exec, -1
    v_mov_b32 v12, v{vCN}
    s_setprio 0
    """)

    NPRE = 7
    B3 = 16
    A3 = 96
    C3 = 236
    srd(sOUT, 10, 2621440)
    k(f"""
    v_lshrrev_b32 v2, 2, v0            ; 4g + r
    v_mul_u32_u24 v2, 160, v2
    v_and_b32 v3, 3, v0
    v_lshl_add_u32 v2, v3, 3, v2       ; steps 0..9
    v_add_u32 v3, {10*5120}, v2        ; steps 10..19
    v_lshrrev_b32 v4, 4, v0
    v_and_b32 v5, 15, v0
    v_lshlrev_b32 v6, 15, v4
    v_lshl_add_u32 v6, v5, 4, v6
    s_and_b32 s{sT1}, s{sJ}, 3
    s_lshr_b32 s{sT3}, s{sWAVE}, 1
    s_lshl_b32 s{sT2}, s{sT3}, 2
    s_add_u32 s{sT1}, s{sT1}, s{sT2}
    s_lshl_b32 s{sT0}, s{sXCD}, 3
    s_add_u32 s{sT0}, s{sT0}, s{sT1}     ; q tile
    s_lshl_b32 s{sT2}, s{sXCD}, 5
    s_add_u32 s{sT2}, s{sT2}, s{sJ}
    s_lshl_b32 s{sT2}, s{sT2}, 1
    s_add_u32 s{sT2}, s{sT2}, s{sT3}
    s_lshl_b32 s{sT2}, s{sT2}, 7
    s_add_u32 s{sT2}, s{sT2}, {CN2_OFF}
    v_mov_b32 v10, s{sT2}
    s_lshl_b32 s{sT0}, s{sT0}, 5
    s_and_b32 s{sT1}, s{sWAVE}, 1
    s_lshl_b32 s{sT1}, s{sT1}, 4
    s_add_u32 s{sT0}, s{sT0}, s{sT1}     ; row0
    s_lshl_b32 s{sT1}, s{sT0}, 4
    s_add_u32 s{sT1}, s{sT1}, {O_OFF}
    v_add_u32 v7, s{sT0}, v5
    v_mul_u32_u24 v7, 1280, v7
    s_mul_i32 s{sT2}, s{sRB}, 160
    v_add_u32 v7, s{sT2}, v7
    v_lshl_add_u32 v9, v4, 3, v7
    v_and_b32 v11, 1, v4
    v_lshl_add_u32 v7, v11, 5, v7
    v_lshrrev_b32 v11, 1, v4
    v_lshl_add_u32 v7, v11, 4, v7
    """)
    lwait("L_cwo", 11, 12, 0, 4)
    def LA(ks):
        base = A3 + (ks % NPRE) * 20
        va = 2 if ks < 10 else 3
        o = (ks % 10) * 5120
        for tl in range(5):
            for t in range(2):
                a = base + tl * 4 + 2 * t
                k(f"ds_read_b64_tr_b16 v[{a}:{a+1}], v{va} offset:{o + t*16*160 + tl*32}")
    for ks in range(NPRE):
        LA(ks)
        k("s_waitcnt lgkmcnt(5)")
    k("s_mov_b64 exec, 1")
    stamp(4, 0)
    gpoll("L_poll2", 11, 10, 32)
    k("s_mov_b64 exec, -1")
    stamp(11)
    for ks in range(20):
        k(f"buffer_load_dwordx4 v[{B3+4*ks}:{B3+4*ks+3}], v6, s[{sWS}:{sWS+3}], s{sT1} offen sc1")
        if ks < 19: k(f"s_add_u32 s{sT1}, s{sT1}, {4*32768}")
    for ks in range(20):
        lg = 5 if (ks >= 1 and ks - 1 + NPRE < 20) else 0
        k(f"s_waitcnt vmcnt({19-ks}) lgkmcnt({lg})")
        if ks == 0: stamp(10)
        base = A3 + (ks % NPRE) * 20
        for tl in range(5):
            a = base + tl * 4; c = C3 + tl * 4; b = B3 + 4 * ks
            cs = "0" if ks == 0 else f"v[{c}:{c+3}]"
            k(f"v_mfma_f32_16x16x32_bf16 v[{c}:{c+3}], v[{a}:{a+3}], v[{b}:{b+3}], {cs}")
        if ks + NPRE < 20: LA(ks + NPRE)
    stamp(12)
    k("s_nop 7")
    for tl in range(5):
        c = C3 + tl * 4
        q = 16 + (tl >> 1) * 4 + (tl & 1) * 2
        k(f"v_cvt_pk_bf16_f32 v{q}, v{c}, v{c+1}")
        k(f"v_cvt_pk_bf16_f32 v{q+1}, v{c+2}, v{c+3}")
    k(f"""
    v_permlane16_swap_b32 v16, v18
    v_permlane16_swap_b32 v17, v19
    v_permlane16_swap_b32 v20, v22
    v_permlane16_swap_b32 v21, v23
    buffer_store_dwordx4 v[16:19], v7, s[{sOUT}:{sOUT+3}], 0 offen
    buffer_store_dwordx4 v[20:23], v7, s[{sOUT}:{sOUT+3}], 0 offen offset:64
    buffer_store_dwordx2 v[24:25], v9, s[{sOUT}:{sOUT+3}], 0 offen offset:128
    """)
    k("L_fin:")
    if "padat" in opts:
        k(f"""
        s_waitcnt lgkmcnt(0)
        s_cmp_eq_u32 s94, 0
        s_cbranch_scc1 L_nopad
        L_pad:
        s_memrealtime s[92:93]
        s_waitcnt lgkmcnt(0)
        s_sub_u32 s92, s92, s94
        s_cmp_lt_u32 s92, 3000
        s_cbranch_scc1 L_pad
        L_nopad:
        """)
    if stamps:
        SW = opts.get("sw", 0)
        k(f"""
        s_mov_b64 exec, -1
        s_waitcnt vmcnt(0)
        s_mem{'' if opts.get('cyc') else 'real'}time s[{sST+26}:{sST+27}]
        s_and_b32 s{sT0}, s{sWAVE}, 3
        s_cmp_lg_u32 s{sT0}, {SW}
        s_cbranch_scc1 L_end
        s_waitcnt lgkmcnt(0)
        s_lshl_b32 s{sT0}, s2, 1
        s_lshr_b32 s{sT1}, s{sWAVE}, 2
        s_add_u32 s{sT0}, s{sT0}, s{sT1}
        s_lshl_b32 s{sT0}, s{sT0}, 6
        s_add_u32 s{sT0}, s{sT0}, {STAMP_OFF}
        v_mov_b32 v1, 0
        """)
        for i in range(16): k(f"v_mov_b32 v{4+i}, s{sST+2*i}")
        for i in range(4): k(f"buffer_store_dwordx4 v[{4+4*i}:{7+4*i}], v1, s[{sWS}:{sWS+3}], s{sT0} offen offset:{16*i}")
    k("L_end:")
    k("s_endpgm")

    k("L_nofar:")
    for i in range(16): k(f"v_mov_b32 v{S[1]+i}, {hex(NEG)}")
    k("s_branch L_far_done")
    for g in range(1, 5):
        k(f"L_worest{g}:")
        k(f"s_cmp_eq_u32 s{sROLE}, 1\ns_cbranch_scc1 L_p2_done")
        wo_group(g)
    k("s_branch L_p2_done")

    k("L_slow:")
    s = S[0]
    k(f"""
    v_cndmask_b32 v{vQ2}, v{vQ2}, 0, s[{sUP}:{sUP+1}]
    v_mov_b32 v25, 0xff800000
    v_mov_b32 v27, {hex(NEG)}
    s_mov_b32 s{sT2}, 0               ; pass
    s_add_u32 s{sT4}, s{sNT}, 1
    s_cmp_lg_u32 s{sRB}, 0
    s_cselect_b32 s{sT4}, 9, s{sT4}     ; tiles
    """)
    for i in range(16): k(f"v_mov_b32 v{OA+i}, 0")
    k(f"""
    L_slow_pass:
    s_mov_b32 s{sCNT}, 0
    L_slow_tile:
    s_sub_u32 s{sT3}, 8, s{sCNT}
    s_lshl_b32 s{sT3}, s{sT3}, 9
    v_add_u32 v10, s{sT3}, v{vKA1}
    v_add_u32 v11, s{sT3}, v{vKA2}
    v_add_u32 v12, s{sT3}, v{vVA0}
    v_add_u32 v13, s{sT3}, v{vVA1}
    ds_read_b128 v[{KF[0]}:{KF[0]+3}], v10
    ds_read_b64 v[{KF[0]+4}:{KF[0]+5}], v11
    ds_read_b64_tr_b16 v[{VF[0]}:{VF[0]+1}], v12
    ds_read_b64_tr_b16 v[{VF[0]+2}:{VF[0]+3}], v13
    ds_read_b64_tr_b16 v[{VF[0]+4}:{VF[0]+5}], v12 offset:256
    ds_read_b64_tr_b16 v[{VF[0]+6}:{VF[0]+7}], v13 offset:256
    s_waitcnt lgkmcnt(0)
    """)
    QK(0, 0)
    k(f"""
    s_nop 15
    s_cmp_lg_u32 s{sCNT}, 0
    s_cbranch_scc1 L_slow_nd
    """)
    for i in range(16): k(f"v_bfi_b32 v{s+i}, v{MK+i}, v{s+i}, v27")
    k(f"""
    L_slow_nd:
    s_cmp_lg_u32 s{sCNT}, 8
    s_cbranch_scc1 L_slow_nf
    """)
    for i in range(16): k(f"v_bfi_b32 v{s+i}, v{MK+i}, v27, v{s+i}")
    k(f"""
    L_slow_nf:
    s_cmp_lg_u32 s{sT2}, 0
    s_cbranch_scc1 L_slow_p2
    """)
    for i in range(16): k(f"v_max_f32 v25, v25, v{s+i}")
    k("s_branch L_slow_next")
    k("L_slow_p2:")
    for i in range(16): k(f"v_sub_f32 v{s+i}, v{s+i}, v25")
    EXP(0, 0, 16)
    k("s_nop 0")
    CVT(0, 0, 8)
    k("s_nop 1")
    PV(0, 0); PV(0, 1)
    k(f"""
    s_nop 15
    L_slow_next:
    s_add_u32 s{sCNT}, s{sCNT}, 1
    s_cmp_lt_u32 s{sCNT}, s{sT4}
    s_cbranch_scc1 L_slow_tile
    s_cmp_lg_u32 s{sT2}, 0
    s_cbranch_scc1 L_slow_done
    v_mov_b32 v26, v25
    s_nop 1
    v_permlane32_swap_b32 v25, v26
    v_max_f32 v25, v25, v26
    s_mov_b32 s{sT2}, 1
    s_branch L_slow_pass
    L_slow_done:
    v_mov_b32 v25, v{OA+8}
    v_mov_b32 v26, v{OA+8}
    s_nop 1
    v_permlane32_swap_b32 v25, v26
    s_branch L_p2_norm
    """)
    k("L_code_end:")
    return emit([k], single=True)

if __name__ == "__main__":
    out = sys.argv[1]
    opts = {}
    for a in sys.argv[2:]:
        kx, v = a.split("=")
        opts[kx] = [int(x) for x in v.split(',')] if kx == 'only' else int(v, 0)
    open(out, "w").write(gen(opts))
```

```python
import sys, math, struct
from asmlib import *

def f2u(x): return struct.unpack("<I", struct.pack("<f", x))[0]

QKV_OFF = 0
O_OFF   = 8 << 20
CN1_OFF = 12 << 20
CN2_OFF = CN1_OFF + 768 * 128
STAMP_OFF = 13 << 20
WS_SIZE = 14 << 20
SLOT = 28672
NSLOT = 4
LDS_WO = 0
LDS_K = 102400
LDS_V = LDS_K + 24576
LDS_Q = LDS_V + 24576
LDS_TOTAL = 163840
QSCALE = (20 ** -0.5) * math.log2(math.e)
SPIN_MAX = 400000
NEG = 0xf149f2ca

def gen(opts):
    DEPTH = opts.get("depth", 3)
    NCH = 12
    MAP = ""
    JR = ""
    OSC = ["", "nt", "sc1", "sc0 sc1", "sc0"][opts.get("osc", 0)]
    PRE_O = ""
    if opts.get("preo", 2) == 2:
        PRE_O = ("s_cmp_eq_u32 s61, 0\ns_cbranch_scc1 L_nopreo\nv_lshlrev_b32 v28, 11, v26\nv_sub_u32 v28, v7, v28\n"
                 "buffer_load_dword v252, v28, s[32:35], 0 offen sc1\nL_nopreo:")
    elif opts.get("preo", 2):
        PRE_O = "s_mov_b32 exec_hi, 0\nbuffer_load_dword v252, v7, s[32:35], 0 offen sc1\ns_mov_b32 exec_hi, -1"
    if opts.get("jrot", 1):
        JR = ("s_and_b32 s47, s38, 3\ns_add_u32 s47, s47, s42\ns_and_b32 s47, s47, %d\ns_mul_i32 s47, s47, %d\ns_add_u32 s96, s96, s47\n"
              "s_sub_u32 s47, s96, 10\ns_cmp_ge_u32 s96, 10\ns_cselect_b32 s96, s47, s96") % (opts.get("jmask", 1), opts.get("jrot", 1))
    if opts.get("map") == 1:
        MAP = "s_lshr_b32 s40, s38, 1\ns_and_b32 s39, s38, 1\ns_lshl_b32 s46, s37, 1\ns_add_u32 s39, s39, s46"
    if opts.get("map") == 2:
        MAP = ("s_and_b32 s46, s37, 1\ns_lshl_b32 s46, s46, 3\ns_and_b32 s39, s38, 7\ns_lshr_b32 s48, s37, 1\ns_lshr_b32 s49, s38, 3\n"
               "s_lshl_b32 s40, s48, 2\ns_add_u32 s40, s40, s49\ns_sub_u32 s40, s40, s48\n"
               "s_sub_u32 s50, s38, 24\ns_mul_i32 s51, s48, 6\ns_add_u32 s50, s50, s51\n"
               "s_lshr_b32 s51, s50, 3\ns_add_u32 s51, s51, 12\ns_and_b32 s50, s50, 7\n"
               "s_cmp_ge_u32 s38, 24\ns_cselect_b32 s40, s51, s40\ns_cselect_b32 s39, s50, s39\ns_add_u32 s39, s39, s46\n"
               "s_cmp_ge_u32 s38, 30\ns_cselect_b32 s40, 15, s40")
    CODEPF = ""
    if opts.get("codepf"):
        CODEPF = "s_getpc_b64 s[46:47]\nv_lshlrev_b32 v20, 6, v0\ns_lshl_b32 s48, s36, 12\nv_add_u32 v20, s48, v20\nglobal_load_dword v21, v20, s[46:47]\ns_waitcnt vmcnt(0)"
    stamps = opts.get("stamps", False)
    k = K("standalone__sliding_block__prompt_kernel", (256, 1, 1), (512, 1, 1), LDS_TOTAL, vgpr=256, sgpr=102)

    sX, sW, sWO, sOUT, sWS = 16, 20, 24, 28, 32
    sWAVE, sXCD, sJ, sR1, sCT = 36, 37, 38, 39, 40
    sH, sRB, sODD, sTAG = 41, 42, 43, 44
    sLW = 45
    sT0, sT1, sT2, sT3, sT4, sT5 = 46, 47, 48, 49, 50, 51
    sCNT, sFL = 52, 53
    sUP = 54
    sEX = 56
    sNT = 58
    sB0 = 59
    sSTO = 60
    sROLE = 61
    sSC = 62
    sST = 64
    sUM, sNX, sWB = 98, 99, 100
    def astamp(idx):
        if stamps and opts.get("attst"): k(f"s_mem{'' if opts.get('cyc') else 'real'}time s[{sST+2*idx}:{sST+2*idx+1}]")
    def stamp(idx, role=None):
        if opts.get("padat") == idx and (role is None or role == opts.get("padrole", role)):
            k("s_memrealtime s[94:95]")
        if opts.get("attst") and idx in (1, 2, 3, 14, 15, 5, 6): return
        if stamps and (idx in opts.get("only", range(16)) or idx == 0):
            k(f"s_mem{'' if opts.get('cyc') else 'real'}time s[{sST+2*idx}:{sST+2*idx+1}]")
    def srd(d, lo, size):
        k(f"s_mov_b32 s{d}, s{lo}\ns_mov_b32 s{d+1}, s{lo+1}\ns_mov_b32 s{d+2}, {size}\ns_mov_b32 s{d+3}, 0x20000")
    def readychk(lab, vreg, vz, issue_first):
        k(f"s_mov_b32 s{sCNT}, 0")
        if issue_first: k(f"global_load_dword v{vreg}, v{vz}, s[12:13] sc1")
        k(f"""
        {lab}:
        s_waitcnt vmcnt(0)
        v_readfirstlane_b32 s{sTAG}, v{vreg}
        s_add_u32 s{sCNT}, s{sCNT}, 1
        s_cmp_ge_u32 s{sCNT}, {SPIN_MAX}
        s_cbranch_scc1 {lab}_ok
        s_cmp_ge_u32 s{sTAG}, 64
        s_cbranch_scc1 {lab}_ok
        global_load_dword v{vreg}, v{vz}, s[12:13] sc1
        s_branch {lab}
        {lab}_ok:
        """)
    def gpoll(lab, vreg, vaddr, target, vreg2=None):
        NP = opts.get("npoll", 1)
        if NP == 1:
            k(f"""
            s_mov_b32 s{sCNT}, 0
            {lab}:
            v_mov_b32 v{vreg}, 0
            buffer_atomic_add v{vreg}, v{vaddr}, s[{sWS}:{sWS+3}], 0 offen sc0 sc1
            s_add_u32 s{sCNT}, s{sCNT}, 1
            s_cmp_ge_u32 s{sCNT}, {SPIN_MAX}
            s_waitcnt vmcnt(0)
            s_cbranch_scc1 {lab}_out
            v_cmp_gt_u32 vcc, {target}, v{vreg}
            s_cbranch_vccnz {lab}
            {lab}_out:
            """)
        else:
            k(f"""
            s_mov_b32 s{sCNT}, 0
            v_mov_b32 v{vreg}, 0
            buffer_atomic_add v{vreg}, v{vaddr}, s[{sWS}:{sWS+3}], 0 offen sc0 sc1
            s_sleep {opts.get("psl", 5)}
            {lab}:
            v_mov_b32 v{vreg2}, 0
            buffer_atomic_add v{vreg2}, v{vaddr}, s[{sWS}:{sWS+3}], 0 offen sc0 sc1
            s_waitcnt vmcnt(1)
            v_cmp_gt_u32 vcc, {target}, v{vreg}
            s_cbranch_vccz {lab}_out
            v_mov_b32 v{vreg}, 0
            buffer_atomic_add v{vreg}, v{vaddr}, s[{sWS}:{sWS+3}], 0 offen sc0 sc1
            s_add_u32 s{sCNT}, s{sCNT}, 1
            s_cmp_ge_u32 s{sCNT}, {SPIN_MAX}
            s_waitcnt vmcnt(1)
            s_cbranch_scc1 {lab}_out
            v_cmp_gt_u32 vcc, {target}, v{vreg2}
            s_cbranch_vccnz {lab}
            {lab}_out:
            """)
    def lwait(lab, vreg, vaddr, off, target):
        k(f"""
        {lab}:
        ds_read_b32 v{vreg}, v{vaddr} offset:{off}
        s_waitcnt lgkmcnt(0)
        v_cmp_gt_u32 vcc, {target}, v{vreg}
        s_cbranch_vccnz {lab}
        """)

    if stamps:
        for i in range(16): k(f"s_mov_b64 s[{sST+2*i}:{sST+2*i+1}], 0")
    if "padat" in opts: k("s_mov_b64 s[94:95], 0")
    stamp(0)
    k(f"""
    s_cmp_ge_u32 s2, 256
    s_cbranch_scc1 L_end
    s_load_dwordx8 s[4:11], s[0:1], 0
    s_load_dwordx4 s[12:15], s[0:1], 32
    v_lshrrev_b32 v1, 6, v0
    v_and_b32 v0, 63, v0
    v_readfirstlane_b32 s{sWAVE}, v1
    s_and_b32 s{sXCD}, s2, 7
    s_lshr_b32 s{sJ}, s2, 3
    {"s_xor_b32 s%d, s%d, 4" % (sWAVE, sWAVE) if opts.get("swap") else ""}
    s_and_b32 s{sT0}, s{sXCD}, 3
    s_lshl_b32 s{sT0}, s{sT0}, 2
    s_and_b32 s{sT1}, s{sJ}, 3
    s_lshr_b32 s{sT2}, s{sXCD}, 2
    s_lshr_b32 s{sRB}, s{sJ}, 2
    s_lshl_b32 s{sT3}, s{sT2}, 3
    s_add_u32 s{sCT}, s{sT3}, s{sRB}
    s_lshl_b32 s{sT3}, s{sT2}, 1
    s_add_u32 s{sT3}, s{sT3}, s{sT1}
    s_cmp_ge_u32 s{sJ}, 28
    s_cselect_b32 s{sCT}, 7, s{sCT}
    s_cselect_b32 s{sT3}, s{sT3}, s{sT1}
    s_add_u32 s{sR1}, s{sT0}, s{sT3}
    s_cmp_ge_u32 s{sJ}, 30
    s_cselect_b32 s{sCT}, 15, s{sCT}
    {MAP}
    s_lshl_b32 s{sH}, s{sXCD}, 2
    s_add_u32 s{sH}, s{sH}, s{sT1}
    s_and_b32 s{sODD}, s{sH}, 1
    s_mov_b32 s{sUP}, 0
    s_mov_b32 s{sUP+1}, -1
    """)
    if opts.get("codepf", 1):
        k(f"""
        s_cmp_lt_u32 s{sJ}, 30
        s_cbranch_scc1 L_nopf
        s_getpc_b64 s[{sT2}:{sT2+1}]
        s_lshl_b32 s{sT0}, s{sWAVE}, 12
        v_lshlrev_b32 v2, 6, v0
        v_add_u32 v2, s{sT0}, v2
        v_min_u32 v2, L_code_end - L_nopf, v2
        global_load_dword v255, v2, s[{sT2}:{sT2+1}]
        L_nopf:
        """)
    k(f"""
    s_cmp_lt_u32 s{sWAVE}, 4
    s_cbranch_scc1 L_compute
    """)
    vLX, vLW = 240, 241
    k(f"""
    s_mov_b32 s{sROLE}, 1
    s_sub_u32 s{sT0}, s{sWAVE}, 4
    v_lshrrev_b32 v2, 3, v0
    v_mul_u32_u24 v2, 1280, v2
    s_and_b32 s{sT1}, s{sT0}, 1
    s_lshl_b32 s{sT1}, s{sT1}, 2
    v_lshrrev_b32 v3, 4, v0
    v_add_u32 v4, s{sT1}, v3
    v_and_b32 v5, 7, v0
    v_xor_b32 v4, v4, v5
    v_lshl_add_u32 v2, v4, 4, v2
    s_mul_i32 s{sT2}, s{sR1}, {128*1280}
    s_mul_i32 s{sT3}, s{sT0}, {8*1280}
    s_add_u32 s{sT2}, s{sT2}, s{sT3}
    v_add_u32 v{vLX}, s{sT2}, v2
    v_mul_u32_u24 v4, 3840, v3
    v_lshlrev_b32 v5, 2, v3
    v_and_b32 v6, 15, v0
    v_xor_b32 v5, v5, v6
    v_lshl_add_u32 v3, v5, 4, v4
    s_lshl_b32 s{sT2}, s{sCT}, 8
    s_mul_i32 s{sT3}, s{sT0}, {4*3840}
    s_add_u32 s{sT2}, s{sT2}, s{sT3}
    v_add_u32 v{vLW}, s{sT2}, v3
    s_lshl_b32 s{sLW}, s{sT0}, 10
    s_lshl_b32 s{sT1}, s{sXCD}, 2
    s_lshr_b32 s96, {hex(opts.get("xrot", 0x30858530))}, s{sT1}
    s_and_b32 s96, s96, 15
    {JR}
    s_waitcnt lgkmcnt(0)
    """)
    stamp(1)
    srd(sX, 4, 2621440); srd(sW, 6, 2457600)
    k(f"""
    s_cmp_ge_u32 s{sCT}, 15
    s_cbranch_scc1 L_ld_idle
    """)
    cnt = []
    def nextk():
        k("s_add_u32 s96, s96, 1\ns_cmp_ge_u32 s96, 10\ns_cselect_b32 s96, 0, s96")
    def issue(c):
        slot = ((c + 3) % NSLOT) * SLOT
        n = 0
        if c < 10:
            k(f"s_mul_i32 s97, s96, {64*3840}")
            for t in range(4):
                k(f"s_add_u32 m0, s{sLW}, {slot + t*4096}")
                k(f"s_add_u32 s{sT5}, s97, {t*16*3840}")
                k(f"buffer_load_dwordx4 v{vLW}, s[{sW}:{sW+3}], s{sT5} offen lds"); n += 1
            k(f"s_lshl_b32 s97, s96, 7")
            for t in range(3):
                k(f"s_add_u32 m0, s{sLW}, {slot + 16384 + t*4096}")
                k(f"s_add_u32 s{sT5}, s97, {t*32*1280}")
                k(f"buffer_load_dwordx4 v{vLX}, s[{sX}:{sX+3}], s{sT5} offen lds"); n += 1
            nextk()
        else:
            for p in range(5):
                k(f"s_lshl_b32 s97, s96, 7")
                k(f"s_add_u32 m0, s{sLW}, {slot + p*4096}")
                k(f"s_add_u32 s{sT5}, s97, {3*32*1280}")
                k(f"buffer_load_dwordx4 v{vLX}, s[{sX}:{sX+3}], s{sT5} offen lds"); n += 1
                nextk()
        cnt.append(n)
    for c in range(DEPTH):
        issue(c)
        if c == 0: stamp(2)
    stamp(3, 1)
    srd(sWS, 14, WS_SIZE)
    k("s_branch L_prep")
    k("L_ld_idle:")
    srd(sWS, 14, WS_SIZE); srd(sWO, 8, 819200)
    TP = opts.get("tailpf", 0)
    XP = opts.get("xpf", 0)
    k(f"""
    v_lshlrev_b32 v2, 4, v0
    s_mov_b32 m0, s{sLW}
    s_and_b32 s{sT1}, s{sJ}, 1
    s_lshl_b32 s{sT2}, s{sT1}, 3
    s_add_u32 s{sT2}, s{sT2}, s{sXCD}
    """)
    def warm(lab, srd_, n):
        k(f"""
        s_mov_b32 s{sT3}, 0
        {lab}:
        buffer_load_dwordx4 v2, s[{srd_}:{srd_+3}], s{sT0} offen lds
        s_add_u32 s{sT0}, s{sT0}, 4096
        s_add_u32 s{sT3}, s{sT3}, 1
        {"s_cmp_ge_u32 s%d, 819200" % sT0 if srd_ == sWO else ""}
        {"s_cselect_b32 s%d, s%d, s%d" % (sT0, sLW, sT0) if srd_ == sWO else ""}
        s_waitcnt vmcnt(12)
        s_cmp_lt_u32 s{sT3}, {n}
        s_cbranch_scc1 {lab}
        """)
    if TP:
        k(f"s_mul_i32 s{sT0}, s{sT2}, {4*TP*3840}\ns_add_u32 s{sT0}, s{sT0}, {(640-64*TP)*3840}\ns_add_u32 s{sT0}, s{sT0}, s{sLW}")
        warm("L_tpw", sW, (15 * TP + 3) // 4)
    if XP:
        k(f"s_mul_i32 s{sT0}, s{sT2}, {128*1280}\ns_add_u32 s{sT0}, s{sT0}, {96*1280}\ns_add_u32 s{sT0}, s{sT0}, s{sLW}")
        warm("L_tpx", sX, 10)
    k(f"""
    s_mul_i32 s{sT0}, s{sT1}, 409600
    s_mul_i32 s{sT3}, s{sXCD}, {opts.get("wrot", 49152)}
    s_add_u32 s{sT0}, s{sT0}, s{sT3}
    s_add_u32 s{sT0}, s{sT0}, s{sLW}
    """)
    if opts.get("sparse"):
        k(f"""
        v_lshlrev_b32 v2, 7, v0
        s_mul_i32 s{sT0}, s{sT1}, 409600
        s_mul_i32 s{sT3}, s{sXCD}, 49152
        s_add_u32 s{sT0}, s{sT0}, s{sT3}
        s_lshl_b32 s{sT3}, s{sLW}, 3
        s_add_u32 s{sT0}, s{sT0}, s{sT3}
        s_mov_b32 s{sT4}, 0
        L_warm:
        buffer_load_dword v254, v2, s[{sWO}:{sWO+3}], s{sT0} offen {"nt" if opts.get("sparse") == 2 else ""}
        s_add_u32 s{sT0}, s{sT0}, 32768
        s_sub_u32 s{sT5}, s{sT0}, 819200
        s_cmp_ge_u32 s{sT0}, 819200
        s_cselect_b32 s{sT0}, s{sT5}, s{sT0}
        s_add_u32 s{sT4}, s{sT4}, 1
        s_cmp_lt_u32 s{sT4}, {opts.get("nwarm", 13)}
        s_cbranch_scc1 L_warm
        """)
    else:
        warm("L_warm", sWO, opts.get("nwarm", 24))
    k(f"""
    s_waitcnt vmcnt(0)
    s_branch L_prep
    """)

    AREG = 96
    ACCS = [16, 32, 48, 48]
    BR = 64
    PK = 80
    vXb = [[2, 3, 4, 5], [6, 7, 8, 9], [88, 89, 90, 91]]
    vWb = [10, 11, 92]
    vSA, vSB, vTG, vZ0, vFA = 12, 13, 14, 15, 1
    k("L_compute:")
    k(f"""
    s_mov_b32 s{sROLE}, 0
    {"s_setprio 1" if opts.get("swap") == 1 else ""}
    v_and_b32 v16, 31, v0
    v_lshrrev_b32 v17, 5, v0          ; h
    v_bfe_u32 v18, v0, 1, 3
    v_xor_b32 v18, v18, v17           ; y
    v_lshlrev_b32 v19, 7, v16         ; row*128
    """)
    for s in range(4):
        k(f"v_xor_b32 v20, {2*s}, v18\nv_lshl_add_u32 v{vXb[0][s]}, v20, 4, v19")
        k(f"v_add_u32 v{vXb[1][s]}, {2*SLOT}, v{vXb[0][s]}")
    k(f"""
    v_bfe_u32 v20, v0, 2, 2           ; r
    v_lshl_add_u32 v21, v17, 3, v20   ; 8h + r
    v_lshlrev_b32 v21, 8, v21         ; *256
    v_bfe_u32 v22, v0, 4, 1           ; g&1
    v_bfe_u32 v23, v0, 1, 1           ; c>>1
    v_lshl_add_u32 v22, v22, 1, v23
    v_and_b32 v23, 1, v0
    v_lshl_add_u32 v21, v23, 3, v21
    v_lshl_add_u32 v21, v22, 4, v21
    v_xor_b32 v22, s{sWAVE}, v20
    v_lshl_add_u32 v{vWb[0]}, v22, 6, v21
    v_add_u32 v{vWb[1]}, {2*SLOT}, v{vWb[0]}
    v_lshlrev_b32 v{vSA}, 4, v0               ; lane*16
    v_lshlrev_b32 v{vSB}, 4, v16
    v_lshl_add_u32 v{vSB}, v17, 15, v{vSB}    ; (l&31)*16 + h*32768
    v_mov_b32 v{vZ0}, 0
    s_lshl_b32 s{sT0}, s{sCT}, 2
    s_add_u32 s{sT0}, s{sT0}, s{sWAVE}
    s_lshl_b32 s{sSTO}, s{sT0}, 17
    s_lshl_b32 s{sT1}, s{sR1}, 11
    s_add_u32 s{sSTO}, s{sSTO}, s{sT1}
    ; consumers of this wave's 32 columns: ty = cg/20, c = cg%20 ; heads floor(8c/5) .. floor((8c+12)/5)-1 ; row blocks r>>1 (+1 for K,V)
    s_mul_i32 s{sT1}, s{sT0}, 205
    s_lshr_b32 s{sT1}, s{sT1}, 12             ; ty
    s_mul_i32 s{sT2}, s{sT1}, 20
    s_sub_u32 s{sT2}, s{sT0}, s{sT2}          ; c
    s_mul_i32 s{sT3}, s{sT2}, 1640
    s_lshr_b32 s{sT3}, s{sT3}, 10             ; floor(8c/5)
    s_lshl_b32 s{sT2}, s{sT2}, 3
    s_add_u32 s{sT2}, s{sT2}, 12
    s_mul_i32 s{sT2}, s{sT2}, 205
    s_lshr_b32 s{sT2}, s{sT2}, 10             ; floor((8c+12)/5)
    v_and_b32 v20, 3, v0
    v_add_u32 v20, s{sT3}, v20                ; head
    v_lshrrev_b32 v21, 2, v0                  ; Rsel
    s_lshr_b32 s{sT3}, s{sR1}, 1
    s_min_u32 s{sT1}, s{sT1}, 1
    s_add_u32 s{sT1}, s{sT1}, s{sT3}
    s_min_u32 s{sT1}, s{sT1}, 7
    v_add_u32 v21, s{sT3}, v21
    v_cmp_gt_u32 vcc, s{sT2}, v20
    v_cmp_ge_u32 s[{sT4}:{sT4+1}], s{sT1}, v21
    s_and_b64 s[{sEX}:{sEX+1}], vcc, s[{sT4}:{sT4+1}]
    v_lshl_add_u32 v20, v21, 5, v20
    v_mul_u32_u24 v{vFA}, 384, v20
    v_add_u32 v{vFA}, {CN1_OFF}, v{vFA}
    s_cmp_lt_u32 s{sCT}, 5
    s_cselect_b32 s{sSC}, {hex(f2u(QSCALE))}, 1.0
    s_waitcnt lgkmcnt(0)
    """)
    MP_ = opts.get("mpf", 0)
    if MP_:
        W0 = opts.get("mpw0", 192)
        wper = ((640 - W0) * 3840 // 256 + 127) // 128 * 128
        srd(sX, 4, 2621440); srd(sW, 6, 2457600)
        k(f"""
        s_lshl_b32 s{sT0}, s{sWAVE}, 10
        s_mul_i32 s{sT1}, s2, 10240
        s_add_u32 s{sT1}, s{sT1}, s{sT0}
        s_mul_i32 s{sT2}, s2, {wper}
        s_add_u32 s{sT2}, s{sT2}, {W0*3840}
        s_add_u32 s{sT2}, s{sT2}, s{sT0}
        """)
        if MP_ & 2:
            for i in range((wper + 4095) // 4096):
                k(f"buffer_load_dwordx4 v[64:67], v{vSA}, s[{sW}:{sW+3}], s{sT2} offen\ns_add_u32 s{sT2}, s{sT2}, 4096")
        if MP_ & 1:
            for i in range(3):
                if i == 2: k(f"s_cmp_ge_u32 s{sWAVE}, 2\ns_cbranch_scc1 L_mpf_done")
                k(f"buffer_load_dwordx4 v[64:67], v{vSA}, s[{sX}:{sX+3}], s{sT1} offen\ns_add_u32 s{sT1}, s{sT1}, 4096")
        k("L_mpf_done:")
    srd(sWS, 14, WS_SIZE)
    TL = opts.get("tlb", 0)
    if TL:
        n = (13 << 20) >> TL
        srd(sOUT, 10, 2621440); srd(sWO, 8, 819200)
        k(f"""
        s_lshl_b32 s{sT0}, s{sWAVE}, 6
        v_add_u32 v20, s{sT0}, v0
        v_lshlrev_b32 v21, {TL}, v20
        s_lshl_b32 s{sT1}, s2, 7
        s_add_u32 s{sT0}, s{sT1}, 0x40000
        v_add_u32 v21, s{sT0}, v21
        v_cmp_gt_u32 vcc, {n}, v20
        s_and_saveexec_b64 s[{sT2}:{sT2+1}], vcc
        s_cbranch_execz L_tl1
        buffer_atomic_add v{vZ0}, v21, s[{sWS}:{sWS+3}], 0 offen sc1
        L_tl1:
        s_mov_b64 exec, -1
        s_cmp_lg_u32 s{sWAVE}, 3
        s_cbranch_scc1 L_tl2
        v_lshlrev_b32 v21, {max(TL, 16)}, v0
        s_mov_b64 exec, 3
        buffer_load_dword v254, v21, s[{sOUT}:{sOUT+3}], s{sT1} offen
        buffer_load_dword v253, v21, s[{sWO}:{sWO+3}], s{sT1} offen
        s_mov_b64 exec, -1
        L_tl2:
        """)
    k(f"""
    s_cmp_lt_u32 s{sCT}, 15
    s_cbranch_scc1 L_p1_go
    s_and_b32 s{sT0}, s{sJ}, 1
    s_lshl_b32 s{sT0}, s{sT0}, 3
    s_add_u32 s{sT0}, s{sT0}, s{sXCD}
    s_lshl_b32 s{sT0}, s{sT0}, 2
    s_add_u32 s{sT0}, s{sT0}, s{sWAVE}
    s_mul_i32 s{sT0}, s{sT0}, {20*128}
    s_add_u32 s{sT0}, s{sT0}, {CN1_OFF}
    v_lshlrev_b32 v20, 7, v0
    v_mov_b32 v21, 1
    s_mov_b64 exec, 0xfffff
    buffer_store_dword v{vZ0}, v20, s[{sWS}:{sWS+3}], s{sT0} offen sc1
    s_mov_b64 exec, 1
    s_waitcnt vmcnt(0)
    global_atomic_add v{vZ0}, v21, s[12:13] sc1
    s_mov_b64 exec, -1
    s_branch L_prep
    L_p1_go:
    """)
    def rdA(c, s):
        sl = (c + 3) % NSLOT
        o = (sl & 1) * SLOT + s * 16 * 256
        va = vWb[sl >> 1]
        a = AREG + 4 * (4 * c + s)
        k(f"ds_read_b64_tr_b16 v[{a}:{a+1}], v{va} offset:{o}")
        k(f"ds_read_b64_tr_b16 v[{a+2}:{a+3}], v{va} offset:{o + 4*256}")
    def rdB(c, s, off, f):
        sl = (c + 3) % NSLOT
        b = BR + 4 * f
        k(f"ds_read_b128 v[{b}:{b+3}], v{vXb[sl >> 1][s]} offset:{(sl & 1) * SLOT + off}")
    def mf(acc, ks, f, first):
        a = AREG + 4 * ks; b = BR + 4 * f
        cs = "0" if first else f"v[{acc}:{acc+15}]"
        k(f"v_mfma_f32_32x32x16_bf16 v[{acc}:{acc+15}], v[{a}:{a+3}], v[{b}:{b+3}], {cs}")
    fr = lambda s, g: 3 * (s & 1) + g
    def rd(c, s):
        rdA(c, s)
        for g in range(3): rdB(c, s, 16384 + g * 4096, fr(s, g))
    def mf3(c, s):
        for g in range(3): mf(ACCS[g], 4*c+s, fr(s, g), c == 0 and s == 0)
    PIPE = opts.get("pipe", 1)
    if PIPE:
        if MP_: k("s_waitcnt vmcnt(0)")
        k("s_barrier      ; B_0")
        stamp(1)
        rd(0, 0); rd(0, 1)
        for c in range(10):
            if c == 4: k(f"global_load_dword v{vTG}, v{vZ0}, s[12:13] sc1")
            if c == 8:
                readychk("L_rdy1", vTG, vZ0, False)
                k(f"v_mov_b32 v{vTG}, 1")
            for s in range(2):
                k("s_waitcnt lgkmcnt(5)")
                mf3(c, s); rd(c, s + 2)
            k("s_waitcnt lgkmcnt(5)")
            mf3(c, 2)
            k("s_waitcnt lgkmcnt(0)")
            k(f"s_barrier      ; B_{c+1}")
            if c < 9: rd(c + 1, 0)
            else:
                for i in range(3):
                    rdB(10, i, 0, i)
            mf3(c, 3)
            if c < 9: rd(c + 1, 1)
    else:
      for c in range(10):
        k(f"s_barrier      ; B_{c}")
        if c == 0: stamp(1)
        rd(c, 0); rd(c, 1)
        if c == 5: k(f"global_load_dword v{vTG}, v{vZ0}, s[12:13] sc1")
        if c == 9:
            readychk("L_rdy1", vTG, vZ0, False)
            k(f"v_mov_b32 v{vTG}, 1")
        for s in range(4):
            k(f"s_waitcnt lgkmcnt({5 if s < 3 else 0})")
            mf3(c, s)
            if s < 2: rd(c, s + 2)
    stamp(2)
    def ep_pair(c0, c1, q, vaddr, off_s):
        return [f"v_cvt_pk_bf16_f32 v{q}, v{c0}, v{c0+1}",
                f"v_cvt_pk_bf16_f32 v{q+1}, v{c0+2}, v{c0+3}",
                f"v_cvt_pk_bf16_f32 v{q+2}, v{c1}, v{c1+1}",
                f"v_cvt_pk_bf16_f32 v{q+3}, v{c1+2}, v{c1+3}",
                f"s_add_u32 s{sT5}, s{sSTO}, {off_s}",
                "s_nop 0",
                f"v_permlane32_swap_b32 v{q}, v{q+2}",
                f"v_permlane32_swap_b32 v{q+1}, v{q+3}",
                f"buffer_store_dwordx4 v[{q}:{q+3}], v{vaddr}, s[{sWS}:{sWS+3}], s{sT5} offen sc1"]
    def mulq(c):
        return [f"v_mul_f32 v{c+i}, s{sSC}, v{c+i}" for i in range(4)]
    def ep_part0():
        o = []
        for b in range(4):
            o += mulq(ACCS[0] + 4*b) + mulq(ACCS[1] + 4*b)
            o += ep_pair(ACCS[0] + 4*b, ACCS[1] + 4*b, PK + 4*(b & 1), vSA, b * 32768)
        return o
    def ep_part(g):
        acc = ACCS[g]
        o = []
        for b in (0, 2):
            o += mulq(acc + 4*b) + mulq(acc + 4*b + 4)
            o += ep_pair(acc + 4*b, acc + 4*b + 4, PK + 2*b, vSB, b * 32768 + g * 512)
        return o
    def flag(st, vm):
        return [f"s_mov_b64 exec, s[{sEX}:{sEX+1}]", f"s_waitcnt vmcnt({vm})",
                f"buffer_atomic_add v{vTG}, v{vFA}, s[{sWS}:{sWS+3}], 0 offen offset:{st*128} sc1", "s_mov_b64 exec, -1"]
    steps = []
    for c in range(10, 12):
        hf = c - 10
        for p in range(5):
            for s in range(4):
                steps.append((c, hf * 20 + p * 4 + s, s, p * 4096))
    LOOK = 3
    PER = opts.get("per", 4)
    fill = {}
    def spread(instrs, start, per):
        i = start
        while instrs:
            fill.setdefault(i, []).extend(instrs[:per]); instrs = instrs[per:]; i += 1
        return i
    G2T = 88 if NSLOT == 4 else None
    def g2_conv():
        o = []
        for b in range(4):
            c = ACCS[2] + 4 * b
            o += mulq(c) + [f"v_cvt_pk_bf16_f32 v{G2T+2*b}, v{c}, v{c+1}", f"v_cvt_pk_bf16_f32 v{G2T+2*b+1}, v{c+2}, v{c+3}"]
        return o
    def g2_store():
        o = []
        for b in (0, 2):
            q = G2T + 2 * b
            o += [f"s_add_u32 s{sT5}, s{sSTO}, {b*32768 + 2*512}", f"v_permlane32_swap_b32 v{q}, v{q+2}", f"v_permlane32_swap_b32 v{q+1}, v{q+3}",
                  f"buffer_store_dwordx4 v[{q}:{q+3}], v{vSB}, s[{sWS}:{sWS+3}], s{sT5} offen sc1"]
        return o
    e0 = spread(g2_store() + ep_part0(), 0, PER)
    FAT = opts.get("fat", 30)
    assert e0 <= FAT
    fill.setdefault(FAT, []).extend(flag(0, 4))
    if not PIPE:
        k("s_barrier      ; B_10")
        for i in range(LOOK):
            c, ks, s, off = steps[i]
            rdB(c, s, off, i % 4)
    k("s_nop 8" if not PIPE else "s_nop 11")
    for ins in g2_conv(): k(ins)
    for i, (c, ks, s, off) in enumerate(steps):
        n = i + LOOK
        if n < 40:
            cn, ksn, sn, offn = steps[n]
            if cn != steps[n - 1][0]: k(f"s_barrier      ; B_{cn}")
            rdB(cn, sn, offn, n % 4)
        k(f"s_waitcnt lgkmcnt({min(LOOK, 39 - i)})")
        mf(ACCS[3], ks, i % 4, ks == 0)
        for ins in fill.get(i, []): k(ins)
        if i == FAT: stamp(6)
    stamp(14, 0)
    k("s_nop 11")
    for ins in ep_part(3): k(ins)
    for ins in flag(1, 3): k(ins)
    stamp(5)

    vKA1, vKA2, vVA0, vVA1 = 2, 3, 4, 5
    vOA, vOH = 6, 7
    vCW, vCN = 8, 9
    vQA1, vQA2 = 10, 11
    vQ1, vQ2 = 16, 20
    MK, MP, PD = 32, 48, 56
    S = [64, 80]
    P = 96
    KF = [104, 112]
    VF = [120, 128]
    OA = 136
    k("L_prep:")
    k(f"""
    v_and_b32 v25, 31, v0              ; q
    v_lshrrev_b32 v26, 5, v0           ; h
    v_lshlrev_b32 v27, 2, v26
    v_sub_u32 v27, v27, v25            ; 4h - q
    """)
    for i in range(16):
        key = 8 * (i >> 2) + (i & 3)
        k(f"v_add_u32 v{MK+i}, {key-1}, v27")
        k(f"v_ashrrev_i32 v{MK+i}, 31, v{MK+i}")
    k(f"s_mov_b32 s{sT1}, 0xffff")
    for j in range(8):
        k(f"v_bfi_b32 v{MP+j}, s{sT1}, v{MK+2*j}, v{MK+2*j+1}")
    k(f"""
    s_cmp_eq_u32 s{sROLE}, 1
    s_cbranch_scc1 L_nof
    s_cmp_ge_u32 s{sCT}, 15
    s_cbranch_scc1 L_nof
    """)
    for ins in flag(2, 1): k(ins)
    stamp(3, 0)
    k(f"""
    L_nof:
    s_lshl_b32 s{sT0}, s{sWAVE}, 9        ; w*512
    v_lshlrev_b32 v27, 4, v25
    v_add_u32 v27, s{sT0}, v27            ; (32w+q)*16
    v_lshl_add_u32 v{vKA1}, v26, 13, v27
    v_add_u32 v{vKA1}, {LDS_K}, v{vKA1}
    s_lshl_b32 s{sT1}, s{sODD}, 3
    s_add_u32 s{sT2}, s{sT1}, {LDS_K+16384}
    v_add_u32 v{vKA2}, s{sT2}, v27
    s_sub_u32 s{sT2}, {LDS_K+16384+12*16+8}, s{sT1}
    v_mov_b32 v31, s{sT2}
    v_cndmask_b32 v{vKA2}, v{vKA2}, v31, s[{sUP}:{sUP+1}]
    v_lshl_add_u32 v{vCW}, v25, 8, v31
    v_lshl_add_u32 v{vCW}, v26, 4, v{vCW}
    s_sub_u32 s{sT2}, {LDS_V+16384+511*16+8}, s{sT1}
    v_mov_b32 v{vCN}, s{sT2}
    v_lshl_add_u32 v{vQA1}, v26, 12, v27
    v_add_u32 v{vQA1}, {LDS_Q}, v{vQA1}
    s_add_u32 s{sT2}, s{sT1}, {LDS_Q+8192}
    v_add_u32 v{vQA2}, s{sT2}, v27
    s_lshr_b32 s{sT1}, s{sH}, 1
    s_mul_i32 s{sB0}, s{sT1}, 5            ; 5m
    s_mul_i32 s{sT2}, s{sODD}, 3
    s_add_u32 s{sT2}, s{sT2}, s{sB0}       ; blockA
    s_lshl_b32 s{sT3}, s{sRB}, 12          ; 256*RB*16
    s_lshl_b32 s{sT4}, s{sT2}, 15
    s_add_u32 s{sT4}, s{sT4}, s{sT3}
    s_add_u32 s{sT4}, s{sT4}, {O_OFF}
    v_lshl_add_u32 v{vOA}, v26, 15, v27
    v_add_u32 v{vOA}, s{sT4}, v{vOA}
    s_add_u32 s{sT4}, s{sB0}, 2
    s_lshl_b32 s{sT4}, s{sT4}, 15
    s_add_u32 s{sT4}, s{sT4}, s{sT3}
    s_lshl_b32 s{sT5}, s{sODD}, 3
    s_add_u32 s{sT4}, s{sT4}, s{sT5}
    s_add_u32 s{sT4}, s{sT4}, {O_OFF}
    v_add_u32 v{vOH}, s{sT4}, v27
    {PRE_O}
    v_bfe_u32 v30, v0, 4, 1              ; g1
    v_bfe_u32 v29, v0, 1, 1              ; c>>1
    v_cmp_eq_u32 vcc, 1, v30
    v_mov_b32 v28, 2
    v_and_b32 v25, 1, v0                 ; c&1
    v_cndmask_b32 v29, v29, v28, vcc     ; p
    v_and_b32 v30, v25, v30
    v_mov_b32 v28, s{sODD}
    v_cndmask_b32 v25, v25, v28, vcc
    v_bfe_u32 v28, v0, 2, 2              ; r
    v_lshl_add_u32 v28, v26, 2, v28      ; 4h + r
    v_lshlrev_b32 v26, 2, v29            ; p<<2
    v_lshlrev_b32 v27, 13, v29           ; p*8192
    v_lshl_add_u32 v27, v25, 3, v27
    v_add_u32 v27, s{sT0}, v27
    v_add_u32 v27, {LDS_V}, v27
    v_xor_b32 v25, v28, v26
    v_lshl_add_u32 v{vVA0}, v25, 4, v27
    v_or_b32 v28, 8, v28
    v_xor_b32 v25, v28, v26
    v_lshl_add_u32 v{vVA1}, v25, 4, v27
    v_cmp_eq_u32 vcc, 1, v30
    s_cmp_eq_u32 s{sRB}, 0
    s_cselect_b32 s{sNT}, s{sWAVE}, 7
    v_cndmask_b32 v{vVA0}, v{vVA0}, v31, vcc
    v_cndmask_b32 v{vVA1}, v{vVA1}, v31, vcc
    """)
    if opts.get("zrow", 1):
        k(f"""
        v_and_b32 v25, 18, v0
        v_cmp_eq_u32 vcc, 18, v25            ; g1 && c>=2
        v_add_u32 v31, 16, v31
        s_nop 0
        v_cndmask_b32 v{vVA0}, v{vVA0}, v31, vcc
        v_cndmask_b32 v{vVA1}, v{vVA1}, v31, vcc
        """)
    k(f"""
    v_mov_b32 v22, 0x3f80
    v_mov_b32 v23, 0
    v_cndmask_b32 v22, v22, v23, s[{sUP}:{sUP+1}]
    s_cmp_eq_u32 s{sROLE}, 1
    s_cbranch_scc1 L_role_ld
    """)
    vWOA = 200
    k(f"s_lshl_b32 s{sLW}, s{sWAVE}, 10\ns_lshl_b32 s{sT0}, s{sWAVE}, 6\nv_add_u32 v26, s{sT0}, v0\ns_mul_i32 s{sWB}, s{sRB}, 160")
    for i in range(5):
        if i: k(f"v_add_u32 v26, 256, v26")
        k(f"""
        v_mul_u32_u24 v27, 6554, v26
        v_lshrrev_b32 v27, 16, v27        ; rho
        v_mul_u32_u24 v28, 10, v27
        v_sub_u32 v28, v26, v28           ; piece
        v_and_b32 v29, 0x63, v27
        v_bfe_u32 v30, v27, 2, 2          ; g
        v_lshl_add_u32 v29, v30, 3, v29
        v_bfe_u32 v30, v27, 4, 1          ; t
        v_lshl_add_u32 v29, v30, 2, v29   ; k
        v_mul_u32_u24 v29, 1280, v29
        v_lshl_add_u32 v{vWOA+i}, v28, 4, v29
        """)
    srd(sWO, 8, 819200)
    k(f"""
    s_cmp_lt_u32 s{sCT}, 15
    s_cbranch_scc1 L_BD
    """)
    readychk("L_rdy2", vTG, vZ0, True)
    k("s_branch L_BD")

    vP, vZ, vF = 220, 221, 222
    vU = 224
    TY = 80 * 32768
    k(f"""
    L_role_ld:
    v_mov_b32 v{vZ}, 0
    s_lshl_b32 s{sT1}, s{sODD}, 1
    s_add_u32 s{sT1}, s{sT1}, s{sB0}
    s_add_u32 s{sT2}, s{sT1}, 2
    s_lshr_b32 s{sT1}, s{sT1}, 2
    s_lshr_b32 s{sT2}, s{sT2}, 2
    s_sub_u32 s{sT2}, s{sT2}, s{sT1}          ; 0 or 1
    s_cmp_eq_u32 s{sRB}, 0
    s_cselect_b32 s{sNX}, 6, 10
    s_movk_i32 s{sUM}, 0x3ff
    s_cselect_b32 s{sUM}, 0x333, s{sUM}
    s_lshl_b32 s{sNX}, s{sNX}, s{sT2}
    s_and_b32 s{sT0}, s{sWAVE}, 1
    s_lshl_b32 s{sT1}, 0x155, s{sT0}
    s_and_b32 s101, s{sUM}, s{sT1}
    s_cmp_lt_u32 s{sWAVE}, 6
    s_cselect_b32 s{sUM}, s{sUM}, s101
    s_sub_u32 s{sFL}, s{sWAVE}, 4
    s_min_u32 s{sFL}, s{sFL}, 2
    s_lshl_b32 s{sT0}, s{sRB}, 5
    s_add_u32 s{sT0}, s{sT0}, s{sH}
    s_mul_i32 s{sT0}, s{sT0}, 3
    s_add_u32 s{sT0}, s{sT0}, s{sFL}
    s_lshl_b32 s{sT0}, s{sT0}, 7
    s_add_u32 s{sT0}, s{sT0}, {CN1_OFF}
    v_mov_b32 v{vF}, s{sT0}
    s_mul_i32 s{sT0}, s{sODD}, 3
    s_add_u32 s{sT0}, s{sT0}, s{sB0}
    s_lshl_b32 s{sT0}, s{sT0}, 15
    s_add_u32 s{sT1}, s{sB0}, 2
    s_lshl_b32 s{sT1}, s{sT1}, 15
    s_lshl_b32 s{sT2}, s{sRB}, 12
    s_add_u32 s{sT0}, s{sT0}, s{sT2}
    s_add_u32 s{sT1}, s{sT1}, s{sT2}
    v_lshlrev_b32 v219, 4, v0
    v_add_u32 v{vU}, s{sT0}, v219
    v_add_u32 v{vU+1}, 32768, v{vU}
    v_add_u32 v{vU+2}, s{sT1}, v219
    v_xor_b32 v{vU+3}, 64, v{vU+1}
    v_xor_b32 v{vU+4}, 128, v{vU+2}
    """)
    if opts.get("preout", 0):
        srd(sOUT, 10, 2621440)
        k(f"""
        s_and_b32 s{sT1}, s{sJ}, 3
        s_bfe_u32 s{sT3}, s{sWAVE}, 0x10001
        s_lshl_b32 s{sT3}, s{sT3}, 2
        s_add_u32 s{sT1}, s{sT1}, s{sT3}
        s_lshl_b32 s{sT0}, s{sXCD}, 3
        s_add_u32 s{sT0}, s{sT0}, s{sT1}
        s_lshl_b32 s{sT0}, s{sT0}, 1
        s_and_b32 s{sT1}, s{sWAVE}, 1
        s_add_u32 s{sT0}, s{sT0}, s{sT1}
        s_mul_i32 s{sT0}, s{sT0}, {16*1280}
        s_mul_i32 s{sT1}, s{sRB}, 160
        s_add_u32 s{sT0}, s{sT0}, s{sT1}
        v_and_b32 v26, 15, v0
        v_mul_u32_u24 v26, 1280, v26
        v_lshrrev_b32 v27, 4, v0
        v_lshl_add_u32 v26, v27, 7, v26
        s_mov_b32 exec_hi, 0
        buffer_load_dword v251, v26, s[{sOUT}:{sOUT+3}], s{sT0} offen
        s_mov_b32 exec_hi, -1
        """)
    k(f"""
    s_cmp_ge_u32 s{sCT}, 15
    s_cbranch_scc1 L_ld_idle2
    """)
    srd(sX, 4, 2621440); srd(sW, 6, 2457600)
    for c in range(NCH):
        k(f"s_waitcnt vmcnt({sum(cnt[c+1:])})")
        if c == 9: stamp(15)
        if c == NCH - 1: stamp(14, 1)
        k(f"s_barrier      ; B_{c}")
        if c == 7: k(f"global_load_dword v{vP}, v{vZ}, s[12:13] sc1")
        if len(cnt) < NCH: issue(len(cnt))
    k(f"""
    s_branch L_ld_go
    L_ld_idle2:
    global_load_dword v{vP}, v{vZ}, s[12:13] sc1
    L_ld_go:
    """)
    readychk("L_rdy3", vP, vZ, False)
    k(f"""
    L_fetch:
    s_lshl_b32 s{sSTO}, s{sFL}, 8
    s_add_u32 s{sSTO}, s{sSTO}, 1024
    s_cmp_eq_u32 s{sFL}, 1
    s_cselect_b32 s{sSTO}, 0, s{sSTO}
    s_cselect_b32 s{sT4}, -1, 0
    s_mov_b64 exec, 1
    """)
    gpoll("L_poll1", vP, vF, f"s{sNX}", 218)
    stamp(4, 1)
    k(f"""
    s_mov_b32 exec_lo, -1
    s_mov_b32 exec_hi, s{sT4}
    """)
    for u in (0, 1, 4, 5, 8, 9, 2, 3, 6, 7):
        ty = (u + 2) >> 2; t1 = (u + 2) & 3
        k(f"s_bitcmp1_b32 s{sUM}, {u}\ns_cbranch_scc0 L_skipu{u}")
        for p in range(3):
            ldsb = [LDS_Q + (t1 - 2) * 2048 + p * 4096, LDS_K + t1 * 2048 + p * 8192, LDS_V + t1 * 2048 + p * 8192][ty]
            vr = vU + p if (ty < 2 or p == 0) else vU + 2 + p
            k(f"s_add_u32 m0, s{sSTO}, {ldsb}")
            if p == 0: k(f"s_add_u32 s{sT5}, s{sSTO}, {ty * TY + (t1 - 2) * 2048}")
            else: k("s_nop 0")
            k(f"buffer_load_dwordx4 v{vr}, s[{sWS}:{sWS+3}], s{sT5} offen sc1 lds")
        k(f"L_skipu{u}:")
    stamp(5)
    k(f"""
    s_mov_b64 exec, -1
    s_waitcnt vmcnt(0)
    """)
    stamp(6)
    k(f"""
    s_cmp_lg_u32 s{sWAVE}, 7
    s_cbranch_scc1 L_BD
    ds_write_b32 v{vCN}, v{vZ}
    s_waitcnt lgkmcnt(0)
    L_BD:
    s_barrier
    """)
    stamp(7)

    def LK(kk, buf):
        off = (8 - kk) * 512
        f = KF[buf]
        k(f"ds_read_b128 v[{f}:{f+3}], v{vKA1} offset:{off}")
        k(f"ds_read_b64 v[{f+4}:{f+5}], v{vKA2} offset:{off}")
    def LV(kk, buf):
        off = (8 - kk) * 512
        f = VF[buf]
        for u in range(2):
            for t in range(2):
                k(f"ds_read_b64_tr_b16 v[{f+4*u+2*t}:{f+4*u+2*t+1}], v{[vVA0, vVA1][t]} offset:{off + u*256}")
    def QK(buf, sbuf):
        f = KF[buf]; s = S[sbuf]
        k(f"v_mfma_f32_32x32x16_bf16 v[{s}:{s+15}], v[{f}:{f+3}], v[{vQ1}:{vQ1+3}], 0")
        k(f"v_mfma_f32_32x32x8_bf16 v[{s}:{s+15}], v[{f+4}:{f+5}], v[{vQ2}:{vQ2+1}], v[{s}:{s+15}]")
    def EXP(sbuf, lo, hi):
        s = S[sbuf]
        for i in range(lo, hi): k(f"v_exp_f32 v{s+i}, v{s+i}")
    def CVT(sbuf, lo, hi):
        s = S[sbuf]
        for i in range(lo, hi): k(f"v_cvt_pk_bf16_f32 v{P+i}, v{s+2*i}, v{s+2*i+1}")
    def PV(buf, u, p=P, first=False):
        f = VF[buf] + 4 * u
        cs = "0" if first else f"v[{OA}:{OA+15}]"
        k(f"v_mfma_f32_32x32x16_bf16 v[{OA}:{OA+15}], v[{f}:{f+3}], v[{p+4*u}:{p+4*u+3}], {cs}")
    def wo_group(gi):
        for i in range(5):
            k(f"s_add_u32 m0, s{sLW}, {LDS_WO + (gi*5+i)*4096}")
            if i == 0: k(f"s_add_u32 s{sT5}, s{sWB}, {gi*4*40960}")
            else: k("s_nop 0")
            k(f"buffer_load_dwordx4 v{vWOA+i}, s[{sWO}:{sWO+3}], s{sT5} offen lds")
    def wo_opt(gi):
        if opts.get("nowo"): return
        k(f"s_cmp_eq_u32 s{sROLE}, 1\ns_cbranch_scc1 L_nowo{gi}")
        wo_group(gi)
        k(f"L_nowo{gi}:")

    PR = opts.get("pr", 0)
    PRS = {0: None, 1: [3, 3, 2, 2, 1, 1, 0, 0], 2: [3, 2, 2, 1, 1, 0, 0, 0], 3: [3, 3, 3, 2, 2, 1, 1, 0], 4: [1, 1, 1, 1, 0, 0, 0, 0], 5: [3, 2, 1, 0, 3, 2, 1, 0]}[PR]
    def setpr(st):
        if PRS and (st == 0 or PRS[st] != PRS[st - 1]): k(f"s_setprio {PRS[st]}")
    setpr(0)
    k(f"""
    s_mov_b32 exec_lo, 0x3ffff
    s_mov_b32 exec_hi, 0x3ffff
    ds_write_b64 v{vCW}, v[22:23]
    s_mov_b64 exec, -1
    ds_read_b128 v[{vQ1}:{vQ1+3}], v{vQA1}
    ds_read_b64 v[{vQ2}:{vQ2+1}], v{vQA2}
    """)
    LK(0, 0); LK(8, 1); LV(0, 0); LV(8, 1)
    k(f"""
    s_waitcnt lgkmcnt(12)
    v_cndmask_b32 v{vQ2}, v{vQ2}, 0, s[{sUP}:{sUP+1}]
    v_cndmask_b32 v{vQ2+1}, v{vQ2+1}, 0, s[{sUP}:{sUP+1}]
    s_waitcnt lgkmcnt(10)
    s_cmp_eq_u32 s{sRB}, 0
    """)
    QK(0, 0)
    k("s_cbranch_scc1 L_nofar")
    k("s_waitcnt lgkmcnt(8)")
    QK(1, 1)
    k("L_far_done:")
    LK(1, 0)
    wo_opt(0)
    k("s_nop 7")
    s = S[0]
    for i in range(16): k(f"v_bfi_b32 v{s+i}, v{MK+i}, v{s+i}, v{S[1]+i}")
    k(f"v_max3_f32 v25, v{s}, v{s+1}, v{s+2}")
    k(f"v_max3_f32 v26, v{s+3}, v{s+4}, v{s+5}")
    k(f"v_max3_f32 v25, v25, v{s+6}, v{s+7}")
    k(f"v_max3_f32 v26, v26, v{s+8}, v{s+9}")
    k(f"v_max3_f32 v25, v25, v{s+10}, v{s+11}")
    k(f"v_max3_f32 v26, v26, v{s+12}, v{s+13}")
    k(f"v_max3_f32 v25, v25, v{s+14}, v{s+15}")
    k(f"""
    v_max_f32 v25, v25, v26
    v_mov_b32 v26, v25
    s_nop 1
    v_permlane32_swap_b32 v25, v26
    v_max_f32 v25, v25, v26
    v_and_b32 v25, 0xffff0000, v25
    v_lshrrev_b32 v26, 16, v25
    v_xor_b32 v26, 0x8000, v26
    v_cndmask_b32 v{vQ2}, v{vQ2}, v26, s[{sUP}:{sUP+1}]
    """)
    astamp(5)
    for i in range(4): k(f"v_sub_f32 v{s+i}, v{s+i}, v25")
    k("s_waitcnt lgkmcnt(0)")
    QK(0, 1)
    LK(2, 1)
    for i in range(4, 16): k(f"v_sub_f32 v{s+i}, v{s+i}, v25")
    EXP(0, 0, 8)
    CVT(0, 0, 4)
    for j in range(4): k(f"v_and_b32 v{PD+j}, v{MP+j}, v{P+j}")
    for j in range(4): k(f"v_xor_b32 v{P+j}, v{PD+j}, v{P+j}")
    EXP(0, 8, 10)
    PV(0, 0, PD, first=True)
    EXP(0, 10, 13)
    k(f"s_cmp_eq_u32 s{sRB}, 0\ns_cbranch_scc1 L_nofar1")
    PV(1, 0)
    k("L_nofar1:")
    EXP(0, 13, 16)
    k("s_nop 0")
    CVT(0, 4, 8)
    for j in range(4, 8): k(f"v_and_b32 v{PD+j}, v{MP+j}, v{P+j}")
    for j in range(4, 8): k(f"v_xor_b32 v{P+j}, v{PD+j}, v{P+j}")
    PV(0, 1, PD)
    k(f"s_cbranch_scc1 L_nofar2")
    PV(1, 1)
    k("L_nofar2:")
    LV(1, 0)
    k(f"s_cmp_eq_u32 s{sNT}, 0\ns_cbranch_scc1 L_worest1")
    astamp(1)
    for i in range(7):
        if i == 2: astamp(2)
        if i == 4: astamp(3)
        if i == 6: astamp(14)
        cur = (i + 1) & 1; nxt = i & 1
        setpr(i + 1)
        AV = opts.get("av", 0)
        if AV == 0:
            if i < 6:
                k("s_waitcnt lgkmcnt(4)")
                QK((i + 1) & 1, nxt)
            if i < 5: LK(i + 3, i & 1)
            if i < 4: wo_opt(i + 1)
            EXP(cur, 0, 8)
            CVT(cur, 0, 4)
            EXP(cur, 8, 10)
            k(f"s_waitcnt lgkmcnt({2 if i < 5 else 0})")
            PV(i & 1, 0)
            EXP(cur, 10, 16)
            k("s_nop 0")
            CVT(cur, 4, 8)
            if i < 6: LV(i + 2, (i + 1) & 1)
            else: k("s_nop 1")
            PV(i & 1, 1)
        else:
            f = KF[(i + 1) & 1]; sn = S[nxt]
            if i < 6:
                k("s_waitcnt lgkmcnt(4)")
                k(f"v_mfma_f32_32x32x16_bf16 v[{sn}:{sn+15}], v[{f}:{f+3}], v[{vQ1}:{vQ1+3}], 0")
            EXP(cur, 0, 3)
            if i < 5: LK(i + 3, i & 1)
            if i < 6:
                k(f"v_mfma_f32_32x32x8_bf16 v[{sn}:{sn+15}], v[{f+4}:{f+5}], v[{vQ2}:{vQ2+1}], v[{sn}:{sn+15}]")
            if i < 4: wo_opt(i + 1)
            EXP(cur, 3, 8)
            CVT(cur, 0, 3)
            EXP(cur, 8, 9)
            CVT(cur, 3, 4)
            EXP(cur, 9, 11)
            k(f"s_waitcnt lgkmcnt({2 if i < 5 else 0})")
            PV(i & 1, 0)
            if AV == 2 and i < 6:
                LV(i + 2, (i + 1) & 1)
            EXP(cur, 11, 16)
            CVT(cur, 4, 7)
            if AV == 1 and i < 6: LV(i + 2, (i + 1) & 1)
            CVT(cur, 7, 8)
            k("s_nop 1")
            PV(i & 1, 1)
        if i < 6:
            k(f"s_cmp_eq_u32 s{sNT}, {i+1}")
            k(f"s_cbranch_scc1 {'L_worest%d' % (i+2) if i < 3 else 'L_p2_done'}")
    k("L_p2_done:")
    if PRS: k("s_setprio 0" if not opts.get("prend") else f"s_setprio {opts['prend']}")
    astamp(15)
    k(f"""
    s_lshl_b32 s{sT2}, s{sRB}, 5
    s_and_b32 s{sT3}, s{sWAVE}, 3
    s_add_u32 s{sT2}, s{sT2}, s{sT3}
    s_lshl_b32 s{sT2}, s{sT2}, 1
    s_add_u32 s{sT2}, s{sT2}, s{sROLE}
    s_lshl_b32 s{sT2}, s{sT2}, 7
    s_add_u32 s{sFL}, s{sT2}, {CN2_OFF}
    v_mov_b32 v27, {hex(f2u(2.0**60))}
    v_mov_b32 v30, {hex(f2u(2.0**-60))}
    v_mov_b32 v28, 1
    v_lshlrev_b32 v29, 10, v0
    s_nop 0
    v_mov_b32 v25, v{OA+8}
    v_mov_b32 v26, v{OA+8}
    s_nop 1
    v_permlane32_swap_b32 v25, v26
    v_cmp_nlt_f32 vcc, v26, v27
    v_cmp_ngt_f32 s[{sT0}:{sT0+1}], v26, v30
    s_or_b64 vcc, vcc, s[{sT0}:{sT0+1}]
    s_cbranch_vccnz L_slow
    L_p2_norm:
    v_rcp_f32 v26, v26
    s_nop 0
    """)
    for i in range(12): k(f"v_mul_f32 v{OA+i}, v{OA+i}, v26")
    k(f"""
    v_cvt_pk_bf16_f32 v{P}, v{OA}, v{OA+1}
    v_cvt_pk_bf16_f32 v{P+1}, v{OA+2}, v{OA+3}
    v_cvt_pk_bf16_f32 v{P+2}, v{OA+4}, v{OA+5}
    v_cvt_pk_bf16_f32 v{P+3}, v{OA+6}, v{OA+7}
    v_cvt_pk_bf16_f32 v{P+4}, v{OA+8}, v{OA+9}
    v_cvt_pk_bf16_f32 v{P+5}, v{OA+10}, v{OA+11}
    v_permlane32_swap_b32 v{P}, v{P+2}
    v_permlane32_swap_b32 v{P+1}, v{P+3}
    buffer_store_dwordx4 v[{P}:{P+3}], v{vOA}, s[{sWS}:{sWS+3}], 0 offen sc1
    s_mov_b32 exec_hi, 0
    buffer_store_dwordx2 v[{P+4}:{P+5}], v{vOH}, s[{sWS}:{sWS+3}], 0 offen sc1
    """)
    stamp(8)
    k(f"""
    s_movk_i32 exec_lo, 0xff
    s_waitcnt vmcnt(0)
    buffer_atomic_add v28, v29, s[{sWS}:{sWS+3}], s{sFL} offen sc1
    """)
    stamp(9)
    k(f"""
    s_cmp_eq_u32 s{sROLE}, 1
    s_cbranch_scc1 L_fin
    s_mov_b32 exec_lo, 1
    ds_add_u32 v{vCN}, v28
    s_mov_b64 exec, -1
    v_mov_b32 v12, v{vCN}
    s_setprio 0
    """)

    NPRE = 7
    B3 = 16
    A3 = 96
    C3 = 236
    srd(sOUT, 10, 2621440)
    k(f"""
    v_lshrrev_b32 v2, 2, v0            ; 4g + r
    v_mul_u32_u24 v2, 160, v2
    v_and_b32 v3, 3, v0
    v_lshl_add_u32 v2, v3, 3, v2       ; steps 0..9
    v_add_u32 v3, {10*5120}, v2        ; steps 10..19
    v_lshrrev_b32 v4, 4, v0
    v_and_b32 v5, 15, v0
    v_lshlrev_b32 v6, 15, v4
    v_lshl_add_u32 v6, v5, 4, v6
    s_and_b32 s{sT1}, s{sJ}, 3
    s_lshr_b32 s{sT3}, s{sWAVE}, 1
    s_lshl_b32 s{sT2}, s{sT3}, 2
    s_add_u32 s{sT1}, s{sT1}, s{sT2}
    s_lshl_b32 s{sT0}, s{sXCD}, 3
    s_add_u32 s{sT0}, s{sT0}, s{sT1}     ; q tile
    s_lshl_b32 s{sT2}, s{sXCD}, 5
    s_add_u32 s{sT2}, s{sT2}, s{sJ}
    s_lshl_b32 s{sT2}, s{sT2}, 1
    s_add_u32 s{sT2}, s{sT2}, s{sT3}
    s_lshl_b32 s{sT2}, s{sT2}, 7
    s_add_u32 s{sT2}, s{sT2}, {CN2_OFF}
    v_mov_b32 v10, s{sT2}
    s_lshl_b32 s{sT0}, s{sT0}, 5
    s_and_b32 s{sT1}, s{sWAVE}, 1
    s_lshl_b32 s{sT1}, s{sT1}, 4
    s_add_u32 s{sT0}, s{sT0}, s{sT1}     ; row0
    s_lshl_b32 s{sT1}, s{sT0}, 4
    s_add_u32 s{sT1}, s{sT1}, {O_OFF}
    v_add_u32 v7, s{sT0}, v5
    v_mul_u32_u24 v7, 1280, v7
    s_mul_i32 s{sT2}, s{sRB}, 160
    v_add_u32 v7, s{sT2}, v7
    v_lshl_add_u32 v9, v4, 3, v7
    v_and_b32 v11, 1, v4
    v_lshl_add_u32 v7, v11, 5, v7
    v_lshrrev_b32 v11, 1, v4
    v_lshl_add_u32 v7, v11, 4, v7
    """)
    lwait("L_cwo", 11, 12, 0, 4)
    def LA(ks):
        base = A3 + (ks % NPRE) * 20
        va = 2 if ks < 10 else 3
        o = (ks % 10) * 5120
        for tl in range(5):
            for t in range(2):
                a = base + tl * 4 + 2 * t
                k(f"ds_read_b64_tr_b16 v[{a}:{a+1}], v{va} offset:{o + t*16*160 + tl*32}")
    for ks in range(NPRE):
        LA(ks)
        k("s_waitcnt lgkmcnt(5)")
    k("s_mov_b64 exec, 1")
    stamp(4, 0)
    gpoll("L_poll2", 11, 10, 32, 13)
    k("s_mov_b64 exec, -1")
    stamp(11)
    for ks in range(20):
        k(f"buffer_load_dwordx4 v[{B3+4*ks}:{B3+4*ks+3}], v6, s[{sWS}:{sWS+3}], s{sT1} offen sc1")
        if ks < 19: k(f"s_add_u32 s{sT1}, s{sT1}, {4*32768}")
    if opts.get("p3s", 1):
        RPS = opts.get("rps", 8)
        q = []
        for ks in range(NPRE, 20):
            base = A3 + (ks % NPRE) * 20
            va = 2 if ks < 10 else 3
            o = (ks % 10) * 5120
            for tl in range(5):
                for t in range(2):
                    a = base + tl * 4 + 2 * t
                    q.append((ks, tl, f"ds_read_b64_tr_b16 v[{a}:{a+1}], v{va} offset:{o + t*16*160 + tl*32}"))
        issued = 0
        for ks in range(20):
            need = max(0, (ks - NPRE + 1) * 10)
            assert issued >= need
            lg = 0 if ks == 0 else min(issued - need, 15 - RPS)
            k(f"s_waitcnt vmcnt({19-ks}) lgkmcnt({lg})")
            if ks == 0: stamp(10)
            base = A3 + (ks % NPRE) * 20
            left = RPS
            for tl in range(5):
                a = base + tl * 4; c = C3 + tl * 4; b = B3 + 4 * ks
                cs = "0" if ks == 0 else f"v[{c}:{c+3}]"
                k(f"v_mfma_f32_16x16x32_bf16 v[{c}:{c+3}], v[{a}:{a+3}], v[{b}:{b+3}], {cs}")
                n = 2 if left > (4 - tl) else 1
                for _ in range(n):
                    if left and issued < len(q):
                        tks, ttl, ins = q[issued]
                        if tks - NPRE < ks or (tks - NPRE == ks and ttl <= tl):
                            k(ins); issued += 1; left -= 1
    else:
        for ks in range(20):
            lg = 5 if (ks >= 1 and ks - 1 + NPRE < 20) else 0
            k(f"s_waitcnt vmcnt({19-ks}) lgkmcnt({lg})")
            if ks == 0: stamp(10)
            if opts.get("p3st") and ks in (5, 10, 15, 19):
                idx = {5: 1, 10: 2, 15: 3, 19: 5}[ks]
                k(f"s_mem{'' if opts.get('cyc') else 'real'}time s[{sST+2*idx}:{sST+2*idx+1}]")
            base = A3 + (ks % NPRE) * 20
            for tl in range(5):
                a = base + tl * 4; c = C3 + tl * 4; b = B3 + 4 * ks
                cs = "0" if ks == 0 else f"v[{c}:{c+3}]"
                k(f"v_mfma_f32_16x16x32_bf16 v[{c}:{c+3}], v[{a}:{a+3}], v[{b}:{b+3}], {cs}")
            if ks + NPRE < 20: LA(ks + NPRE)
    stamp(12)
    k("s_nop 7")
    for tl in range(5):
        c = C3 + tl * 4
        q = 16 + (tl >> 1) * 4 + (tl & 1) * 2
        k(f"v_cvt_pk_bf16_f32 v{q}, v{c}, v{c+1}")
        k(f"v_cvt_pk_bf16_f32 v{q+1}, v{c+2}, v{c+3}")
    k(f"""
    v_permlane16_swap_b32 v16, v18
    v_permlane16_swap_b32 v17, v19
    v_permlane16_swap_b32 v20, v22
    v_permlane16_swap_b32 v21, v23
    buffer_store_dwordx4 v[16:19], v7, s[{sOUT}:{sOUT+3}], 0 offen {OSC}
    buffer_store_dwordx4 v[20:23], v7, s[{sOUT}:{sOUT+3}], 0 offen offset:64 {OSC}
    buffer_store_dwordx2 v[24:25], v9, s[{sOUT}:{sOUT+3}], 0 offen offset:128 {OSC}
    """)
    k("L_fin:")
    if "padat" in opts:
        k(f"""
        s_waitcnt lgkmcnt(0)
        s_cmp_eq_u32 s94, 0
        s_cbranch_scc1 L_nopad
        L_pad:
        s_memrealtime s[92:93]
        s_waitcnt lgkmcnt(0)
        s_sub_u32 s92, s92, s94
        s_cmp_lt_u32 s92, 3000
        s_cbranch_scc1 L_pad
        L_nopad:
        """)
    if stamps:
        SW = opts.get("sw", 0)
        k(f"""
        s_mov_b64 exec, -1
        s_waitcnt vmcnt(0)
        s_mem{'' if opts.get('cyc') else 'real'}time s[{sST+26}:{sST+27}]
        s_and_b32 s{sT0}, s{sWAVE}, 3
        s_cmp_lg_u32 s{sT0}, {SW}
        s_cbranch_scc1 L_end
        s_waitcnt lgkmcnt(0)
        s_lshl_b32 s{sT0}, s2, 1
        s_lshr_b32 s{sT1}, s{sWAVE}, 2
        s_add_u32 s{sT0}, s{sT0}, s{sT1}
        s_lshl_b32 s{sT0}, s{sT0}, 6
        s_add_u32 s{sT0}, s{sT0}, {STAMP_OFF}
        v_mov_b32 v1, 0
        """)
        for i in range(16): k(f"v_mov_b32 v{4+i}, s{sST+2*i}")
        for i in range(4): k(f"buffer_store_dwordx4 v[{4+4*i}:{7+4*i}], v1, s[{sWS}:{sWS+3}], s{sT0} offen offset:{16*i}")
    k("L_end:")
    k("s_endpgm")

    k("L_nofar:")
    for i in range(16): k(f"v_mov_b32 v{S[1]+i}, {hex(NEG)}")
    k("s_branch L_far_done")
    for g in range(1, 5):
        k(f"L_worest{g}:")
        k(f"s_cmp_eq_u32 s{sROLE}, 1\ns_cbranch_scc1 L_p2_done")
        wo_group(g)
    k("s_branch L_p2_done")

    k("L_slow:")
    s = S[0]
    k(f"""
    v_cndmask_b32 v{vQ2}, v{vQ2}, 0, s[{sUP}:{sUP+1}]
    v_mov_b32 v25, 0xff800000
    v_mov_b32 v27, {hex(NEG)}
    s_mov_b32 s{sT2}, 0               ; pass
    s_add_u32 s{sT4}, s{sNT}, 1
    s_cmp_lg_u32 s{sRB}, 0
    s_cselect_b32 s{sT4}, 9, s{sT4}     ; tiles
    """)
    for i in range(16): k(f"v_mov_b32 v{OA+i}, 0")
    k(f"""
    L_slow_pass:
    s_mov_b32 s{sCNT}, 0
    L_slow_tile:
    s_sub_u32 s{sT3}, 8, s{sCNT}
    s_lshl_b32 s{sT3}, s{sT3}, 9
    v_add_u32 v10, s{sT3}, v{vKA1}
    v_add_u32 v11, s{sT3}, v{vKA2}
    v_add_u32 v12, s{sT3}, v{vVA0}
    v_add_u32 v13, s{sT3}, v{vVA1}
    ds_read_b128 v[{KF[0]}:{KF[0]+3}], v10
    ds_read_b64 v[{KF[0]+4}:{KF[0]+5}], v11
    ds_read_b64_tr_b16 v[{VF[0]}:{VF[0]+1}], v12
    ds_read_b64_tr_b16 v[{VF[0]+2}:{VF[0]+3}], v13
    ds_read_b64_tr_b16 v[{VF[0]+4}:{VF[0]+5}], v12 offset:256
    ds_read_b64_tr_b16 v[{VF[0]+6}:{VF[0]+7}], v13 offset:256
    s_waitcnt lgkmcnt(0)
    """)
    QK(0, 0)
    k(f"""
    s_nop 15
    s_cmp_lg_u32 s{sCNT}, 0
    s_cbranch_scc1 L_slow_nd
    """)
    for i in range(16): k(f"v_bfi_b32 v{s+i}, v{MK+i}, v{s+i}, v27")
    k(f"""
    L_slow_nd:
    s_cmp_lg_u32 s{sCNT}, 8
    s_cbranch_scc1 L_slow_nf
    """)
    for i in range(16): k(f"v_bfi_b32 v{s+i}, v{MK+i}, v27, v{s+i}")
    k(f"""
    L_slow_nf:
    s_cmp_lg_u32 s{sT2}, 0
    s_cbranch_scc1 L_slow_p2
    """)
    for i in range(16): k(f"v_max_f32 v25, v25, v{s+i}")
    k("s_branch L_slow_next")
    k("L_slow_p2:")
    for i in range(16): k(f"v_sub_f32 v{s+i}, v{s+i}, v25")
    EXP(0, 0, 16)
    k("s_nop 0")
    CVT(0, 0, 8)
    k("s_nop 1")
    PV(0, 0); PV(0, 1)
    k(f"""
    s_nop 15
    L_slow_next:
    s_add_u32 s{sCNT}, s{sCNT}, 1
    s_cmp_lt_u32 s{sCNT}, s{sT4}
    s_cbranch_scc1 L_slow_tile
    s_cmp_lg_u32 s{sT2}, 0
    s_cbranch_scc1 L_slow_done
    v_mov_b32 v26, v25
    s_nop 1
    v_permlane32_swap_b32 v25, v26
    v_max_f32 v25, v25, v26
    s_mov_b32 s{sT2}, 1
    s_branch L_slow_pass
    L_slow_done:
    v_mov_b32 v25, v{OA+8}
    v_mov_b32 v26, v{OA+8}
    s_nop 1
    v_permlane32_swap_b32 v25, v26
    s_branch L_p2_norm
    """)
    k("L_code_end:")
    return emit([k], single=True)

if __name__ == "__main__":
    out = sys.argv[1]
    opts = {}
    for a in sys.argv[2:]:
        kx, v = a.split("=")
        opts[kx] = [int(x) for x in v.split(',')] if kx == 'only' else int(v, 0)
    open(out, "w").write(gen(opts))
```
